```python
import torch

def _softmax(x, axis=-1):
    return torch.softmax(x, dim=axis)
def _gelu(x):
    return torch.nn.functional.gelu(x, approximate="tanh")
def _silu(x):
    return torch.nn.functional.silu(x)
def _sigmoid(x):
    return torch.sigmoid(x)
def _layernorm(x, axis=-1, eps=1e-5):
    m = x.mean(dim=axis, keepdim=True)
    v = x.var(dim=axis, keepdim=True, unbiased=False)
    return (x - m) / torch.sqrt(v + eps)
def _scatter_add(tgt, idx, src, axis=0):
    return tgt.clone().index_add_(axis, idx, src)
def _segment_sum(src, seg, n):
    out = torch.zeros((n,) + src.shape[1:], dtype=src.dtype)
    return out.index_add_(0, seg, src)
def _pad(x, pw):
    flat = tuple(v for pair in reversed(pw) for v in pair)
    return torch.nn.functional.pad(x, flat)

kernel_name = 'interleave_layers__sliding_local_dilated__glu_gated_swiglu__prompt'

def setup_inputs():

    _w = (lambda a: (lambda t: t.to(torch.bfloat16) if t.is_floating_point() else t)(torch.as_tensor(a)))
    def _A_setup():
        B, S, D = 1, 2048, 1024
        return {
            "x": _w((lambda *s: torch.randn(*s, dtype=torch.bfloat16) * 0.05)(B, S, D)),
            "wqkv": _w((lambda *s: torch.randn(*s, dtype=torch.bfloat16) * 0.05)(D, 3 * D)),
            "wo": _w((lambda *s: torch.randn(*s, dtype=torch.bfloat16) * 0.05)(D, D)),
        }
    _A_in = _A_setup()

    def _B_setup():
        B, S, D, F = 1, 2048, 1024, 3584
        return {
            "x": _w((lambda *s: torch.randn(*s, dtype=torch.bfloat16) * 0.05)(B, S, D)),
            "w1": _w((lambda *s: torch.randn(*s, dtype=torch.bfloat16) * 0.8)(D, F) * (2.0 / D) ** 0.5),
            "w3": _w((lambda *s: torch.randn(*s, dtype=torch.bfloat16) * 0.8)(D, F) * (2.0 / D) ** 0.5),
            "w2": _w((lambda *s: torch.randn(*s, dtype=torch.bfloat16) * 0.8)(F, D) * (2.0 / F) ** 0.5),
        }
    _B_in = _B_setup()

    return {
        "A_x": _A_in["x"],
        "A_wqkv": _A_in["wqkv"],
        "A_wo": _A_in["wo"],
        "B_x": _B_in["x"],
        "B_w1": _B_in["w1"],
        "B_w3": _B_in["w3"],
        "B_w2": _B_in["w2"],
    }

def reference(A_x, A_wqkv, A_wo, B_x, B_w1, B_w3, B_w2):
    def _A_ref(x, wqkv, wo):
        B, S, D = x.shape
        H = 32; Dh = D // H
        W, dil = 8, 2
        qkv = (lambda x, *d: x.permute(*d))((x @ wqkv).reshape(B, S, 3, H, Dh), 2, 0, 3, 1, 4)
        q, k, v = qkv[0], qkv[1], qkv[2]
        scale = Dh ** -0.5
        pos = torch.arange(S)
        off = torch.arange(W) * dil
        idx = pos[:, None] - off[None, :]
        mask = idx >= 0
        idx_c = torch.where(mask, idx, 0).reshape(-1)
        kg = k[:, :, idx_c, :].reshape(B, H, S, W, Dh)
        vg = v[:, :, idx_c, :].reshape(B, H, S, W, Dh)
        logits = torch.einsum("bhsd,bhswd->bhsw", q, kg) * scale
        logits = torch.where(mask[None, None, :, :], logits, -1e9)
        attn = _softmax(logits, axis=-1)
        o = torch.einsum("bhsw,bhswd->bhsd", attn, vg)
        return (lambda x, *d: x.permute(*d))(o, 0, 2, 1, 3).reshape(B, S, D) @ wo

    def _B_ref(x, w1, w3, w2):
        gate = torch.einsum("bsd,df->bsf", x, w1)
        up = torch.einsum("bsd,df->bsf", x, w3)
        h = _silu(gate) * up
        out = torch.einsum("bsf,fd->bsd", h, w2)
        return out

    x = A_x
    x = x + _A_ref(_layernorm(x, axis=-1), A_wqkv, A_wo)
    x = x + _B_ref(_layernorm(x, axis=-1), B_w1, B_w3, B_w2)
    x = x + _A_ref(_layernorm(x, axis=-1), A_wqkv, A_wo)
    x = x + _B_ref(_layernorm(x, axis=-1), B_w1, B_w3, B_w2)
    return x
```

```python
from lib import *

WS_X = 0
WS_O = 12 * MB
WS_H = 20 * MB
WS_P = 52 * MB
WS_M = 68 * MB
M_ST = WS_M
M_HALO = WS_M + 2 * MB
M_HST = WS_M + 2 * MB + 512 * 1024
M_CS = WS_M + 3 * MB
M_FL = WS_M + 4 * MB
M_XF = M_FL + 65536
M_HF = M_FL + 73728
M_CF = M_FL + 81920
M_SF = M_FL + 90112
M_S0 = WS_M + 2 * MB + 768 * 1024
M_TS = WS_M + 5 * MB
WS_SIZE = 76 * MB

CTL = 159744
L_ST = CTL
L_CS3 = CTL + 1152
L_CS1 = CTL + 2944
L_MODE = CTL + 3712
L_XFL = CTL + 3728

sWAVE = 3
sWS = 4
sX, sQ, sCI, sMT, sNT, sLAY = 70, 71, 72, 73, 74, 75
sTS = 76
sSLOW, sSPIN = 78, 79
SW = 80
pAX, pWQKV, pWO, pDBG, pW1, pW3, pW2, pOUT = 84, 86, 88, 90, 92, 94, 96, 98
sW4 = 69
sJ4 = 68
sHP = 67
sN8 = 61
sK3, sK4 = 57, 58
sXM = 59
sLB = 60
sT, sT2, sT3 = 64, 65, 66
sEXS = 62
vL, vG, vI, vT0, vT1 = 250, 251, 252, 253, 254
vL16 = 249
SPIN = 0x400000
EPS_BITS = 0x3727c5ac
ONES = 0x3f803f80
SC = " sc0 sc1"


class VM:
    def __init__(self, a): self.a = a; self.ops = []
    def op(self, tag=None): self.ops.append(tag)
    def after(self, tag):
        idx = [i for i, t in enumerate(self.ops) if t == tag]
        if not idx: return None
        return len(self.ops) - 1 - idx[-1]
    def wait(self, tags, extra=""):
        if not isinstance(tags, list): tags = [tags]
        ns = [self.after(t) for t in tags]
        ns = [n for n in ns if n is not None]
        if not ns:
            if extra: self.a.e(f"s_waitcnt {extra}")
            return
        n = min(min(ns), 63)
        self.a.e(f"s_waitcnt vmcnt({n}) {extra}".rstrip())
        self.ops = self.ops[len(self.ops) - n:] if n else []
    def drain(self): self.ops = []


def ts(a, opt, ph, k):
    if not opt.get("ts"): return
    a.e(f"s_memrealtime s[{sTS}:{sTS+1}]")
    a.e("s_waitcnt lgkmcnt(0)")
    a.e(f"s_lshl_b32 s{sTS+1}, s{sLAY}, 5")
    a.e(f"s_add_u32 s{sTS+1}, s{sTS+1}, {ph * 8 + k}")
    a.e(f"s_mov_b32 m0, s{sTS+1}")
    a.e("s_nop 0")
    a.e(f"v_writelane_b32 v255, s{sTS}, m0")


def tsc(a, opt, ph, k):
    if not opt.get("ts"): return
    a.e(f"s_memtime s[{sTS}:{sTS+1}]")
    a.e("s_waitcnt lgkmcnt(0)")
    a.e(f"s_lshl_b32 s{sTS+1}, s{sLAY}, 5")
    a.e(f"s_add_u32 s{sTS+1}, s{sTS+1}, {ph * 8 + k}")
    a.e(f"s_mov_b32 m0, s{sTS+1}")
    a.e("s_nop 0")
    a.e(f"v_writelane_b32 v255, s{sTS}, m0")


def round_bf16(a, r):
    a.e(f"v_cvt_pk_bf16_f32 v{r}, v{r}, v{r}")
    a.e(f"v_lshlrev_b32 v{r}, 16, v{r}")


def finish_stats(a, vsum, vsq):
    a.e(f"v_mul_f32 v{vsum}, 0x3a800000, v{vsum}")
    a.e(f"v_mul_f32 v{vsq}, 0x3a800000, v{vsq}")
    a.e(f"v_fma_f32 v{vsq}, -v{vsum}, v{vsum}, v{vsq}")
    a.e(f"v_max_f32 v{vsq}, 0, v{vsq}")
    round_bf16(a, vsum)
    round_bf16(a, vsq)
    a.e(f"v_add_f32 v{vsq}, 0x{EPS_BITS:08x}, v{vsq}")
    round_bf16(a, vsq)
    a.e(f"v_sqrt_f32 v{vsq}, v{vsq}")
    a.e("s_nop 0")
    round_bf16(a, vsq)
    a.e(f"v_rcp_f32 v{vsq}, v{vsq}")
    a.e("s_nop 0")


def xreduce(a, regs, tmps, op="v_add_f32"):
    for sw in ("v_permlane16_swap_b32", "v_permlane32_swap_b32"):
        for r, t in zip(regs, tmps): a.e(f"v_mov_b32 v{t}, v{r}")
        a.e("s_nop 1")
        for r, t in zip(regs, tmps): a.e(f"{sw} v{r}, v{t}")
        for r, t in zip(regs, tmps): a.e(f"{op} v{r}, v{r}, v{t}")


def set_mode(a, opt):
    if opt.get("distinct"): a.e(f"s_mov_b32 s{sXM}, 1")
    else: a.e(f"s_mov_b32 s{sXM}, s{sSLOW}")
    a.e(f"s_mul_i32 s{sLB}, s{sXM}, s{sLAY}")


def spin_guard(a):
    a.e(f"s_sub_u32 s{sSPIN}, s{sSPIN}, 1")
    a.e(f"s_cbranch_scc1 L_abort")


def flag_off(a, dst, ph):
    a.e(f"s_lshl_b32 s{dst}, s{sLAY}, 15")
    a.e(f"s_lshl_b32 s{sT3}, s{sMT}, 9")
    a.e(f"s_add_u32 s{dst}, s{dst}, s{sT3}")
    a.e(f"s_add_u32 s{dst}, s{dst}, {(M_FL + ph * 8192) & 0xffffffff}")


def store_flag(a, soff, v0, v1, pending=0):
    l = a.new("sg")
    a.e(f"v_mov_b32 v{v0}, 0")
    a.e(f"v_mov_b32 v{v1}, 1")
    a.e(f"s_cmp_lg_u32 s{sSLOW}, 0")
    a.e(f"s_cbranch_scc1 {l}_slow")
    a.e(f"s_waitcnt vmcnt({pending})")
    a.e("s_mov_b64 exec, 1")
    a.e(f"buffer_store_dword v{v1}, v{v0}, s[{SW}:{SW+3}], s{soff} offen")
    a.e("s_mov_b64 exec, -1")
    a.label(f"{l}_done")
    a.ool([f"{l}_slow:", "s_waitcnt vmcnt(0)", "buffer_wbl2 sc1", "s_waitcnt vmcnt(0)", "s_mov_b64 exec, 1",
           f"buffer_store_dword v{v1}, v{v0}, s[{SW}:{SW+3}], s{soff} offen{SC}", "s_mov_b64 exec, -1", f"s_branch {l}_done"])


def signal(a, ph, v0, v1, pending=0):
    flag_off(a, sT, ph)
    a.e(f"s_lshl_b32 s{sT2}, s{sCI}, 5")
    a.e(f"s_add_u32 s{sT}, s{sT}, s{sT2}")
    a.e(f"s_lshl_b32 s{sT2}, s{sWAVE}, 2")
    a.e(f"s_add_u32 s{sT}, s{sT}, s{sT2}")
    store_flag(a, sT, v0, v1, pending)


def poll(a, soff, voff, vd, nd, smask, acquire=True, fl=" sc1"):
    l = a.new("pl")
    a.e(f"s_mov_b64 exec, {smask}")
    a.label(l)
    op = {1: "dword", 2: "dwordx2", 4: "dwordx4"}[nd]
    a.e(f"buffer_load_{op} {v(vd, nd)}, v{voff}, s[{SW}:{SW+3}], s{soff} offen{fl}")
    spin_guard(a)
    a.e("s_waitcnt vmcnt(0)")
    if nd == 4:
        a.e(f"v_and_b32 v{vd}, v{vd}, v{vd+1}")
        a.e(f"v_and_b32 v{vd+2}, v{vd+2}, v{vd+3}")
        a.e(f"v_and_b32 v{vd}, v{vd}, v{vd+2}")
    elif nd == 2:
        a.e(f"v_and_b32 v{vd}, v{vd}, v{vd+1}")
    a.e(f"v_cmp_ne_u32 vcc, 1, v{vd}")
    a.e(f"s_cbranch_vccnz {l}")
    a.e("s_mov_b64 exec, -1")
    if acquire:
        a.e(f"s_cmp_lg_u32 s{sSLOW}, 0")
        a.e(f"s_cbranch_scc1 {l}_acq")
        a.label(f"{l}_ok")
        a.ool([f"{l}_acq:", "buffer_inv sc1", "s_waitcnt vmcnt(0)", f"s_branch {l}_ok"])


def barrier_events(NS, deep=False):
    d = 1 if deep else 0
    ev = [("Bm1", d, -1)]
    for p in range(NS // 2):
        ev.append((f"B{p}", min(2 * p + 2 + d, NS - 1), 2 * p + d))
    return ev


class Stream:
    def __init__(self, name, NS, R, issue, addr, unit=1, issued=0):
        self.name = name; self.N = NS // unit; self.R = R; self.issue = issue; self.unit = unit; self.issued = issued; self.addr = addr
    def need_unit(self, need): return min(need // self.unit, self.N - 1)
    def freed_units(self, freed): return (freed + 1) // self.unit
    def can(self, freed): return self.issued < self.N and self.issued - self.R < self.freed_units(freed)
    def go(self):
        self.issue(self.issued); self.issued += 1
    def live(self, freed): return [self.addr(u) for u in range(self.freed_units(freed), self.N)]


def run_loader(a, vm, ev, streams, pre, la, cap, hooks=None, tail=None, nxt=None, nxtcap=None, log=None, tl=False, lgk=None, pre_hooks=None):
    S = {s_.name: s_ for s_ in streams}
    for n in pre:
        assert S[n].can(-1)
        S[n].go()
    ni = 0; tail_done = False
    for idx, (name, need, freed) in enumerate(ev):
        tags = []
        for s_ in streams:
            u = s_.need_unit(need)
            assert u < s_.issued, (name, s_.name, u, s_.issued)
            tags.append((s_.name, u))
        def stamp(reg):
            if tl:
                a.e(f"s_memtime s[{sTS}:{sTS+1}]"); a.e("s_waitcnt lgkmcnt(0)"); a.e(f"v_writelane_b32 v{reg}, s{sTS}, {idx}")
        stamp(247)
        vm.wait(tags, "lgkmcnt(0)" if (lgk is None or name in lgk) else "")
        stamp(248)
        a.e("s_barrier")
        stamp(239)
        if pre_hooks and name in pre_hooks: pre_hooks[name]()
        n = 0
        if idx + 1 < len(ev):
            nneed = ev[idx + 1][1]
            raw = need + 2 if idx else nneed
            while True:
                best = None
                for s_ in streams:
                    if not s_.can(freed): continue
                    tgt = s_.need_unit(nneed + la(s_.name, idx)) + 1
                    must = s_.need_unit(nneed) >= s_.issued
                    if s_.issued < tgt and (n < cap(idx) or must):
                        key = s_.issued * s_.unit
                        if best is None or key < best[0]: best = (key, s_)
                if best is None: break
                best[1].go(); n += 1
            for s_ in streams: assert s_.need_unit(nneed) < s_.issued, (name, s_.name)
        done = all(s_.issued == s_.N for s_ in streams)
        if done and not tail_done:
            tail_done = True
            if tail: tail()
        if hooks and name in hooks: hooks[name]()
        k = 0
        if done and nxt:
            live = [r for s_ in streams for r in s_.live(freed)]
            while ni < len(nxt) and (idx + 1 == len(ev) or k < nxtcap(idx, n)):
                lo, hi, fn = nxt[ni]
                if any(lo < h and l < hi for l, h in live): break
                fn(); ni += 1; k += 1
        if log is not None: log.append((name, need, {s_.name: s_.issued for s_ in streams}, ni))
    for s_ in streams: assert s_.issued == s_.N, (s_.name, s_.issued)
    if tl:
        a.e(f"s_lshl_b32 s{sT}, s2, 3"); a.e(f"s_add_u32 s{sT}, s{sT}, s{sWAVE}"); a.e(f"s_mul_i32 s{sT}, s{sT}, 768"); a.e(f"s_add_u32 s{sT}, s{sT}, {M_TS + MB}")
        a.e(f"v_lshlrev_b32 v{vT0}, 2, v{vL}")
        for i, r in enumerate((247, 248, 239)): a.e(f"buffer_store_dword v{r}, v{vT0}, s[{SW}:{SW+3}], s{sT} offen offset:{256*i}")
    return ni
```

```python
from common import *
import res

AS = 18432; RA = 4; LW = 73984; WSL = 12416; WG = 3104; RW = 6; PW = 6144
XSCR = 18432
def wslot(st): return LW + ((st + 1) % RW) * WSL
def aslot(u): return ((u + 1) % RA) * AS
def events(): return barrier_events(32) + [("BE", 31, 31)]
PH = 0
sW = 8; sXR = 12
sWo, sWlo, sWhi, sWm = 16, 17, 18, 19
sAo, sAlo, sAhi, sAm, sHo, sHm = 20, 21, 22, 23, 24, 25
vWp = 10
vAp = 13


def k0_units(a, opt, dst):
    r = opt.get("g1rot", "x")
    if r == "ci": a.e(f"s_mov_b32 s{dst}, s{sCI}")
    elif r == "x": a.e(f"s_lshl_b32 s{dst}, s{sX}, 1")
    else: a.e(f"s_mov_b32 s{dst}, 0")


def g1_w_setup(a, opt, lay_next):
    make_srd(a, sW, pWQKV, 1024 * PW)
    a.e(f"v_lshrrev_b32 v{vT0}, 3, v{vL}")
    if lay_next == 0:
        a.e(f"v_and_b32 v{vT1}, 3, v{vT0}"); a.e(f"v_lshlrev_b32 v{vT1}, 3, v{vT1}")
        a.e(f"v_and_b32 v{vT0}, 4, v{vT0}"); a.e(f"v_add_u32 v{vT0}, v{vT0}, v{vT1}")
    else:
        a.e(f"v_lshlrev_b32 v{vT0}, 2, v{vT0}")
    a.e(f"v_add_u32 v{vT0}, s{sW4}, v{vT0}")
    a.e(f"v_mul_u32_u24 v{vT0}, {PW}, v{vT0}")
    a.e(f"v_and_b32 v{vT1}, 7, v{vL}")
    a.e(f"v_lshl_add_u32 v{vWp}, v{vT1}, 4, v{vT0}")
    a.e(f"v_add_u32 v{vWp+1}, 2048, v{vWp}")
    a.e(f"v_add_u32 v{vWp+2}, 4096, v{vWp}")
    a.e(f"s_mul_i32 s{sWm}, s{sW4}, {WG}")
    a.e(f"s_lshl_b32 s{sWlo}, s{sHP}, 7")
    a.e(f"s_add_u32 s{sWhi}, s{sWlo}, {1024 * PW}")
    k0_units(a, opt, sT)
    a.e(f"s_mul_i32 s{sT}, s{sT}, {64 * PW}")
    a.e(f"s_add_u32 s{sWo}, s{sWlo}, s{sT}")


def g1_nxt(a, vm, n):
    return [(wslot(st), wslot(st) + WSL, (lambda st=st: g1_w_issue(a, st, vm, None))) for st in range(n)]


def g1_w_issue(a, st, vm, tag):
    for i in range(3):
        a.e(f"s_add_u32 m0, s{sWm}, {wslot(st) + i * 1024}"); a.e("s_nop 0")
        a.e(f"buffer_load_dwordx4 v{vWp+i}, s[{sW}:{sW+3}], s{sWo} offen lds")
        vm.op(tag)
    a.e(f"s_add_u32 s{sWo}, s{sWo}, {32 * PW}"); a.e(f"s_cmp_eq_u32 s{sWo}, s{sWhi}"); a.e(f"s_cselect_b32 s{sWo}, s{sWlo}, s{sWo}")


def pretouch_o(a, vm):
    a.e(f"s_lshl_b32 s{sT}, s{sMT}, 4"); a.e(f"s_add_u32 s{sT}, s{sT}, s{sHP}"); a.e(f"s_lshl_b32 s{sT}, s{sT}, 2")
    a.e(f"s_add_u32 s{sT}, s{sT}, s{sW4}"); a.e(f"s_lshl_b32 s{sT}, s{sT}, 12")
    a.e(f"s_lshl_b32 s{sT2}, s{sLB}, 22"); a.e(f"s_add_u32 s{sT}, s{sT}, s{sT2}"); a.e(f"s_add_u32 s{sT}, s{sT}, {WS_O}")
    a.e(f"v_lshlrev_b32 v{vT0}, 7, v{vL}")
    a.e("s_mov_b64 exec, 0xffffffff")
    a.e(f"buffer_load_dword v9, v{vT0}, s[{SW}:{SW+3}], s{sT} offen sc1"); vm.op()
    a.e("s_mov_b64 exec, -1")


def g1_sched(opt):
    la = lambda n, idx: 3
    cap = lambda idx: 2 if idx < 1 else 4
    nxtcap = lambda idx, n: opt.get("g2pc", 8)
    return la, cap, nxtcap


def g1_load0(a, opt):
    vm = VM(a)
    g1_w_setup(a, opt, 0)
    g1_w_issue(a, 0, vm, ("W", 0))
    make_srd(a, sXR, pAX, 4 * MB)
    a.e(f"v_lshrrev_b32 v{vT0}, 3, v{vL}")
    a.e(f"v_and_b32 v{vT1}, 6, v{vT0}")
    a.e(f"v_and_b32 v{vAp}, 7, v{vL}")
    a.e(f"v_xor_b32 v{vT1}, v{vT1}, v{vAp}")
    a.e(f"v_lshlrev_b32 v{vT1}, 4, v{vT1}")
    a.e(f"v_lshl_add_u32 v{vAp}, v{vT0}, 11, v{vT1}")
    for i in range(1, 4): a.e(f"v_add_u32 v{vAp+i}, {i * 16384}, v{vAp}")
    a.e(f"s_lshl_b32 s{sAlo}, s{sMT}, 18"); a.e(f"s_lshl_b32 s{sT}, s{sW4}, 16"); a.e(f"s_add_u32 s{sAlo}, s{sAlo}, s{sT}")
    a.e(f"s_add_u32 s{sAhi}, s{sAlo}, 2048")
    k0_units(a, opt, sT); a.e(f"s_lshl_b32 s{sT}, s{sT}, 7"); a.e(f"s_add_u32 s{sAo}, s{sAlo}, s{sT}")
    a.e(f"s_mul_i32 s{sHo}, s{sW4}, {(-24 * 2048) & 0xffffffff}"); a.e(f"s_sub_u32 s{sHo}, s{sHo}, 32768")
    a.e(f"s_cmp_eq_u32 s{sMT}, 0"); a.e(f"s_cselect_b32 s{sHo}, 0x7f000000, s{sHo}")
    a.e(f"s_lshl_b32 s{sAm}, s{sW4}, 12"); a.e(f"s_add_u32 s{sAm}, s{sAm}, 2048")
    a.e(f"s_lshl_b32 s{sHm}, s{sW4}, 10")
    a.e(f"s_cmp_eq_u32 s{sW4}, 0"); a.e(f"s_cselect_b32 s26, 0xffffff00, -1"); a.e("s_mov_b32 s27, -1")
    def issW(st): g1_w_issue(a, st, vm, ("W", st))
    def issA(u):
        l = a.new("nh")
        a.e(f"s_cmp_ge_u32 s{sW4}, 2"); a.e(f"s_cbranch_scc1 {l}")
        a.e(f"s_add_u32 m0, s{sHm}, {aslot(u)}"); a.e(f"s_add_u32 s{sT}, s{sAo}, s{sHo}")
        a.e("s_mov_b64 exec, s[26:27]")
        a.e(f"buffer_load_dwordx4 v{vAp}, s[{sXR}:{sXR+3}], s{sT} offen lds")
        a.e("s_mov_b64 exec, -1")
        a.label(l)
        for i in range(4):
            a.e(f"s_add_u32 m0, s{sAm}, {aslot(u) + i * 1024}"); a.e("s_nop 0")
            a.e(f"buffer_load_dwordx4 v{vAp+i}, s[{sXR}:{sXR+3}], s{sAo} offen lds"); vm.op(("A", u))
        a.e(f"s_add_u32 s{sAo}, s{sAo}, 128"); a.e(f"s_cmp_eq_u32 s{sAo}, s{sAhi}"); a.e(f"s_cselect_b32 s{sAo}, s{sAlo}, s{sAo}")
    W = Stream("W", 32, RW, issW, lambda u: (wslot(u), wslot(u) + WSL), issued=1)
    A = Stream("A", 32, RA, issA, lambda u: (aslot(u), aslot(u) + AS), unit=2)
    sXC = 32
    make_srd(a, 28, pDBG, 256)
    a.e(f"s_getreg_b32 s{sXC}, hwreg(HW_REG_XCC_ID)")
    a.e(f"s_and_b32 s{sXC}, s{sXC}, 15"); a.e(f"s_or_b32 s{sXC}, s{sXC}, 0x80")
    a.e(f"s_lshr_b32 s33, s{sCI}, 1"); a.e(f"s_cmp_eq_u32 s{sW4}, 3"); a.e("s_cselect_b32 s33, s33, 64")
    def arrive(k):
        l = a.new("ar")
        a.e(f"s_cmp_eq_u32 s33, {k}"); a.e(f"s_cbranch_scc1 {l}"); a.label(f"{l}_b")
        a.ool([f"{l}:", f"v_mov_b32 v72, s{sXC}", "v_mov_b32 v73, 0", "s_mov_b64 exec, 1",
               f"buffer_store_byte v72, v73, s[28:31], s2 offen{SC}", "s_mov_b64 exec, -1", f"s_branch {l}_b"])
    def handshake():
        l = a.new("hs")
        a.e(f"s_cmp_lg_u32 s{sW4}, 0"); a.e(f"s_cbranch_scc1 {l}_d")
        a.e(f"v_lshlrev_b32 v{vT0}, 2, v{vL}")
        a.label(l)
        a.e(f"buffer_load_dword v72, v{vT0}, s[28:31], 0 offen sc1")
        spin_guard(a)
        a.e("s_waitcnt vmcnt(0)")
        a.e("v_and_b32 v73, 0x80808080, v72")
        a.e("v_cmp_ne_u32 vcc, 0x80808080, v73")
        a.e(f"s_cbranch_vccnz {l}")
        a.e(f"s_lshl_b32 s{sT}, s{sMT}, 11"); a.e(f"s_add_u32 s{sT}, s{sT}, {M_S0}")
        a.e(f"buffer_load_dwordx4 {v(76,4)}, v{vL16}, s[{SW}:{SW+3}], s{sT} offen{SC}")
        a.e("s_mov_b64 exec, 0xff")
        a.e(f"buffer_load_dwordx4 {v(80,4)}, v{vL16}, s[{SW}:{SW+3}], s{sT} offen offset:1024{SC}")
        a.e("s_mov_b64 exec, -1")
        a.e(f"s_and_b32 s{sT}, s{sX}, 3"); a.e(f"s_lshl_b32 s{sT}, s{sT}, 3")
        a.e(f"v_bfe_u32 v72, v72, s{sT}, 8")
        a.e(f"v_cmp_ne_u32 vcc, s{sXC}, v72")
        a.e(f"s_lshr_b32 s{sT}, s{sX}, 2")
        a.e(f"s_lshl_b32 s{sT2}, 0x55555555, s{sT}")
        a.e(f"s_or_b32 s{sT}, vcc_lo, vcc_hi"); a.e(f"s_and_b32 s{sT}, s{sT}, s{sT2}")
        a.e(f"s_cselect_b32 s{sT}, 1, 0")
        if opt.get("forceslow"): a.e(f"s_mov_b32 s{sT}, 1")
        a.e(f"v_mov_b32 v72, s{sT}"); a.e(f"v_mov_b32 v73, {L_MODE}")
        a.e("ds_write_b32 v73, v72")
        a.e(f"v_add_u32 v73, {L_ST}, v{vL16}")
        a.e("s_waitcnt vmcnt(0)")
        a.e(f"ds_write_b128 v73, {v(76,4)}")
        a.e("s_mov_b64 exec, 0xff")
        a.e(f"ds_write_b128 v73, {v(80,4)} offset:1024")
        a.e("s_mov_b64 exec, -1")
        a.label(f"{l}_d")
    def tail():
        pretouch_o(a, vm); res.res_w_setup(a, 1)
    hooks = {f"B{k+2}": (lambda k=k: arrive(k)) for k in range(8)}
    hooks["B14"] = handshake
    ts(a, opt, PH, 0)
    pre = ["A", "W", "W", "A", "W", "W"]
    la, cap, nxtcap = g1_sched(opt)
    log = []
    n = run_loader(a, vm, events(), [A, W], pre, la, cap, hooks, tail, res.res_nxt(a, 1, vm, 22), nxtcap, log, tl=opt.get("tl") == "g1a")
    if opt.get("log"): print("g1a", log)
    ts(a, opt, PH, 2)
    return n


def g1_load1(a, opt, prefetched):
    vm = VM(a)
    a.e(f"s_lshl_b32 s{sAlo}, s{sMT}, 18"); a.e(f"s_lshl_b32 s{sT}, s{sXM}, 22"); a.e(f"s_add_u32 s{sAlo}, s{sAlo}, s{sT}")
    a.e(f"s_lshl_b32 s{sT}, s{sW4}, 11"); a.e(f"s_add_u32 s{sAlo}, s{sAlo}, s{sT}")
    a.e(f"s_lshl_b32 s{sAm}, s{sW4}, 12"); a.e(f"s_add_u32 s{sAm}, s{sAm}, 2048")
    a.e(f"s_add_u32 s{sAhi}, s{sAlo}, {32 * 8192}")
    k0_units(a, opt, sT)
    a.e(f"s_lshl_b32 s{sT2}, s{sT}, 14"); a.e(f"s_add_u32 s{sAo}, s{sAlo}, s{sT2}")
    sHlo, sHk, sMP = 26, 27, 28
    a.e(f"s_sub_u32 s{sMP}, s{sMT}, 1"); a.e(f"s_and_b32 s{sMP}, s{sMP}, 15")
    a.e(f"s_lshl_b32 s{sHlo}, s{sMP}, 15"); a.e(f"s_add_u32 s{sHlo}, s{sHlo}, {M_HALO}")
    a.e(f"s_lshl_b32 s{sHk}, s{sT}, 11")
    a.e(f"s_lshl_b32 s{sT}, s{sMT}, 9"); a.e(f"s_add_u32 s{sT}, s{sT}, {M_FL + 3 * 8192}")
    a.e(f"v_lshlrev_b32 v{res.vPO}, 5, v{vL}")
    ts(a, opt, PH, 0)
    poll(a, sT, res.vPO, res.vPL, 4, "0xffff")
    ts(a, opt, PH, 3)
    a.e(f"s_lshl_b32 s{sT}, s{sMP}, 9"); a.e(f"s_add_u32 s{sT}, s{sT}, {M_HF}")
    poll(a, sT, res.vPO, res.vPL, 2, "0xffff", acquire=True)
    ts(a, opt, PH, 1)
    def issW(st): g1_w_issue(a, st, vm, ("W", st))
    def issA(st):
        base = aslot(st >> 1) + (st & 1) * 1024
        l = a.new("nh")
        a.e(f"s_cmp_lg_u32 s{sW4}, {st & 3}"); a.e(f"s_cbranch_scc1 {l}")
        a.e(f"s_add_u32 s{sT}, s{sHk}, {st * 1024}"); a.e(f"s_and_b32 s{sT}, s{sT}, 0x7fff")
        a.e(f"s_mov_b32 m0, {base}"); a.e(f"s_add_u32 s{sT}, s{sT}, s{sHlo}")
        a.e(f"buffer_load_dwordx4 v{vL16}, s[{SW}:{SW+3}], s{sT} offen{SC} lds")
        a.label(l)
        for i in range(2):
            a.e(f"s_add_u32 m0, s{sAm}, {base + i * 1024}"); a.e("s_nop 0")
            a.e(f"buffer_load_dwordx4 v{vL16}, s[{SW}:{SW+3}], s{sAo} offen offset:{i*1024} sc1 lds"); vm.op(("A", st))
        a.e(f"s_add_u32 s{sAo}, s{sAo}, 8192"); a.e(f"s_cmp_eq_u32 s{sAo}, s{sAhi}"); a.e(f"s_cselect_b32 s{sAo}, s{sAlo}, s{sAo}")
    W = Stream("W", 32, RW, issW, lambda u: (wslot(u), wslot(u) + WSL), issued=prefetched)
    A = Stream("A", 32, 2 * RA, issA, lambda u: (aslot(u >> 1), aslot(u >> 1) + AS))
    SB = 32; HB = 64; vX = 80
    def st_load():
        a.e(f"s_lshl_b32 s{sT}, s{sMP}, 12"); a.e(f"s_add_u32 s{sT}, s{sT}, {M_HST}")
        a.e(f"v_lshlrev_b32 v{vX+1}, 4, v{vI}"); a.e(f"v_lshl_add_u32 v{vX+1}, v{vG}, 10, v{vX+1}")
        l = a.new("hs")
        a.e(f"s_cmp_lg_u32 s{sW4}, 3"); a.e(f"s_cbranch_scc1 {l}")
        for i in range(4):
            a.e(f"buffer_load_dwordx4 {v(HB+4*i,4)}, v{vX+1}, s[{SW}:{SW+3}], s{sT} offen offset:{i*256}{SC}")
        a.label(l)
        a.e(f"s_lshl_b32 s{sT}, s{sMT}, 15"); a.e(f"s_lshl_b32 s{sT2}, s{sW4}, 9"); a.e(f"s_add_u32 s{sT}, s{sT}, s{sT2}")
        a.e(f"s_add_u32 s{sT}, s{sT}, {M_ST + 524288}")
        a.e(f"v_and_b32 v{vX}, 31, v{vL}"); a.e(f"v_lshlrev_b32 v{vX}, 4, v{vX}")
        a.e(f"v_lshrrev_b32 v{vT0}, 5, v{vL}"); a.e(f"v_lshl_add_u32 v{vX}, v{vT0}, 14, v{vX}")
        for i in range(8):
            a.e(f"buffer_load_dwordx4 {v(SB+4*i,4)}, v{vX}, s[{SW}:{SW+3}], s{sT} offen offset:{(i&1)*2048} sc1"); vm.op("S")
            if i & 1: a.e(f"s_add_u32 s{sT}, s{sT}, 4096")
    def st_fin():
        vm.wait("S")
        for w in (4, 2, 1):
            for i in range(w):
                for r in (0, 2): a.e(f"v_pk_add_f32 {v(SB+4*i+r,2)}, {v(SB+4*i+r,2)}, {v(SB+4*(i+w)+r,2)}")
        a.e(f"v_add_f32 v{SB}, v{SB}, v{SB+2}"); a.e(f"v_add_f32 v{SB+1}, v{SB+1}, v{SB+3}")
        a.e(f"v_mov_b32 v{SB+2}, v{SB}"); a.e(f"v_mov_b32 v{SB+3}, v{SB+1}"); a.e("s_nop 1")
        a.e(f"v_permlane32_swap_b32 v{SB}, v{SB+2}"); a.e(f"v_permlane32_swap_b32 v{SB+1}, v{SB+3}")
        a.e(f"v_add_f32 v{SB}, v{SB}, v{SB+2}"); a.e(f"v_add_f32 v{SB+1}, v{SB+1}, v{SB+3}")
        finish_stats(a, SB, SB + 1)
        a.e(f"v_and_b32 v{vX}, 31, v{vL}"); a.e(f"s_lshl_b32 s{sT}, s{sW4}, 8"); a.e(f"s_add_u32 s{sT}, s{sT}, {L_ST + 128}")
        a.e(f"v_lshlrev_b32 v{vX}, 3, v{vX}"); a.e(f"v_add_u32 v{vX}, s{sT}, v{vX}")
        a.e(f"ds_write_b64 v{vX}, {v(SB,2)}")
        l = a.new("hf")
        a.e(f"s_cmp_lg_u32 s{sW4}, 3"); a.e(f"s_cbranch_scc1 {l}")
        for w in (2, 1):
            for i in range(w):
                for r in (0, 2): a.e(f"v_pk_add_f32 {v(HB+4*i+r,2)}, {v(HB+4*i+r,2)}, {v(HB+4*(i+w)+r,2)}")
        a.e(f"v_add_f32 v{HB}, v{HB}, v{HB+2}"); a.e(f"v_add_f32 v{HB+1}, v{HB+1}, v{HB+3}")
        xreduce(a, [HB, HB + 1], [HB + 2, HB + 3])
        finish_stats(a, HB, HB + 1)
        a.e(f"v_lshlrev_b32 v{vX}, 3, v{vI}"); a.e(f"v_add_u32 v{vX}, {L_ST}, v{vX}")
        a.e(f"ds_write_b64 v{vX}, {v(HB,2)}")
        a.label(l)
    def tail():
        pretouch_o(a, vm); res.res_w_setup(a, 1)
    hooks = {"B10": st_load, "B13": st_fin}
    pre = ["A", "A"] + ["W"] * max(0, 3 - prefetched) + ["A"]
    la, cap, nxtcap = g1_sched(opt)
    cap = lambda idx: 2 if idx < 1 else 5
    log = []
    n = run_loader(a, vm, events(), [A, W], pre, la, cap, hooks, tail, res.res_nxt(a, 1, vm, 22), nxtcap, log, tl=opt.get("tl") == "g1b")
    if opt.get("log"): print("g1b", log)
    ts(a, opt, PH, 2)
    return n


def x0_stats(a, opt):
    make_srd(a, 8, pAX, 4 * MB)
    D = 16; S = 48; vOne = 56
    a.e(f"s_lshl_b32 s16, s{sCI}, 2"); a.e(f"s_add_u32 s16, s16, s{sWAVE}"); a.e("s_lshl_b32 s16, s16, 1")
    a.e(f"s_lshl_b32 s17, s{sMT}, 7"); a.e("s_add_u32 s18, s17, s16"); a.e("s_lshl_b32 s18, s18, 11")
    a.e(f"s_add_u32 s19, s17, s{sCI}"); a.e("s_sub_u32 s19, s19, 16"); a.e("s_lshl_b32 s19, s19, 11")
    a.e(f"s_cmp_eq_u32 s{sMT}, 0"); a.e("s_cselect_b32 s19, 0x7f000000, s19")
    a.e(f"s_cmp_lg_u32 s{sWAVE}, 0"); a.e("s_cselect_b32 s19, 0x7f000000, s19")
    for i in range(4): a.e(f"buffer_load_dwordx4 {v(D+4*i,4)}, v{vL16}, s[8:11], s18 offen offset:{i*1024}")
    l = a.new("xs")
    for i in range(8): a.e(f"v_mov_b32 v{D+16+i}, 0")
    a.e(f"s_cbranch_scc1 {l}")
    for i in range(2): a.e(f"buffer_load_dwordx4 {v(D+16+4*i,4)}, v{vL16}, s[8:11], s19 offen offset:{i*1024}")
    a.label(l)
    a.e(f"v_mov_b32 v{vOne}, 0x{ONES:08x}")
    a.e("s_waitcnt vmcnt(0)")
    for k in range(3):
        for i in range(8):
            a.e(f"v_dot2_f32_bf16 v{S+2*k}, v{D+8*k+i}, v{vOne}, " + ("0" if i == 0 else f"v{S+2*k}"))
            a.e(f"v_dot2_f32_bf16 v{S+2*k+1}, v{D+8*k+i}, v{D+8*k+i}, " + ("0" if i == 0 else f"v{S+2*k+1}"))
    a.e("s_nop 2")
    for pat in ("quad_perm:[1,0,3,2]", "quad_perm:[2,3,0,1]", "row_half_mirror", "row_mirror"):
        for i in range(6): a.e(f"v_add_f32_dpp v{S+i}, v{S+i}, v{S+i} {pat} row_mask:0xf bank_mask:0xf")
    xreduce(a, list(range(S, S + 6)), list(range(D, D + 6)))
    for k in (1, 2):
        a.e(f"v_cmp_eq_u32 vcc, {k}, v{vL}"); a.e("s_nop 1")
        a.e(f"v_cndmask_b32 v{S}, v{S}, v{S+2*k}, vcc"); a.e(f"v_cndmask_b32 v{S+1}, v{S+1}, v{S+2*k+1}, vcc")
    finish_stats(a, S, S + 1)
    a.e("s_add_u32 s16, s16, 16")
    a.e(f"v_add_u32 v{D}, s16, v{vL}"); a.e(f"v_mov_b32 v{D+1}, s{sCI}")
    a.e(f"v_cndmask_b32 v{D}, v{D}, v{D+1}, vcc"); a.e(f"v_lshlrev_b32 v{D}, 3, v{D}")
    a.e(f"s_lshl_b32 s17, s{sMT}, 11"); a.e(f"s_add_u32 s17, s17, {M_S0}")
    a.e(f"s_cmp_eq_u32 s{sWAVE}, 0"); a.e("s_cselect_b64 exec, 7, 3")
    a.e(f"buffer_store_dwordx2 {v(S,2)}, v{D}, s[{SW}:{SW+3}], s17 offen{SC}")
    a.e("s_mov_b64 exec, -1")


def g1_cons(a, opt):
    ACCQ = 0; ACCK = 32; ACCV = 72; AQH = 112
    XF = 116; WF = 156
    vXa = 204; vXc = 206; vW0 = 208; vWc = 209; vOA = 210
    sSl, sAs, sCnt, s_h, sRH, sO, sZ, sSC = 16, 17, 18, 19, 20, 21, 22, 23
    sM = 28; sPM = 44
    def aq(j, ab): return ACCQ + ((j - 1) * 2 + ab) * 4
    def ak(j, ab): return ACCK + (j * 2 + ab) * 4
    def av(j, ab): return ACCV + (j * 2 + ab) * 4
    def xf(b, j): return XF + b * 20 + j * 4
    def wf(b, seg, ab): return WF + b * 24 + (seg * 2 + ab) * 4
    a.e(f"s_and_b32 s{s_h}, s{sWAVE}, 1"); a.e(f"s_lshr_b32 s{sRH}, s{sWAVE}, 1")
    l = a.new("ad")
    a.e(f"s_cmp_lg_u32 s{sLAY}, 0"); a.e(f"s_cbranch_scc1 {l}_f")
    a.e(f"v_lshlrev_b32 v{vT0}, 7, v{vI}")
    a.e(f"v_and_b32 v{vT1}, 6, v{vL}"); a.e(f"v_xor_b32 v{vT1}, v{vT1}, v{vG}")
    a.e(f"v_lshl_add_u32 v{vXa}, v{vT1}, 4, v{vT0}")
    a.e(f"v_xor_b32 v{vXa+1}, 64, v{vXa}")
    a.e(f"s_branch {l}_d")
    a.label(f"{l}_f")
    a.e(f"v_mov_b32 v{vXa}, v{vL16}"); a.e(f"v_add_u32 v{vXa+1}, 1024, v{vL16}")
    a.label(f"{l}_d")
    a.e(f"v_lshrrev_b32 v{vT0}, 2, v{vI}"); a.e(f"v_mul_u32_u24 v{vT0}, {WG}, v{vT0}")
    a.e(f"v_lshl_add_u32 v{vT0}, v{vG}, 7, v{vT0}")
    a.e(f"v_and_b32 v{vT1}, 3, v{vI}"); a.e(f"v_lshl_add_u32 v{vT0}, v{vT1}, 3, v{vT0}")
    a.e(f"s_lshl_b32 s{sT}, s{s_h}, 6"); a.e(f"s_add_u32 s{sT}, s{sT}, {LW}")
    a.e(f"v_add_u32 v{vW0}, s{sT}, v{vT0}")
    a.e(f"v_mov_b32 v{vWc}, v{vW0}")
    a.e(f"s_mov_b32 s{sSl}, 0"); a.e(f"s_mov_b32 s{sAs}, {aslot(0)}")
    a.e(f"v_add_u32 v{vXc}, s{sAs}, v{vXa}"); a.e(f"v_add_u32 v{vXc+1}, s{sAs}, v{vXa+1}")
    a.e(f"s_lshl_b32 s{sO}, s{sMT}, 4"); a.e(f"s_add_u32 s{sO}, s{sO}, s{sHP}"); a.e(f"s_lshl_b32 s{sO}, s{sO}, 1")
    a.e(f"s_add_u32 s{sO}, s{sO}, s{s_h}"); a.e(f"s_lshl_b32 s{sO}, s{sO}, 1"); a.e(f"s_add_u32 s{sO}, s{sO}, s{sRH}"); a.e(f"s_lshl_b32 s{sO}, s{sO}, 12")
    a.e(f"s_lshl_b32 s{sT}, s{sLB}, 22"); a.e(f"s_add_u32 s{sO}, s{sO}, s{sT}"); a.e(f"s_add_u32 s{sO}, s{sO}, {WS_O}")
    a.e(f"v_lshlrev_b32 v{vT0}, 2, v{vG}"); a.e(f"v_sub_u32 v{vT0}, v{vI}, v{vT0}")
    for r in range(4):
        a.e(f"v_subrev_u32 v{vT1}, {r}, v{vT0}")
        a.e(f"v_and_b32 v{vOA}, 1, v{vT1}")
        a.e(f"v_cmp_eq_u32 s[26:27], 0, v{vOA}")
        a.e(f"v_cmp_le_i32 vcc, 0, v{vT1}")
        a.e(f"s_and_b64 s[{sM+2*r}:{sM+2*r+1}], s[26:27], vcc")
        a.e(f"v_cmp_ge_i32 vcc, -2, v{vT1}")
        a.e(f"s_and_b64 s[{sM+8+2*r}:{sM+8+2*r+1}], s[26:27], vcc")
    a.e(f"s_or_b32 s{sZ}, s{sMT}, s{sRH}")
    a.e(f"s_cmp_eq_u32 s{sZ}, 0")
    for r in range(4): a.e(f"s_cselect_b64 s[{sPM+2*r}:{sPM+1+2*r}], 0, s[{sM+8+2*r}:{sM+9+2*r}]")
    a.e(f"s_mov_b32 s{sSC}, 0x{fbits((32 ** -0.5) * 1.4426950408889634):08x}")
    a.e(f"s_mov_b32 s{sSC+1}, 0xf149f2ca")
    for i in range(4): a.e(f"v_mov_b32 v{212+i}, 0")
    a.e(f"s_mov_b32 s{sCnt}, 16")
    a.e("s_nop 0")
    for i in range(0, 128, 16): a.e(f"v_mfma_f32_32x32x16_bf16 {v(i,16)}, {v(212,4)}, {v(212,4)}, 0")
    a.e("s_nop 7"); a.e("s_nop 3")
    a.e(f"s_cmp_eq_u32 s{sRH}, 1"); a.e("s_cbranch_scc1 g1c_r1")
    for rh in range(2):
        if rh: a.label("g1c_r1")
        def reads(b):
            g = []
            ws = [(1, 0), (1, 1), (2, 0), (2, 1), (0, 0), (0, 1)]
            xs = [0, 1, 2, 3, 4]
            wo = WSL if b == 0 else 0
            for i in range(6):
                if i < 5:
                    j = xs[i]
                    g.append(f"ds_read_b128 {v(xf(b,j),4)}, v{vXc+b} offset:{(4*rh + j) * 2048 if j else 0}")
                seg, ab = ws[i]
                g.append(f"ds_read_b64_tr_b16 {v(wf(b,seg,ab),2)}, v{vWc} offset:{wo + seg*1024 + ab*32}")
                g.append(f"ds_read_b64_tr_b16 {v(wf(b,seg,ab)+2,2)}, v{vWc} offset:{wo + seg*1024 + ab*32 + 512}")
            return g
        def mfs(b):
            Q = [mfma(aq(j, ab), wf(b, 0, ab), xf(b, j)) for ab in range(2) for j in range(1, 5)]
            K = [mfma(ak(j, ab), wf(b, 1, ab), xf(b, j)) for ab in range(2) for j in range(1, 5)]
            V = [mfma(av(j, ab), xf(b, j), wf(b, 2, ab)) for ab in range(2) for j in range(1, 5)]
            Hh = [mfma(AQH, wf(b, 0, rh), xf(b, 0))]
            if rh == 0: Hh += [mfma(ak(0, ab), wf(b, 1, ab), xf(b, 0)) for ab in range(2)]
            else: Hh += [mfma(av(0, ab), xf(b, 0), wf(b, 2, ab)) for ab in range(2)]
            return Hh + K + V + Q
        advW = [[f"s_add_u32 s{sSl}, s{sSl}, {2*WSL}", f"s_cmp_eq_u32 s{sSl}, {RW * WSL}"], [f"s_cselect_b32 s{sSl}, 0, s{sSl}"],
                [f"v_add_u32 v{vWc}, s{sSl}, v{vW0}"]]
        advA = [[f"s_add_u32 s{sAs}, s{sAs}, {AS}", f"s_cmp_eq_u32 s{sAs}, {RA * AS}"], [f"s_cselect_b32 s{sAs}, 0, s{sAs}"],
                [f"v_add_u32 v{vXc}, s{sAs}, v{vXa}"], [f"v_add_u32 v{vXc+1}, s{sAs}, v{vXa+1}"]]
        rdend = opt.get("g1rd", 17)
        def step(b, post):
            m = mfs(b); sl = {}
            spread(reads(1 - b), 0, rdend, sl)
            spread(post, rdend + 1, 25, sl)
            sl.setdefault(26, []).append("s_waitcnt vmcnt(0) lgkmcnt(0)" if b else "s_waitcnt lgkmcnt(0)")
            a.es(place(m, sl))
        ts(a, opt, PH, 0)
        a.e("s_barrier")
        ts(a, opt, PH, 1)
        a.es(reads(0))
        for gq in advW: a.es(gq)
        a.e("s_waitcnt lgkmcnt(0)")
        tsc(a, opt, PH, 6)
        a.label(f"g1c_loop{rh}")
        a.e("s_barrier")
        step(0, advA)
        step(1, advW + [[f"s_sub_u32 s{sCnt}, s{sCnt}, 1", f"s_cmp_lg_u32 s{sCnt}, 0"]])
        a.e(f"s_cbranch_scc1 g1c_loop{rh}")
        a.e("s_barrier")
        tsc(a, opt, PH, 7)
        ts(a, opt, PH, 2)
        vE = XF; vC = XF + 1; vF = XF + 2
        a.e(f"s_mul_i32 s{sT}, s{s_h}, 6144"); a.e(f"s_add_u32 s{sT}, s{sT}, {XSCR}"); a.e(f"v_add_u32 v{vE}, s{sT}, v{vL16}")
        a.e(f"s_mul_i32 s{sT}, s{s_h}, 384"); a.e(f"s_add_u32 s{sT}, s{sT}, {L_CS1}")
        a.e(f"v_lshlrev_b32 v{vC}, 4, v{vG}"); a.e(f"v_add_u32 v{vC}, s{sT}, v{vC}")
        a.e(f"v_lshlrev_b32 v{vC+2}, 2, v{vI}"); a.e(f"v_add_u32 v{vC+2}, s{sT}, v{vC+2}")
        if rh == 0:
            for i, r in enumerate((ak(4, 0), ak(4, 1), av(4, 0), av(4, 1))): a.e(f"ds_write_b128 v{vE}, {v(r,4)} offset:{i*1024}")
            a.e("s_mov_b32 exec_lo, 0x00010001"); a.e("s_mov_b32 exec_hi, 0x00010001")
            a.e(f"ds_write_b128 v{vC}, {v(AQH,4)}")
            for ab in range(2): a.e(f"ds_write_b128 v{vC}, {v(ak(0,ab),4)} offset:{128 + 64*ab}")
        else:
            for ab in range(2): a.e(f"ds_write_b128 v{vE}, {v(av(0,ab),4)} offset:{(4+ab)*1024}")
            a.e("s_mov_b32 exec_lo, 0x00010001"); a.e("s_mov_b32 exec_hi, 0x00010001")
            a.e(f"ds_write_b128 v{vC}, {v(AQH,4)} offset:64")
            a.e("s_mov_b64 exec, 0xffff")
            for ab in range(2): a.e(f"ds_write_b32 v{vC+2}, v{av(0,ab)} offset:{256 + 64*ab}")
        a.e("s_mov_b64 exec, -1")
        a.e(f"s_lshl_b32 s{sT}, s{sWAVE}, 2"); a.e(f"s_add_u32 s{sT}, s{sT}, {L_XFL}")
        a.e(f"s_add_u32 s{sT2}, s{sLAY}, 1")
        a.e(f"v_mov_b32 v{vF}, s{sT}"); a.e(f"v_mov_b32 v{XF+4}, s{sT2}")
        a.e(f"ds_write_b32 v{vF}, v{XF+4}")
        a.e(f"v_xor_b32 v{vF}, 8, v{vF}")
        a.e(f"v_mov_b32 v{XF+5}, {L_MODE}"); a.e(f"ds_read_b32 v{XF+5}, v{XF+5}")
        sp = a.new("xs")
        a.label(sp)
        a.e(f"ds_read_b32 v{XF+6}, v{vF}")
        spin_guard(a)
        a.e("s_waitcnt lgkmcnt(0)")
        a.e(f"v_cmp_ne_u32 vcc, v{XF+4}, v{XF+6}")
        a.e(f"s_cbranch_vccnz {sp}")
        a.e(f"v_readfirstlane_b32 s{sSLOW}, v{XF+5}")
        set_mode(a, opt)
        if rh == 0:
            for ab in range(2): a.e(f"ds_read_b128 {v(av(0,ab),4)}, v{vE} offset:{(4+ab)*1024}")
        else:
            for i, r in enumerate((ak(0, 0), ak(0, 1), av(0, 0), av(0, 1))): a.e(f"ds_read_b128 {v(r,4)}, v{vE} offset:{i*1024}")
        if rh == 0: a.e("s_branch g1c_epi")
    a.label("g1c_epi")
    vC = XF + 1
    CSQ = WF; CSV = WF + 16; SQ = XF + 8
    for seg in range(2):
        for ab in range(2):
            a.e(f"ds_read_b128 {v(CSQ+(seg*2+ab)*4,4)}, v{vC} offset:{128*seg + 64*ab}")
    for ab in range(2): a.e(f"ds_read_b32 v{CSV+ab}, v{vC+2} offset:{256 + 64*ab}")
    a.e(f"s_lshl_b32 s{sT}, s{sRH}, 9"); a.e(f"s_add_u32 s{sT}, s{sT}, {L_ST}")
    a.e(f"v_lshlrev_b32 v{vT0}, 3, v{vI}"); a.e(f"v_add_u32 v{vT0}, s{sT}, v{vT0}")
    for j in range(5): a.e(f"ds_read_b64 {v(SQ+2*j,2)}, v{vT0} offset:{128*j}")
    a.e(f"v_lshlrev_b32 v{vT1}, 5, v{vG}"); a.e(f"v_add_u32 v{vT1}, s{sT}, v{vT1}")
    QP = 212; KP = XF + 20; VP = WF + 24; SV = 228; NM = 244
    def svread(j):
        b = SV + 8 * (j & 1)
        a.e(f"ds_read_b128 {v(b,4)}, v{vT1} offset:{128*j}"); a.e(f"ds_read_b128 {v(b+4,4)}, v{vT1} offset:{128*j+16}")
    svread(0); svread(1)
    a.e("s_waitcnt lgkmcnt(0)")
    ts(a, opt, PH, 3)
    for j in range(5):
        a.e(f"v_sub_f32 v{NM}, 0, v{SQ+2*j}")
        for seg in range(2):
            if seg == 0 and j == 0: continue
            for ab in range(2):
                c = aq(j, ab) if seg == 0 else ak(j, ab)
                cs = CSQ + (seg * 2 + ab) * 4
                for r in range(4): a.e(f"v_fmac_f32 v{c+r}, v{NM}, v{cs+r}")
                for r in range(4): a.e(f"v_mul_f32 v{c+r}, v{SQ+2*j+1}, v{c+r}")
                P = (QP + (j - 1) * 4 if seg == 0 else KP + j * 4) + 2 * ab
                a.e(f"v_cvt_pk_bf16_f32 v{P}, v{c}, v{c+1}")
                a.e(f"v_cvt_pk_bf16_f32 v{P+1}, v{c+2}, v{c+3}")
    for j in range(5):
        b = SV + 8 * (j & 1)
        if j >= 2: a.e(f"s_waitcnt lgkmcnt({2 if j < 4 else 0})")
        for ab in range(2):
            c = av(j, ab)
            for r in range(4): a.e(f"v_fma_f32 v{c+r}, -v{b+2*r}, v{CSV+ab}, v{c+r}")
            for r in range(4): a.e(f"v_mul_f32 v{c+r}, v{b+2*r+1}, v{c+r}")
            P = VP + ab * 10 + 2 * j
            a.e(f"v_cvt_pk_bf16_f32 v{P}, v{c}, v{c+1}")
            a.e(f"v_cvt_pk_bf16_f32 v{P+1}, v{c+2}, v{c+3}")
        if j + 2 < 5: svread(j + 2)
    S = [0, 8, 16, 24]; PP = [32, 36, 40, 44]; OO = [48, 56, 64, 72]; OP = [80, 84, 88, 92]; MX = [96, 97, 98, 99]; TM = [100, 101, 102, 103]; NEG = 104
    J = range(4)
    a.e(f"v_mov_b32 v{NEG}, s{sSC+1}")
    a.e("s_nop 1")
    for i in J:
        j = i + 1; q = QP + i * 4
        a.e(mfma(S[i], KP + 4 * j, q, "0"))
        a.e(mfma(S[i] + 4, KP + 4 * (j - 1), q, "0"))
    a.e("s_nop 1")
    for i in J:
        for r in range(8): a.e(f"v_mul_f32 v{S[i]+r}, s{sSC}, v{S[i]+r}")
    for i in J:
        pm = (lambda r: sPM + 2 * r) if i == 0 else (lambda r: sM + 8 + 2 * r)
        for r in range(4):
            a.e(f"v_cndmask_b32 v{S[i]+r}, v{NEG}, v{S[i]+r}, s[{sM+2*r}:{sM+2*r+1}]")
            a.e(f"v_cndmask_b32 v{S[i]+4+r}, v{NEG}, v{S[i]+4+r}, s[{pm(r)}:{pm(r)+1}]")
    for i in J:
        a.e(f"v_max3_f32 v{MX[i]}, v{S[i]}, v{S[i]+1}, v{S[i]+2}")
        a.e(f"v_max3_f32 v{TM[i]}, v{S[i]+3}, v{S[i]+4}, v{S[i]+5}")
        a.e(f"v_max3_f32 v{MX[i]}, v{MX[i]}, v{S[i]+6}, v{S[i]+7}")
        a.e(f"v_max_f32 v{MX[i]}, v{MX[i]}, v{TM[i]}")
    xreduce(a, MX, TM, "v_max_f32")
    for i in J:
        for r in range(8): a.e(f"v_sub_f32 v{S[i]+r}, v{S[i]+r}, v{MX[i]}")
    for i in J:
        for r in range(8): a.e(f"v_exp_f32 v{S[i]+r}, v{S[i]+r}")
    a.e("s_nop 0")
    for i in J:
        a.e(f"v_add_f32 v{MX[i]}, v{S[i]}, v{S[i]+1}")
        for r in range(2, 8): a.e(f"v_add_f32 v{MX[i]}, v{MX[i]}, v{S[i]+r}")
    xreduce(a, MX, TM, "v_add_f32")
    for i in J: a.e(f"v_rcp_f32 v{MX[i]}, v{MX[i]}")
    a.e("s_nop 0")
    for i in J:
        for r in range(8): a.e(f"v_mul_f32 v{S[i]+r}, v{S[i]+r}, v{MX[i]}")
        a.e(f"v_cvt_pk_bf16_f32 v{PP[i]}, v{S[i]+4}, v{S[i]+5}")
        a.e(f"v_cvt_pk_bf16_f32 v{PP[i]+1}, v{S[i]+6}, v{S[i]+7}")
        a.e(f"v_cvt_pk_bf16_f32 v{PP[i]+2}, v{S[i]}, v{S[i]+1}")
        a.e(f"v_cvt_pk_bf16_f32 v{PP[i]+3}, v{S[i]+2}, v{S[i]+3}")
    a.e("s_nop 1")
    for i in J:
        for ab in range(2):
            a.e(mfma(OO[i] + 4 * ab, VP + ab * 10 + 2 * i, PP[i], "0"))
    a.e("s_nop 1")
    for i in J:
        if i == 3: a.e("s_nop 0")
        for k in range(4): a.e(f"v_cvt_pk_bf16_f32 v{OP[i]+k}, v{OO[i]+2*k}, v{OO[i]+2*k+1}")
        a.e(f"buffer_store_dwordx4 {v(OP[i],4)}, v{vL16}, s[{SW}:{SW+3}], s{sO} offen offset:{i*1024}")
    ts(a, opt, PH, 4)
    signal(a, PH, 108, 109)
    ts(a, opt, PH, 5)
```

```python
from common import *
import res

AS = 8192; LW = 36736; WSL = 28800; WM = 14400; WR = 7200; PW = 7168
PH = 2
def wph(st): return (st + 1) % 4


class G3:
    def __init__(self, a, opt, cls):
        self.gen = g3(a, opt, cls, self)
    def w_setup(self): next(self.gen)
    def nxt(self, vm, n):
        def mk(st, k):
            def f():
                self.a.es(self.dmaW(st, range(7))[k]); vm.op()
            return f
        return [(LW + wph(st) * WSL, LW + (wph(st) + 1) * WSL, mk(st, k)) for st in range(n) for k in range(7)]
    def run(self, npre):
        assert npre % 7 == 0
        self.npre = npre // 7
        for _ in self.gen: pass


def g3(a, opt, cls, self):
    self.a = a
    NP = 4 - cls
    nW0 = opt.get("g3nw0", 3)
    ks_ = list(range(7 - nW0, 7)) if cls == 0 else list(range(0, 7 - nW0))
    n = len(ks_) + 1
    sW = 8
    sWo, sWlo, sWhi, sWm = 16, 17, 18, 19
    sAo, sAlo, sAhi, sAm = 20, 21, 22, 23
    sCnt, sH, sH2, sHK, sC0 = 24, 25, 26, 27, 28
    if cls == 0:
        WF = 128; WFS = 32; XF = 192; AD = 224
    else:
        WF = 96; WFS = 24; XF = 144; TMP = 176; AD = 228
    vWp = AD
    vXa = AD + 7; vWa = AD + 8
    vWb = AD + 10
    tag = f"g3c{cls}"
    def acc(mat, t, rt): return ((mat * NP + t) * 4 + rt) * 4
    def wf(b, mat, t): return WF + b * WFS + (mat * NP + t) * 4
    def xf(b, rt): return XF + b * 16 + rt * 4
    def wreg(k): return vWp + (k if cls else k - (7 - nW0))
    a.e(f"s_and_b32 s{sT}, s{sWAVE}, 1")
    a.e(f"s_cmp_eq_u32 s{sT}, 0")
    a.e(f"s_cselect_b32 s{sW}, s{pW1}, s{pW3}")
    a.e(f"s_cselect_b32 s{sW+1}, s{pW1+1}, s{pW3+1}")
    a.e(f"s_mov_b32 s{sW+2}, {1024 * PW}")
    a.e(f"s_mov_b32 s{sW+3}, 0x00020000")
    a.e(f"s_mul_i32 s{sWm}, s{sT}, {WM}")
    a.e(f"s_lshr_b32 s{sT}, s{sW4}, 1")
    a.e(f"s_mul_i32 s{sT2}, s{sT}, {WR}")
    a.e(f"s_add_u32 s{sWm}, s{sWm}, s{sT2}")
    a.e(f"s_add_u32 s{sWm}, s{sWm}, {LW}")
    a.e(f"s_mul_i32 s{sWlo}, s{sT}, {4 * PW}")
    a.e(f"s_mul_i32 s{sT2}, s{sNT}, 448")
    a.e(f"s_add_u32 s{sWlo}, s{sWlo}, s{sT2}")
    a.e(f"s_add_u32 s{sWhi}, s{sWlo}, {1024 * PW}")
    first = 0 if cls else 4
    a.e(f"s_lshl_b32 s{sT}, s{sK3}, 1")
    if first: a.e(f"s_add_u32 s{sT}, s{sT}, {first}"); a.e(f"s_and_b32 s{sT}, s{sT}, 31")
    a.e(f"s_mul_i32 s{sT2}, s{sT}, {32 * PW}")
    a.e(f"s_add_u32 s{sWo}, s{sWlo}, s{sT2}")
    a.e(f"s_lshl_b32 s{sAo}, s{sT}, 13")
    a.e(f"s_mov_b32 s{sT3}, 2341")
    for k in (range(7) if cls else ks_):
        a.e(f"v_add_u32 v{vT0}, {64 * k}, v{vL}")
        a.e(f"v_mul_lo_u32 v{vT1}, v{vT0}, s{sT3}")
        a.e(f"v_lshrrev_b32 v{vT1}, 16, v{vT1}")
        a.e(f"v_mul_u32_u24 v{wreg(k)}, 28, v{vT1}")
        a.e(f"v_sub_u32 v{vT0}, v{vT0}, v{wreg(k)}")
        a.e(f"v_and_b32 v{wreg(k)}, 12, v{vT1}")
        a.e(f"v_add_u32 v{vT1}, v{vT1}, v{wreg(k)}")
        a.e(f"v_mul_u32_u24 v{vT1}, {PW}, v{vT1}")
        a.e(f"v_lshl_add_u32 v{wreg(k)}, v{vT0}, 4, v{vT1}")
    def dmaW(st, ks):
        g = []
        for k in ks:
            g.append([f"s_add_u32 m0, s{sWm}, {wph(st) * WSL + 1024 * k}", "s_nop 0",
                      f"buffer_load_dwordx4 v{wreg(k)}, s[{sW}:{sW+3}], s{sWo} offen lds"])
        adv = [f"s_add_u32 s{sWo}, s{sWo}, {32 * PW}", f"s_cmp_eq_u32 s{sWo}, s{sWhi}", f"s_cselect_b32 s{sWo}, s{sWlo}, s{sWo}"]
        if g: g[-1] = g[-1] + adv
        return g
    advA = [f"s_add_u32 s{sAo}, s{sAo}, 8192", f"s_cmp_eq_u32 s{sAo}, s{sAhi}", f"s_cselect_b32 s{sAo}, s{sAlo}, s{sAo}"]
    def dmaA(st):
        return [[f"s_add_u32 m0, s{sAm}, {(st % 4) * AS}", "s_nop 0",
                 f"buffer_load_dwordx4 v{vL16}, s[{SW}:{SW+3}], s{sAo} offen sc1 lds"] + advA]
    self.dmaW = dmaW
    yield
    vm = VM(a)
    nPre = self.npre
    a.e(f"s_lshl_b32 s{sAlo}, s{sLB}, 23")
    a.e(f"s_lshl_b32 s{sT}, s{sMT}, 18")
    a.e(f"s_add_u32 s{sAlo}, s{sAlo}, s{sT}")
    if WS_X: a.e(f"s_add_u32 s{sAlo}, s{sAlo}, {WS_X}")
    a.e(f"s_lshl_b32 s{sAm}, s{sWAVE}, 10")
    a.e(f"s_add_u32 s{sAlo}, s{sAlo}, s{sAm}")
    a.e(f"s_add_u32 s{sAhi}, s{sAlo}, {32 * 8192}")
    a.e(f"s_add_u32 s{sAo}, s{sAo}, s{sAlo}")
    a.e(f"s_and_b32 s{sT}, s{sWAVE}, 1"); a.e(f"s_lshl_b32 s{sT}, s{sT}, 12")
    a.e(f"v_add_u32 v{vXa}, s{sT}, v{vL16}")
    a.e(f"v_lshrrev_b32 v{vT0}, 1, v{vG}")
    a.e(f"v_lshrrev_b32 v{vT1}, 2, v{vI}")
    a.e(f"v_lshl_add_u32 v{vT0}, v{vT0}, 2, v{vT1}")
    a.e(f"v_mul_u32_u24 v{vT0}, 448, v{vT0}")
    a.e(f"v_and_b32 v{vT1}, 1, v{vG}")
    a.e(f"v_mul_u32_u24 v{vT1}, {WR}, v{vT1}")
    a.e(f"v_add_u32 v{vT0}, v{vT0}, v{vT1}")
    a.e(f"v_and_b32 v{vT1}, 3, v{vI}")
    a.e(f"v_lshl_add_u32 v{vT0}, v{vT1}, 3, v{vT0}")
    a.e(f"v_add_u32 v{vT0}, {LW}, v{vT0}")
    a.e(f"s_lshr_b32 s{sT}, s{sW4}, 1")
    a.e(f"s_lshl_b32 s{sC0}, s{sT}, 2")
    if cls: a.e(f"s_add_u32 s{sC0}, s{sC0}, 8")
    a.e(f"s_lshl_b32 s{sT2}, s{sC0}, 5")
    a.e(f"v_add_u32 v{vWa}, s{sT2}, v{vT0}")
    a.e(f"v_add_u32 v{vWa+1}, {2 * WSL}, v{vWa}")
    if cls:
        a.e(f"s_add_u32 s{sT2}, s{sT}, 10"); a.e(f"s_lshl_b32 s{sT2}, s{sT2}, 5")
        a.e(f"v_add_u32 v{vWb}, s{sT2}, v{vT0}")
        a.e(f"v_add_u32 v{vWb+1}, {2 * WSL}, v{vWb}")
        vCa = TMP + 48
        a.e(f"s_mul_i32 s{sT2}, s{sT}, 224")
        a.e(f"s_and_b32 s{sT}, s{sWAVE}, 1"); a.e(f"s_mul_i32 s{sT}, s{sT}, {WM}"); a.e(f"s_add_u32 s{sT2}, s{sT2}, s{sT}")
        a.e(f"v_add_u32 v{vCa}, s{sT2}, v{vT0}")
        for i in range(4): a.e(f"v_mov_b32 v{TMP+44+i}, 0x{ONES:08x}")
    a.e(f"s_mul_i32 s{sH}, s{sMT}, 112"); a.e(f"s_mul_i32 s{sT}, s{sNT}, 7"); a.e(f"s_add_u32 s{sH}, s{sH}, s{sT}")
    a.e(f"s_lshl_b32 s{sH}, s{sH}, 13")
    a.e(f"s_lshl_b32 s{sT}, s{sLB}, 24"); a.e(f"s_add_u32 s{sH}, s{sH}, s{sT}"); a.e(f"s_add_u32 s{sH}, s{sH}, {WS_H}")

    def reads(st):
        b = st & 1; sl = st % 4; g = []
        for rt in range(4):
            g.append(f"ds_read_b128 {v(xf(b,rt),4)}, v{vXa} offset:{sl * AS + rt * 1024}")
        for t in range(NP):
            for mat in range(2):
                third = cls and t == 2
                reg = (vWb if third else vWa) + (wph(st) >> 1)
                off = (wph(st) & 1) * WSL + mat * WM + (0 if third else 32 * t)
                g.append(f"ds_read_b64_tr_b16 {v(wf(b,mat,t),2)}, v{reg} offset:{off}")
                g.append(f"ds_read_b64_tr_b16 {v(wf(b,mat,t)+2,2)}, v{reg} offset:{off + 3584}")
        return g
    def mfmas(st, zero=False):
        b = st & 1
        return [mfma(acc(mat, t, rt), wf(b, mat, t), xf(b, rt), "0" if zero else None)
                for t in range(NP) for mat in range(2) for rt in range(4)]
    def merge(A, B):
        if not B: return list(A)
        out = []; j = 0
        for i, g in enumerate(A):
            out.append(g)
            want = ((i + 1) * len(B)) // len(A)
            while j < want: out.append(B[j]); j += 1
        return out + B[j:]
    def step(st, dma=True, rd=True, zero=False, extra=None, track=False):
        m = mfmas(st, zero); sl = {}
        r = [[x] for x in reads(st + 1)] if rd else []
        d = (dmaW(st + 4, ks_) + dmaA(st + 4)) if dma else []
        if track:
            for _ in d: vm.op(("D", st + 4))
        spread(merge(r, d) if r else d, 0, int(len(m) * opt.get("g3rd", 0.8)), sl)
        for frac, grp in (extra or []): sl.setdefault(int(frac * (len(m) - 1)), []).extend(grp)
        a.es(place(m, sl))

    def colsum_hook(tgt):
        l = a.new("cs")
        a.e(f"s_cmp_eq_u32 s{sHK}, {tgt >> 1}")
        a.e(f"s_cbranch_scc1 {l}")
        a.label(f"{l}_b")
        CA = TMP; CFR = TMP + 28; ON = TMP + 44; vCa = TMP + 48; vX = TMP + 49
        o = [f"{l}:", f"v_add_u32 v{vX}, {wph(tgt) * WSL}, v{vCa}"]
        for t0, t1 in ((0, 4), (4, 7)):
            for t in range(t0, t1):
                o.append(f"ds_read_b64_tr_b16 {v(CFR+4*(t-t0),2)}, v{vX} offset:{32*t}")
                o.append(f"ds_read_b64_tr_b16 {v(CFR+4*(t-t0)+2,2)}, v{vX} offset:{32*t + 3584}")
            o.append("s_waitcnt lgkmcnt(0)")
            for t in range(t0, t1):
                o.append(mfma(CA + 4 * t, CFR + 4 * (t - t0), ON, "0" if tgt % 2 == 0 else None))
            o.append("s_nop 7")
        if tgt % 2 == 1:
            o += [f"s_lshl_b32 s{sT}, s{sMT}, 1", f"s_and_b32 s{sT2}, s{sWAVE}, 1", f"s_add_u32 s{sT}, s{sT}, s{sT2}",
                  f"s_mul_i32 s{sT}, s{sT}, {3584 * 4}", f"s_mul_i32 s{sT2}, s{sNT}, 896", f"s_add_u32 s{sT}, s{sT}, s{sT2}",
                  f"s_lshr_b32 s{sT2}, s{sW4}, 1", f"s_mul_i32 s{sT2}, s{sT2}, 448", f"s_add_u32 s{sT}, s{sT}, s{sT2}",
                  f"s_add_u32 s{sT}, s{sT}, {M_CS}", f"v_lshlrev_b32 v{vX}, 4, v{vG}",
                  "s_mov_b32 exec_lo, 0x00010001", "s_mov_b32 exec_hi, 0x00010001"]
            for t in range(7):
                o.append(f"buffer_store_dwordx4 {v(CA+4*t,4)}, v{vX}, s[{SW}:{SW+3}], s{sT} offen offset:{64*t}{SC}")
            o += ["s_mov_b64 exec, -1", "s_nop 3"]
        o.append(f"s_branch {l}_b")
        a.ool(o)

    ts(a, opt, PH, 0)
    if cls == 0:
        for i in range(4): a.e(f"v_mov_b32 v{XF+i}, 0")
        a.e("s_nop 1")
        for i in range(0, 128, 16):
            a.e(f"v_mfma_f32_32x32x16_bf16 {v(i,16)}, {v(XF,4)}, {v(XF,4)}, 0")
        a.e("s_barrier")
        ts(a, opt, PH, 1)
        a.es(reads(0))
        tsc(a, opt, PH, 6)
        a.e(f"s_mov_b32 s{sCnt}, 7")
        a.label(f"{tag}_loop")
        for st in range(4):
            a.e(f"s_waitcnt vmcnt({2 * n}) lgkmcnt(0)"); a.e("s_barrier")
            if opt.get("tl") == "g3":
                a.e(f"s_memtime s[{sTS}:{sTS+1}]"); a.e("s_waitcnt lgkmcnt(0)")
                a.e(f"s_lshl_b32 s{sTS+1}, s{sCnt}, 2"); a.e(f"s_sub_u32 s{sTS+1}, {28 + st}, s{sTS+1}")
                a.e(f"s_lshl_b32 s{sT}, s{sLAY}, 5"); a.e(f"s_add_u32 m0, s{sT}, s{sTS+1}"); a.e("s_nop 0")
                a.e(f"v_writelane_b32 v247, s{sTS}, m0")
            step(st)
        a.e(f"s_sub_u32 s{sCnt}, s{sCnt}, 1"); a.e(f"s_cmp_lg_u32 s{sCnt}, 0"); a.e(f"s_cbranch_scc1 {tag}_loop")
        if opt.get("tl") == "g3":
            a.e(f"s_lshl_b32 s{sT}, s2, 3"); a.e(f"s_add_u32 s{sT}, s{sT}, s{sWAVE}"); a.e(f"s_mul_i32 s{sT}, s{sT}, 768"); a.e(f"s_add_u32 s{sT}, s{sT}, {M_TS + MB}")
            a.e(f"v_lshlrev_b32 v{vT0}, 2, v{vL}")
            a.e(f"buffer_store_dword v247, v{vT0}, s[{SW}:{SW+3}], s{sT} offen")
    else:
        a.e(f"s_cmp_eq_u32 s{sLAY}, 0"); a.e(f"s_cselect_b32 s{sHK}, s{sQ}, 7")
        flag_off(a, sT, PH - 1)
        a.e(f"v_lshlrev_b32 v{res.vPO}, 5, v{vL}")
        poll(a, sT, res.vPO, res.vPL, 4, "0xffff")
        ts(a, opt, PH, 1)
        for st in range(4):
            a.e(f"s_add_u32 m0, s{sAm}, {st * AS}"); a.e(f"s_sub_u32 s{sT}, s{sAo}, 4096")
            a.e(f"buffer_load_dwordx4 v{vL16}, s[{SW}:{SW+3}], s{sAo} offen sc1 lds"); vm.op(("D", st))
            a.e(f"s_sub_u32 m0, m0, 4096"); a.e("s_nop 0")
            a.e(f"buffer_load_dwordx4 v{vL16}, s[{SW}:{SW+3}], s{sT} offen sc1 lds"); vm.op(("D", st))
            a.es(advA)
            if st == 1:
                vm.wait(("D", 0)); a.e("s_barrier")
                a.es(reads(0))
            if st >= nPre:
                for g in dmaW(st, range(7)): a.es(g); vm.op(("D", st))
        colsum_hook(0)
        tsc(a, opt, PH, 6)
        for st in range(4):
            vm.wait(("D", st + 1), "lgkmcnt(0)"); a.e("s_barrier")
            if st < 3: colsum_hook(st + 1)
            step(st, zero=(st == 0), track=True)
        a.e(f"s_mov_b32 s{sCnt}, 6")
        a.e(f"s_cmp_eq_u32 s{sLAY}, 0"); a.e(f"s_cselect_b32 s{sHK}, 6, 0"); a.e(f"s_or_b32 s{sHK}, s{sHK}, 0x60")
        a.label(f"{tag}_loop")
        for st in range(4):
            a.e(f"s_waitcnt vmcnt({2 * n}) lgkmcnt(0)"); a.e("s_barrier")
            if st == 0:
                a.e(f"s_bitcmp1_b32 s{sHK}, s{sCnt}"); a.e(f"s_cbranch_scc1 {tag}_hook"); a.label(f"{tag}_hb")
            step(st)
        a.e(f"s_sub_u32 s{sCnt}, s{sCnt}, 1"); a.e(f"s_cmp_lg_u32 s{sCnt}, 0"); a.e(f"s_cbranch_scc1 {tag}_loop")
        h = Asm(); h.uid = a.uid + 1000
        vX = TMP + 49
        h.label(f"{tag}_hook")
        h.e(f"s_cmp_eq_u32 s{sCnt}, 5"); h.e(f"s_cbranch_scc1 {tag}_h5")
        h.e(f"s_cmp_eq_u32 s{sCnt}, 2"); h.e(f"s_cbranch_scc1 {tag}_h2")
        h.e(f"s_cmp_eq_u32 s{sCnt}, 1"); h.e(f"s_cbranch_scc1 {tag}_h1")
        h.e(f"s_lshl_b32 s{sT}, s{sMT}, 15"); h.e(f"s_lshl_b32 s{sT2}, s{sLAY}, 20"); h.e(f"s_add_u32 s{sT}, s{sT}, s{sT2}")
        h.e(f"s_lshl_b32 s{sT2}, s{sW4}, 9"); h.e(f"s_add_u32 s{sT}, s{sT}, s{sT2}"); h.e(f"s_add_u32 s{sT}, s{sT}, {M_ST}")
        h.e(f"v_and_b32 v{vX}, 31, v{vL}"); h.e(f"v_lshlrev_b32 v{vX}, 4, v{vX}")
        h.e(f"v_lshrrev_b32 v{vT0}, 5, v{vL}"); h.e(f"v_lshl_add_u32 v{vX}, v{vT0}, 14, v{vX}")
        for i in range(8):
            h.e(f"buffer_load_dwordx4 {v(TMP+4*i,4)}, v{vX}, s[{SW}:{SW+3}], s{sT} offen offset:{(i&1)*2048} sc1")
            if i & 1: h.e(f"s_add_u32 s{sT}, s{sT}, 4096")
        h.e(f"s_branch {tag}_hb")
        def tree(h):
            for w in (4, 2, 1):
                for i in range(w):
                    for r in (0, 2): h.e(f"v_pk_add_f32 {v(TMP+4*i+r,2)}, {v(TMP+4*i+r,2)}, {v(TMP+4*(i+w)+r,2)}")
        h.label(f"{tag}_h5")
        h.e(f"s_cmp_lg_u32 s{sLAY}, 0"); h.e(f"s_cbranch_scc1 {tag}_h5b")
        h.e(f"s_lshl_b32 s{sT}, s{sNT}, 4"); h.e(f"s_add_u32 s{sT}, s{sT}, s{sMT}"); h.e(f"s_lshl_b32 s{sT}, s{sT}, 3")
        h.e(f"s_add_u32 s{sT}, s{sT}, s{sW4}"); h.e(f"s_lshl_b32 s{sT}, s{sT}, 2"); h.e(f"s_add_u32 s{sT}, s{sT}, {M_CF}")
        h.e(f"v_mov_b32 v{TMP+40}, 0"); h.e(f"v_mov_b32 v{TMP+41}, 1")
        h.e("s_mov_b64 exec, 1")
        h.e(f"buffer_store_dword v{TMP+41}, v{TMP+40}, s[{SW}:{SW+3}], s{sT} offen{SC}")
        h.e("s_mov_b64 exec, -1")
        h.label(f"{tag}_h5b")
        tree(h)
        h.e(f"v_add_f32 v{TMP}, v{TMP}, v{TMP+2}"); h.e(f"v_add_f32 v{TMP+1}, v{TMP+1}, v{TMP+3}")
        h.e(f"v_mov_b32 v{TMP+2}, v{TMP}"); h.e(f"v_mov_b32 v{TMP+3}, v{TMP+1}"); h.e("s_nop 1")
        h.e(f"v_permlane32_swap_b32 v{TMP}, v{TMP+2}"); h.e(f"v_permlane32_swap_b32 v{TMP+1}, v{TMP+3}")
        h.e(f"v_add_f32 v{TMP}, v{TMP}, v{TMP+2}"); h.e(f"v_add_f32 v{TMP+1}, v{TMP+1}, v{TMP+3}")
        finish_stats(h, TMP, TMP + 1)
        h.e(f"v_and_b32 v{vX}, 31, v{vL}"); h.e(f"s_lshl_b32 s{sT}, s{sW4}, 8"); h.e(f"s_add_u32 s{sT}, s{sT}, {L_ST}")
        h.e(f"v_lshlrev_b32 v{vX}, 3, v{vX}"); h.e(f"v_add_u32 v{vX}, s{sT}, v{vX}")
        h.e(f"ds_write_b64 v{vX}, {v(TMP,2)}")
        h.e(f"s_branch {tag}_hb")
        h.label(f"{tag}_h2")
        h.e(f"s_lshl_b32 s{sT}, s{sNT}, 9"); h.e(f"s_add_u32 s{sT}, s{sT}, {M_CF}")
        h.e(f"v_lshlrev_b32 v{vX}, 5, v{vL}")
        poll(h, sT, vX, TMP + 40, 4, "0xffff", acquire=False)
        h.e(f"s_and_b32 s{sT}, s{sWAVE}, 1"); h.e(f"s_mul_i32 s{sT}, s{sT}, {3584 * 4}")
        h.e(f"s_mul_i32 s{sT2}, s{sNT}, 896"); h.e(f"s_add_u32 s{sT}, s{sT}, s{sT2}")
        h.e(f"s_lshr_b32 s{sT2}, s{sW4}, 1"); h.e(f"s_mul_i32 s{sT2}, s{sT2}, 448"); h.e(f"s_add_u32 s{sT}, s{sT}, s{sT2}")
        h.e(f"s_add_u32 s{sT}, s{sT}, {M_CS}")
        h.e(f"v_and_b32 v{vX}, 31, v{vL}"); h.e(f"v_lshlrev_b32 v{vX}, 4, v{vX}")
        h.e(f"v_lshrrev_b32 v{vT0}, 5, v{vL}"); h.e(f"v_mul_u32_u24 v{vT0}, {8 * 28672}, v{vT0}"); h.e(f"v_add_u32 v{vX}, v{vT0}, v{vX}")
        h.e("s_mov_b32 exec_lo, 0x0fffffff"); h.e("s_mov_b32 exec_hi, 0x0fffffff")
        for i in range(8):
            h.e(f"buffer_load_dwordx4 {v(TMP+4*i,4)}, v{vX}, s[{SW}:{SW+3}], s{sT} offen{SC}")
            h.e(f"s_add_u32 s{sT}, s{sT}, 28672")
        h.e("s_mov_b64 exec, -1")
        h.e(f"s_branch {tag}_hb")
        h.label(f"{tag}_h1")
        tree(h)
        for i in range(4): h.e(f"v_mov_b32 v{TMP+4+i}, v{TMP+i}")
        h.e("s_nop 1")
        for i in range(4): h.e(f"v_permlane32_swap_b32 v{TMP+i}, v{TMP+4+i}")
        for i in range(4): h.e(f"v_add_f32 v{TMP+i}, v{TMP+i}, v{TMP+4+i}")
        h.e(f"s_and_b32 s{sT}, s{sWAVE}, 1"); h.e(f"s_mul_i32 s{sT}, s{sT}, 896")
        h.e(f"s_lshr_b32 s{sT2}, s{sW4}, 1"); h.e(f"s_mul_i32 s{sT2}, s{sT2}, 448"); h.e(f"s_add_u32 s{sT}, s{sT}, s{sT2}")
        h.e(f"s_add_u32 s{sT}, s{sT}, {L_CS3}")
        h.e(f"v_add_u32 v{vX}, s{sT}, v{vL16}")
        h.e("s_mov_b64 exec, 0x0fffffff")
        h.e(f"ds_write_b128 v{vX}, {v(TMP,4)}")
        h.e("s_mov_b64 exec, -1")
        h.e(f"s_branch {tag}_hb")
        h.flush_tail()
        a.uid = h.uid
        a.ool([x.strip() for x in h.L])
    vX = vWp
    def touch(k):
        o = [f"v_lshlrev_b32 v{vX}, 7, v{vL}", f"s_add_u32 s{sT}, s{sWAVE}, {8*k}", f"s_lshl_b32 s{sT2}, s{sT}, 12", f"s_add_u32 s{sT2}, s{sT2}, s{sH}",
             f"s_cmp_lt_u32 s{sT}, s{sHK}", f"s_cselect_b32 s{sT2}, s{sT2}, 0x7f000000", "s_mov_b64 exec, 0xffffffff",
             f"buffer_load_dword v{vX+1+k}, v{vX}, s[{SW}:{SW+3}], s{sT2} offen sc1", "s_mov_b64 exec, -1"]
        return o
    a.e(f"s_sub_u32 s{sHK}, s{sNT}, s{sK4}"); a.e(f"s_and_b32 s{sHK}, s{sHK}, 7")
    a.e(f"s_cmp_lt_u32 s{sHK}, {opt.get('htouch', 4)}"); a.e(f"s_cselect_b32 s{sHK}, 14, 0")
    pf = []
    if cls:
        for st in range(res.CFG[3]['RW']): pf += res.res_w_issue(3, st)
    n30 = opt.get("g3pf30", 4); n31 = opt.get("g3pf31", 6)
    if opt.get("noptH"): ex = [[], [], []]
    elif cls == 0: ex = [[(0.05, touch(0))], [(0.7, touch(1))], []]
    else: ex = [[(0.95, touch(0))], [], [(0.3, touch(1))]]
    a.e(f"s_waitcnt vmcnt({2 * n}) lgkmcnt(0)"); a.e("s_barrier")
    step(28, dma=False, extra=ex[0])
    a.e(f"s_waitcnt vmcnt({n + len(ex[0])}) lgkmcnt(0)"); a.e("s_barrier")
    step(29, dma=False, extra=ex[1])
    if cls: res.res_w_setup(a, 3)
    a.e(f"s_waitcnt vmcnt({len(ex[0]) + len(ex[1])}) lgkmcnt(0)"); a.e("s_barrier")
    step(30, dma=False, extra=ex[2] + [(0.45 + 0.5 * i / max(n30, 1), pf[i]) for i in range(n30 if cls else 0)])
    pf = pf[n30:]
    a.e("s_waitcnt lgkmcnt(0)")
    CS = WF; MR = XF
    a.e(f"s_and_b32 s{sT}, s{sWAVE}, 1"); a.e(f"s_lshl_b32 s{sT}, s{sT}, 9"); a.e(f"s_add_u32 s{sT}, s{sT}, {L_ST}")
    a.e(f"v_lshlrev_b32 v{vT0}, 3, v{vI}"); a.e(f"v_add_u32 v{vT0}, s{sT}, v{vT0}")
    a.e(f"s_lshl_b32 s{sT}, s{sC0}, 6"); a.e(f"s_add_u32 s{sT}, s{sT}, {L_CS3}")
    a.e(f"v_lshlrev_b32 v{vT1}, 4, v{vG}"); a.e(f"v_add_u32 v{vXa}, s{sT}, v{vT1}")
    if cls:
        a.e(f"s_lshr_b32 s{sT}, s{sW4}, 1"); a.e(f"s_add_u32 s{sT}, s{sT}, 10"); a.e(f"s_lshl_b32 s{sT}, s{sT}, 6"); a.e(f"s_add_u32 s{sT}, s{sT}, {L_CS3}")
        a.e(f"v_add_u32 v{vWb}, s{sT}, v{vT1}")
    er = [f"ds_read_b64 {v(MR+2*rt,2)}, v{vT0} offset:{128*rt}" for rt in range(4)]
    for mat in range(2):
        for t in range(NP):
            third = cls and t == 2
            er.append(f"ds_read_b128 {v(CS+(mat*NP+t)*4,4)}, v{vWb if third else vXa} offset:{mat*896 + (0 if third else 64*t)}")
    m = mfmas(31); sl = {}
    spread([[x] for x in er], 0, len(m) // 2, sl)
    spread(pf[:n31], 0, len(m) - 2, sl)
    a.es(place(m, sl))
    pf = pf[n31:]
    tsc(a, opt, PH, 7)
    ts(a, opt, PH, 2)
    a.e(f"s_and_b32 s{sT}, s{sWAVE}, 1"); a.e(f"s_lshl_b32 s{sT}, s{sT}, 12"); a.e(f"s_add_u32 s{sH}, s{sH}, s{sT}")
    a.e(f"s_lshr_b32 s{sT}, s{sW4}, 1")
    if cls == 0:
        a.e(f"s_lshl_b32 s{sT}, s{sT}, 14"); a.e(f"s_add_u32 s{sH}, s{sH}, s{sT}"); a.e(f"s_add_u32 s{sH2}, s{sH}, 8192")
    else:
        a.e(f"s_lshl_b32 s{sT2}, s{sT}, 3"); a.e(f"s_add_u32 s{sH2}, s{sH}, s{sT2}"); a.e(f"s_add_u32 s{sH2}, s{sH2}, {5 * 8192}")
        a.e(f"s_lshl_b32 s{sT}, s{sT}, 14"); a.e(f"s_add_u32 s{sH}, s{sH}, s{sT}"); a.e(f"s_add_u32 s{sH}, s{sH}, {4 * 8192}")
    a.e("s_waitcnt lgkmcnt(0)")
    B1 = WF + WFS
    NM, RL, I2 = B1, B1 + 8, B1 + 16
    a.e(f"s_mov_b32 s{sT}, 0xbfb8aa3b")
    for rt in range(4):
        a.e(f"v_mul_f32 v{I2+2*rt}, v{MR+2*rt+1}, v{MR+2*rt+1}")
        for d in range(2):
            a.e(f"v_sub_f32 v{NM+2*rt+d}, 0, v{MR+2*rt}")
            a.e(f"v_mul_f32 v{RL+2*rt+d}, s{sT}, v{MR+2*rt+1}")
    for rt in range(4):
        a.e(f"v_rcp_f32 v{I2+2*rt+1}, v{I2+2*rt}")
        a.e(f"v_rcp_f32 v{I2+2*rt}, v{I2+2*rt}")
    E = XF + 20; OUTS = [XF + 24, XF + 28]
    ep = []
    def pk(op, d, srcs):
        ep.append(f"{op} {v(d,2)}, " + ", ".join(v(r, 2) for kind, r in srcs))
    oi = 0
    for rt in range(4):
        t = 0
        while t < NP:
            pair = (t + 1 < NP)
            O = OUTS[oi]; oi ^= 1
            for tt in range(2 if pair else 1):
                cg = acc(0, t + tt, rt); cu = acc(1, t + tt, rt)
                sg = CS + (0 * NP + t + tt) * 4; su = CS + (1 * NP + t + tt) * 4
                for r in (0, 2): pk("v_pk_fma_f32", cg + r, [('b', NM + 2*rt), ('p', sg + r), ('p', cg + r)])
                for r in (0, 2): pk("v_pk_mul_f32", E + r, [('b', RL + 2*rt), ('p', cg + r)])
                for r in range(4): ep.append(f"v_exp_f32 v{E+r}, v{E+r}")
                for r in (0, 2): pk("v_pk_fma_f32", cu + r, [('b', NM + 2*rt), ('p', su + r), ('p', cu + r)])
                for r in (0, 2): pk("v_pk_fma_f32", E + r, [('p', E + r), ('b', I2 + 2*rt), ('b', I2 + 2*rt)])
                for r in range(4): ep.append(f"v_rcp_f32 v{E+r}, v{E+r}")
                for r in (0, 2): pk("v_pk_mul_f32", cg + r, [('p', cg + r), ('p', cu + r)])
                for r in (0, 2): pk("v_pk_mul_f32", cg + r, [('p', cg + r), ('p', E + r)])
                ep.append(f"v_cvt_pk_bf16_f32 v{O+2*tt}, v{cg}, v{cg+1}")
                ep.append(f"v_cvt_pk_bf16_f32 v{O+2*tt+1}, v{cg+2}, v{cg+3}")
            so = sH if t == 0 else sH2
            if pair: ep.append(f"buffer_store_dwordx4 {v(O,4)}, v{vL16}, s[{SW}:{SW+3}], s{so} offen offset:{rt*1024}")
            else: ep.append(f"buffer_store_dwordx2 {v(O,2)}, v{vL16}, s[{SW}:{SW+3}], s{so} offen offset:{rt*1024}")
            t += 2 if pair else 1
    sl = {}
    spread(pf, 0, int(len(ep) * opt.get("g3pff", 0.6)), sl)
    a.es(place(ep, sl))
    ts(a, opt, PH, 3)
    signal(a, PH, XF, XF + 1)
    ts(a, opt, PH, 4)
```

```python
import sys, struct
NAME = "interleave_layers__sliding_local_dilated__glu_gated_swiglu__prompt"
MB = 1 << 20
class Asm:
    def __init__(self):
        self.L = []; self.tail = []
        self.uid = 0
    def e(self, s): self.L.append("    " + s)
    def c(self, s): self.L.append("    ; " + s)
    def label(self, s): self.L.append(s + ":")
    def raw(self, s): self.L.append(s)
    def es(self, lst):
        for x in lst:
            if x.endswith(":"): self.L.append(x)
            else: self.e(x)
    def ool(self, lst): self.tail += lst
    def flush_tail(self):
        self.es(self.tail); self.tail = []
    def new(self, p):
        self.uid += 1
        return f"{p}_{self.uid}"
    def text(self): return "\n".join(self.L) + "\n"

def v(b, n=1): return f"v{b}" if n == 1 else f"v[{b}:{b+n-1}]"
def s(b, n=1): return f"s{b}" if n == 1 else f"s[{b}:{b+n-1}]"
def fbits(x): return struct.unpack("<I", struct.pack("<f", x))[0]

def place(main, slots):
    out = list(slots.get(-1, []))
    for i, m in enumerate(main):
        out.append(m); out += slots.get(i, [])
    return out

def spread(groups, lo, hi, slots):
    n = len(groups)
    if n == 0: return
    span = hi - lo + 1
    for k, g in enumerate(groups):
        idx = lo + (k * span) // n
        slots.setdefault(idx, []).extend(g if isinstance(g, list) else [g])

def mfma(c, A, B, cin=None):
    ci = v(c, 4) if cin is None else cin
    return f"v_mfma_f32_16x16x32_bf16 {v(c,4)}, {v(A,4)}, {v(B,4)}, {ci}"

def make_srd(a, d, lo, size, add=0):
    if add:
        a.e(f"s_add_u32 s{d}, s{lo}, {add}"); a.e(f"s_addc_u32 s{d+1}, s{lo+1}, 0")
    else:
        a.e(f"s_mov_b32 s{d}, s{lo}"); a.e(f"s_mov_b32 s{d+1}, s{lo+1}")
    a.e(f"s_mov_b32 s{d+2}, {size}"); a.e(f"s_mov_b32 s{d+3}, 0x00020000")

def kernel_header(a, name):
    a.raw(".text"); a.raw(f".globl {name}"); a.raw(".p2align 8"); a.raw(f".type {name},@function"); a.label(name)

def kernel_desc(name, vg=256, sg=102):
    return f""".amdhsa_kernel {name}
  .amdhsa_next_free_vgpr {vg}
  .amdhsa_next_free_sgpr {sg}
  .amdhsa_accum_offset {(vg + 3) // 4 * 4}
  .amdhsa_group_segment_fixed_size 0
  .amdhsa_kernarg_size 80
  .amdhsa_user_sgpr_count 2
  .amdhsa_user_sgpr_kernarg_segment_ptr 1
  .amdhsa_system_sgpr_workgroup_id_x 1
.end_amdhsa_kernel
"""

def build(launch_list, bodies, single=False):
    import os
    ref = os.path.join(os.path.dirname(os.path.abspath(__file__)), "..", NAME + ".s.ref")
    hdr = open(ref).read().split("; Override launch")[0]
    out = hdr
    for (k, g, b, lds) in launch_list:
        if single: out += f"; @launch grid=({g},1,1) block=({b},1,1) lds={lds}\n"
        else: out += f"; @launch kernel={k} grid=({g},1,1) block=({b},1,1) lds={lds}\n"
    out += '.amdgcn_target "amdgcn-amd-amdhsa--gfx950"\n'
    out += "".join(bodies)
    out += '.section .rodata,"a"\n'
    seen = []
    for (k, g, b, lds) in launch_list:
        if k in seen: continue
        seen.append(k)
        out += ".p2align 6\n" + kernel_desc(k)
    return out

def parse_opts(args):
    opt = {}
    for x in args:
        k, _, val = x.partition("=")
        if val == "": opt[k] = True
        else:
            try: opt[k] = int(val)
            except ValueError:
                try: opt[k] = float(val)
                except ValueError: opt[k] = val
    return opt
```

```python
from common import *

RA = 8; AS = 8192; LW = 65536
CFG = {1: dict(NS=32, WS=4224, RW=22, NT=2, WROT=12, AROT=0, NSKIP=2), 3: dict(NS=56, WS=8448, RW=10, NT=4, WROT=5, AROT=7, NSKIP=1)}
def wslot(ph, st):
    c = CFG[ph]; return LW + ((st + c['WROT']) % c['RW']) * c['WS']
def aslot(ph, st): return ((st + CFG[ph]['AROT']) % RA) * AS

sWR = 12
sWo, sWlo, sWhi, sWm = 48, 49, 50, 51
sAo, sAlo, sAhi, sAm = 52, 53, 54, 55
vWp = 244
vPL = 240
vPO = 246


def res_w_setup(a, ph):
    c = CFG[ph]
    if ph == 1:
        make_srd(a, sWR, pWO, 1024 * 2048)
        a.e(f"v_lshrrev_b32 v{vT0}, 3, v{vL}")
        a.e(f"v_lshlrev_b32 v{vT0}, 13, v{vT0}")
        a.e(f"v_and_b32 v{vT1}, 7, v{vL}")
        a.e(f"v_lshl_add_u32 v{vT0}, v{vT1}, 4, v{vT0}")
        a.e(f"s_lshl_b32 s{sT}, s{sW4}, 11")
        a.e(f"v_add_u32 v{vWp}, s{sT}, v{vT0}")
        a.e(f"s_mul_i32 s{sWm}, s{sW4}, 1056")
        a.e(f"s_lshl_b32 s{sWlo}, s{sCI}, 7")
        a.e(f"s_lshl_b32 s{sT}, s{sHP}, 17")
    else:
        make_srd(a, sWR, pW2, 3584 * 2048)
        a.e(f"s_and_b32 s{sT}, s{sNT}, 8")
        a.e(f"v_xor_b32 v{vT1}, s{sT}, v{vI}")
        a.e(f"v_lshlrev_b32 v{vT0}, 14, v{vG}")
        a.e(f"v_lshl_add_u32 v{vT0}, v{vT1}, 4, v{vT0}")
        a.e(f"s_lshl_b32 s{sT}, s{sW4}, 12")
        a.e(f"v_add_u32 v{vWp}, s{sT}, v{vT0}")
        a.e(f"v_add_u32 v{vWp+1}, 2048, v{vWp}")
        a.e(f"s_mul_i32 s{sWm}, s{sW4}, 2112")
        a.e(f"s_lshr_b32 s{sT}, s{sNT}, 3")
        a.e(f"s_mul_i32 s{sWlo}, s{sT}, {56 * 65536}")
        a.e(f"s_lshl_b32 s{sT2}, s{sN8}, 8")
        a.e(f"s_add_u32 s{sWlo}, s{sWlo}, s{sT2}")
        a.e(f"s_mul_i32 s{sT}, s{sK4}, {7 * 65536}")
    a.e(f"s_add_u32 s{sWhi}, s{sWlo}, {c['NS'] * 65536}")
    a.e(f"s_add_u32 s{sWo}, s{sWlo}, s{sT}")


def res_w_issue(ph, st):
    c = CFG[ph]; g = []
    for i in range(c['NT'] // 2):
        g.append([f"s_add_u32 m0, s{sWm}, {wslot(ph, st) + i * 1056}", "s_nop 0",
                  f"buffer_load_dwordx4 v{vWp+i}, s[{sWR}:{sWR+3}], s{sWo} offen lds"])
    g[-1] += [f"s_add_u32 s{sWo}, s{sWo}, 65536", f"s_cmp_eq_u32 s{sWo}, s{sWhi}", f"s_cselect_b32 s{sWo}, s{sWlo}, s{sWo}"]
    return g


def res_nxt(a, ph, vm, n):
    def mk(st):
        def f():
            for g in res_w_issue(ph, st):
                a.es(g); vm.op()
        return f
    return [(wslot(ph, st), wslot(ph, st) + CFG[ph]['WS'], mk(st)) for st in range(n)]


def touch_x(a, ph, vm):
    l = a.new("pt")
    a.e(f"s_cmp_ge_u32 s{sW4}, 2"); a.e(f"s_cbranch_scc1 {l}")
    xnew_off(a, ph, sT)
    a.e(f"v_lshlrev_b32 v{vT0}, 7, v{vL}")
    a.e(f"s_lshl_b32 s{sT2}, s{sW4}, 13"); a.e(f"s_add_u32 s{sT}, s{sT}, s{sT2}")
    a.e(f"buffer_load_dword v{vT1}, v{vT0}, s[{SW}:{SW+3}], s{sT} offen sc1")
    a.label(l)


def res_load(a, opt, ph, prefetched, nxt_setup, nxt_items, nxtcap):
    c = CFG[ph]; NS = c['NS']
    vm = VM(a)
    if ph == 1:
        touch_x(a, ph, vm)
        a.e(f"s_lshl_b32 s{sAlo}, s{sLB}, 22")
        a.e(f"s_lshl_b32 s{sT}, s{sMT}, 18")
        a.e(f"s_add_u32 s{sAlo}, s{sAlo}, s{sT}")
        a.e(f"s_add_u32 s{sAlo}, s{sAlo}, {WS_O}")
        a.e(f"s_lshl_b32 s{sT2}, s{sHP}, 14")
    else:
        a.e(f"s_lshl_b32 s{sAlo}, s{sLB}, 24")
        a.e(f"s_mul_i32 s{sT}, s{sMT}, {112 * 8192}")
        a.e(f"s_add_u32 s{sAlo}, s{sAlo}, s{sT}")
        a.e(f"s_lshr_b32 s{sT}, s{sNT}, 3")
        a.e(f"s_mul_i32 s{sT}, s{sT}, {56 * 8192}")
        a.e(f"s_add_u32 s{sAlo}, s{sAlo}, s{sT}")
        a.e(f"s_add_u32 s{sAlo}, s{sAlo}, {WS_H}")
        a.e(f"s_mul_i32 s{sT2}, s{sK4}, {7 * 8192}")
    a.e(f"s_lshl_b32 s{sAm}, s{sW4}, 11")
    a.e(f"s_add_u32 s{sAlo}, s{sAlo}, s{sAm}")
    a.e(f"s_add_u32 s{sAhi}, s{sAlo}, {NS * 8192}")
    a.e(f"s_add_u32 s{sAo}, s{sAlo}, s{sT2}")
    flag_off(a, sT, ph - 1)
    if ph == 1:
        a.e(f"v_lshlrev_b32 v{vPO}, 5, v{vL}")
        mask = "0xffff"
    else:
        a.e(f"v_lshlrev_b32 v{vPO}, 4, v{vL}")
        a.e(f"v_lshrrev_b32 v{vT0}, 1, v{vL}")
        a.e(f"s_lshl_b32 s{sT2}, s{sX}, 1")
        a.e(f"v_subrev_u32 v{vT0}, s{sT2}, v{vT0}")
        a.e(f"v_xor_b32 v{vT0}, s{sNT}, v{vT0}")
        a.e(f"v_and_b32 v{vT0}, 8, v{vT0}")
        a.e(f"v_cmp_eq_u32 vcc, 0, v{vT0}")
        a.e(f"s_mov_b32 s{sEXS}, vcc_lo")
        a.e(f"s_mov_b32 s{sEXS+1}, 0")
        mask = f"s[{sEXS}:{sEXS+1}]"
    ts(a, opt, ph, 0)
    poll(a, sT, vPO, vPL, 4, mask)
    ts(a, opt, ph, 1)

    def issW(st):
        for g in res_w_issue(ph, st):
            a.es(g); vm.op(("W", st))
    def issA(st):
        a.e(f"s_add_u32 m0, s{sAm}, {aslot(ph, st)}")
        a.e("s_nop 0")
        for i in range(2):
            a.e(f"buffer_load_dwordx4 v{vL16}, s[{SW}:{SW+3}], s{sAo} offen offset:{i*1024} sc1 lds"); vm.op(("A", st))
        a.e(f"s_add_u32 s{sAo}, s{sAo}, 8192"); a.e(f"s_cmp_eq_u32 s{sAo}, s{sAhi}"); a.e(f"s_cselect_b32 s{sAo}, s{sAlo}, s{sAo}")
    W = Stream("W", NS, c['RW'], issW, lambda u: (wslot(ph, u), wslot(ph, u) + c['WS']), issued=prefetched)
    A = Stream("A", NS, RA, issA, lambda u: (aslot(ph, u), aslot(ph, u) + AS))
    def touchP():
        a.e(f"v_lshlrev_b32 v{vT0}, 7, v{vL}")
        p_off(a, sT, sNT, sW4)
        a.e(f"buffer_load_dword v{vPL}, v{vT0}, s[{SW}:{SW+3}], s{sT} offen sc1"); vm.op()
    def touchX():
        xnew_off(a, ph, sT)
        a.e(f"s_lshl_b32 s{sT2}, s{sW4}, 12"); a.e(f"s_add_u32 s{sT}, s{sT}, s{sT2}")
        a.e(f"s_lshl_b32 s{sT2}, s{sX}, 1"); a.e(f"s_sub_u32 s{sT2}, s{sJ4}, s{sT2}"); a.e(f"s_and_b32 s{sT2}, s{sT2}, 15")
        a.e(f"s_cmp_lt_u32 s{sT2}, {opt.get('xtouch', 3)}"); a.e(f"s_cselect_b32 s{sT}, s{sT}, 0x7f000000")
        a.e(f"v_lshlrev_b32 v{vT0}, 7, v{vL}")
        a.e("s_mov_b64 exec, 0xffffffff")
        a.e(f"buffer_load_dword v{vPL+1}, v{vT0}, s[{SW}:{SW+3}], s{sT} offen sc1"); vm.op()
        a.e("s_mov_b64 exec, -1")
    ev = barrier_events(NS, deep=(ph == 1))[:-c['NSKIP']]
    ev[-1] = (ev[-1][0], NS - 1, ev[-1][2])
    hooks = {}
    if ph == 1:
        pre = ["A"] * 4
        laA = opt.get("g2la", 4)
        la = lambda n, idx: laA if n == "A" else 14
        cap = lambda idx: 3
        hooks["B2"] = nxt_setup
    else:
        pre = ["A"] * 3
        l4 = opt.get("g4la", 3)
        la = lambda n, idx: l4
        cap = lambda idx: 2 if idx < 1 else 4
        hooks["B1"] = nxt_setup
        if not opt.get("noptP"): hooks[f"B{opt.get('ptb', 25)}"] = lambda: (touchP(), touchX())
    log = []
    n = run_loader(a, vm, ev, [A, W], pre, la, cap, hooks, None, nxt_items(vm), nxtcap, log, tl=opt.get('tl') == f'g{ph+1}')
    if opt.get("log"): print(ph, log)
    ts(a, opt, ph, 2)
    return n


def p_off(a, dst, s_nt, s_w):
    a.e(f"s_lshl_b32 s{dst}, s{sMT}, 4")
    a.e(f"s_add_u32 s{dst}, s{dst}, s{s_nt}")
    a.e(f"s_lshl_b32 s{dst}, s{dst}, 2")
    a.e(f"s_add_u32 s{dst}, s{dst}, s{s_w}")
    a.e(f"s_lshl_b32 s{dst}, s{dst}, 13")
    a.e(f"s_lshl_b32 s{sT3}, s{sLB}, 23")
    a.e(f"s_add_u32 s{dst}, s{dst}, s{sT3}")
    a.e(f"s_add_u32 s{dst}, s{dst}, {WS_P}")


def xtile_off(a, dst, s_j, idx_mul, idx_add):
    a.e(f"s_lshl_b32 s{dst}, s{sMT}, 4")
    a.e(f"s_add_u32 s{dst}, s{dst}, s{s_j}")
    a.e(f"s_lshl_b32 s{dst}, s{dst}, 14")
    if idx_mul:
        a.e(f"s_mul_i32 s{sT3}, s{sLB}, {idx_mul * 4 * MB}")
        a.e(f"s_add_u32 s{dst}, s{dst}, s{sT3}")
    if idx_add:
        a.e(f"s_mul_i32 s{sT3}, s{sXM}, {idx_add * 4 * MB}")
        a.e(f"s_add_u32 s{dst}, s{dst}, s{sT3}")
    assert WS_X == 0


def xnew_off(a, ph, dst):
    if ph == 1: xtile_off(a, dst, sCI, 2, 0)
    else: xtile_off(a, dst, sJ4, 0, 1)


def res_cons(a, opt, ph):
    c = CFG[ph]; NS = c['NS']; NT = c['NT']; RW = c['RW']; WS_ = c['WS']
    FB = 32 if ph == 1 else 64; FS = 16 + 4 * NT
    XO = 128
    XU = 144
    RC = 176
    E = 208
    vA, vW0, vWc = 240, 241, 242
    sSl, sCnt, sXo, sXn = 16, 17, 18, 19
    sIO = 8
    def acc(t, rt): return (t * 4 + rt) * 4
    def xf(b, rt, sub=0): return FB + (b * (2 if ph == 1 else 1) + sub) * FS + rt * 4
    def wf(b, t, sub=0): return FB + (b * (2 if ph == 1 else 1) + sub) * FS + 16 + t * 4
    tag = f"r{ph}"
    a.e(f"s_lshr_b32 s{sT}, s{sWAVE}, 1"); a.e(f"s_lshl_b32 s{sT}, s{sT}, 12")
    a0 = aslot(ph, 0) - (0 if ph == 1 else AS); w0 = wslot(ph, 0) - LW - (0 if ph == 1 else WS_)
    assert a0 % (2 * AS) == 0 and w0 % (2 * WS_) == 0 and a0 >= 0 and w0 >= 0
    if a0: a.e(f"s_add_u32 s{sT}, s{sT}, {a0}")
    a.e(f"v_add_u32 v{vA}, s{sT}, v{vL16}")
    a.e(f"v_lshrrev_b32 v{vT0}, 2, v{vI}")
    if ph == 1:
        a.e(f"v_mul_u32_u24 v{vT0}, 1056, v{vT0}")
        a.e(f"v_lshl_add_u32 v{vT0}, v{vG}, 7, v{vT0}")
        toff = [0, 32]
    else:
        a.e(f"v_and_b32 v{vT1}, 1, v{vG}")
        a.e(f"v_lshl_add_u32 v{vT0}, v{vT1}, 2, v{vT0}")
        a.e(f"v_mul_u32_u24 v{vT0}, 1056, v{vT0}")
        a.e(f"v_lshrrev_b32 v{vT1}, 1, v{vG}")
        a.e(f"v_lshl_add_u32 v{vT0}, v{vT1}, 8, v{vT0}")
        toff = [0, 32, 128, 160]
    a.e(f"v_and_b32 v{vT1}, 3, v{vI}")
    a.e(f"v_lshl_add_u32 v{vT0}, v{vT1}, 3, v{vT0}")
    a.e(f"s_and_b32 s{sT}, s{sWAVE}, 1"); a.e(f"s_lshl_b32 s{sT}, s{sT}, 6"); a.e(f"s_add_u32 s{sT}, s{sT}, {LW}")
    a.e(f"v_add_u32 v{vW0}, s{sT}, v{vT0}")
    a.e(f"s_mov_b32 s{sSl}, {w0}")
    a.e(f"v_add_u32 v{vWc}, s{sSl}, v{vW0}")
    a.e(f"s_and_b32 s{sT}, s{sWAVE}, 1"); a.e(f"s_lshl_b32 s{sT}, s{sT}, 13")
    a.e(f"s_lshr_b32 s{sT2}, s{sWAVE}, 1"); a.e(f"s_lshl_b32 s{sT2}, s{sT2}, 12")
    a.e(f"s_add_u32 s{sCnt}, s{sT}, s{sT2}")
    xnew_off(a, ph, sXn); a.e(f"s_add_u32 s{sXn}, s{sXn}, s{sCnt}")
    vRM = 243
    def rowmajor(s_j):
        a.e(f"s_lshl_b32 s{sT}, s{sMT}, 1"); a.e(f"s_lshr_b32 s{sT2}, s{sWAVE}, 1"); a.e(f"s_add_u32 s{sT}, s{sT}, s{sT2}")
        a.e(f"s_lshl_b32 s{sT}, s{sT}, 17")
        a.e(f"s_lshl_b32 s{sT2}, s{s_j}, 7"); a.e(f"s_add_u32 s{sT}, s{sT}, s{sT2}")
        a.e(f"s_and_b32 s{sT2}, s{sWAVE}, 1"); a.e(f"s_lshl_b32 s{sT2}, s{sT2}, 6"); a.e(f"s_add_u32 s{sT}, s{sT}, s{sT2}")
        a.e(f"v_lshlrev_b32 v{vRM}, 11, v{vI}")
        a.e(f"v_add_u32 v{vRM}, s{sT}, v{vRM}")
    if ph == 1:
        l = a.new("xo")
        a.e(f"s_cmp_lg_u32 s{sLAY}, 0"); a.e(f"s_cbranch_scc1 {l}_f")
        make_srd(a, sIO, pAX, 4 * MB)
        rowmajor(sCI)
        a.e(f"v_lshl_add_u32 v{vRM}, v{vG}, 3, v{vRM}")
        for rt in range(4):
            a.e(f"s_mov_b32 s{sT}, {rt * 32768}")
            a.e(f"buffer_load_dwordx2 {v(XO+4*rt,2)}, v{vRM}, s[{sIO}:{sIO+3}], s{sT} offen")
            a.e(f"buffer_load_dwordx2 {v(XO+4*rt+2,2)}, v{vRM}, s[{sIO}:{sIO+3}], s{sT} offen offset:32")
        a.e(f"s_branch {l}_d")
        a.label(f"{l}_f")
        xtile_off(a, sXo, sCI, 0, 1)
    else:
        xtile_off(a, sXo, sJ4, 2, 0)
    a.e(f"s_add_u32 s{sXo}, s{sXo}, s{sCnt}")
    for rt in range(4):
        a.e(f"buffer_load_dwordx4 {v(XO+4*rt,4)}, v{vL16}, s[{SW}:{SW+3}], s{sXo} offen offset:{rt*1024} sc1")
    if ph == 1: a.label(f"{l}_d")

    KS = 2 if ph == 1 else 1
    def rd_list(b, sub, ao, wo):
        g = []
        for i in range(4):
            g.append(f"ds_read_b128 {v(xf(b,i,sub),4)}, v{vA} offset:{ao + i*1024}")
            if i < NT:
                g.append(f"ds_read_b64_tr_b16 {v(wf(b,i,sub),2)}, v{vWc} offset:{wo + toff[i]}")
                g.append(f"ds_read_b64_tr_b16 {v(wf(b,i,sub)+2,2)}, v{vWc} offset:{wo + toff[i] + 512}")
        return g
    adv = [[f"v_add_u16 v{vA}, 0x4000, v{vA}"], [f"s_add_u32 s{sSl}, s{sSl}, {2*WS_}", f"s_cmp_eq_u32 s{sSl}, {RW * WS_}"],
           [f"s_cselect_b32 s{sSl}, 0, s{sSl}"], [f"v_add_u32 v{vWc}, s{sSl}, v{vW0}"]]
    torder = [2, 3, 0, 1] if NT == 4 else [0, 1]
    def mf(b, sub): return [mfma(acc(t, rt), wf(b, t, sub), xf(b, rt, sub)) for t in torder for rt in range(4)]
    rdend = opt.get(f"g{ph+1}rd", 9 if ph == 3 else 10)
    def seg(m, rd, post):
        sl = {}
        spread(rd, 0, rdend, sl)
        spread(post, rdend + 1, 14, sl)
        sl.setdefault(15, []).append("s_waitcnt lgkmcnt(0)")
        a.es(place(m, sl))
    for i in range(4): a.e(f"v_mov_b32 v{E+i}, 0")
    a.e("s_nop 1")
    for i in range(0, 16 * NT, 16): a.e(f"v_mfma_f32_32x32x16_bf16 {v(i,16)}, {v(E,4)}, {v(E,4)}, 0")
    a.e(f"s_mov_b32 s{sCnt}, {NS // 4}"); a.e("s_mov_b64 vcc, 0")
    ts(a, opt, ph, 0)
    a.e("s_barrier")
    ts(a, opt, ph, 1)
    if ph == 1:
        a.es(rd_list(0, 0, 0, 0) + rd_list(0, 1, AS, WS_))
    else:
        a.es(rd_list(0, 0, AS, WS_))
    for g in adv: a.es(g)
    a.e("s_waitcnt lgkmcnt(0)")
    tsc(a, opt, ph, 6)
    a.label(f"{tag}_loop")
    for per in range(2):
        if per >= 2 - c['NSKIP']: a.e(f"s_cbranch_vccnz {tag}_nb{per}")
        a.e("s_barrier")
        a.label(f"{tag}_nb{per}")
        cnt = [[f"s_cmp_eq_u32 s{sCnt}, 2", "s_cselect_b64 vcc, -1, 0", f"s_sub_u32 s{sCnt}, s{sCnt}, 1", f"s_cmp_lg_u32 s{sCnt}, 0"]] if per == 1 else []
        if ph == 1:
            seg(mf(per, 0) + mf(per, 1), rd_list(1 - per, 0, 0, 0) + rd_list(1 - per, 1, AS, WS_), adv + cnt)
        else:
            seg(mf(0, 0), rd_list(1, 0, 0, 0), [])
            seg(mf(1, 0), rd_list(0, 0, AS, WS_), adv + cnt)
    a.e(f"s_cbranch_scc1 {tag}_loop")
    tsc(a, opt, ph, 7)
    ts(a, opt, ph, 2)
    def unpack_x():
        a.e("s_waitcnt vmcnt(0)" if ph == 1 else "s_waitcnt vmcnt(8)")
        for i in range(16):
            a.e(f"v_lshlrev_b32 v{XU+2*i}, 16, v{XO+i}")
            a.e(f"v_and_b32 v{XU+2*i+1}, 0xffff0000, v{XO+i}")
    if ph == 3:
        sP, sF = 20, 21
        p_off(a, sP, sNT, sWAVE)
        a.e(f"s_add_u32 s{sT2}, s{sP}, 4096")
        for i in range(8):
            so = sP if i < 4 else sT2
            a.e(f"buffer_store_dwordx4 {v(32+4*i,4)}, v{vL16}, s[{SW}:{SW+3}], s{so} offen offset:{(i%4)*1024}")
        a.e(f"s_lshl_b32 s{sF}, s{sLAY}, 4"); a.e(f"s_add_u32 s{sF}, s{sF}, s{sMT}"); a.e(f"s_lshl_b32 s{sF}, s{sF}, 4")
        a.e(f"s_add_u32 s{sF}, s{sF}, s{sNT}"); a.e(f"s_lshl_b32 s{sF}, s{sF}, 2"); a.e(f"s_add_u32 s{sF}, s{sF}, s{sWAVE}")
        a.e(f"s_lshl_b32 s{sF}, s{sF}, 2"); a.e(f"s_add_u32 s{sF}, s{sF}, {M_XF}")
        unpack_x()
        store_flag(a, sF, E, E + 1)
        ts(a, opt, ph, 3)
        a.e(f"s_xor_b32 s{sF}, s{sF}, 128")
        a.e(f"s_xor_b32 s{sP}, s{sP}, {8 * 4 * 8192}")
        poll(a, sF, E, E + 2, 1, "1")
        a.e(f"s_add_u32 s{sT2}, s{sP}, 4096")
        for i in range(8):
            so = sP if i < 4 else sT2
            a.e(f"buffer_load_dwordx4 {v(RC+4*i,4)}, v{vL16}, s[{SW}:{SW+3}], s{so} offen offset:{(i%4)*1024} sc1")
        ts(a, opt, ph, 4)
    else:
        a.e("s_nop 4")
        unpack_x()
    O = 64
    S = 80
    vOne = 88
    Y = E
    a.e(f"v_mov_b32 v{vOne}, 0x{ONES:08x}")
    def fin_rt(rt):
        if ph == 3:
            a.e(f"s_waitcnt vmcnt({3 - rt + fin_rt.younger})")
            for t in range(2):
                for r in (0, 2):
                    cc = acc(t, rt) + r; rr = RC + 4 * (t * 4 + rt) + r
                    a.e(f"v_pk_add_f32 {v(cc,2)}, {v(cc,2)}, {v(rr,2)}")
        for t in range(2):
            cc = acc(t, rt)
            a.e(f"v_cvt_pk_bf16_f32 v{Y+2*t}, v{cc}, v{cc+1}")
            a.e(f"v_cvt_pk_bf16_f32 v{Y+2*t+1}, v{cc+2}, v{cc+3}")
        for i in range(4):
            a.e(f"v_lshlrev_b32 v{Y+4+2*i}, 16, v{Y+i}")
            a.e(f"v_and_b32 v{Y+5+2*i}, 0xffff0000, v{Y+i}")
        for i in range(4):
            a.e(f"v_pk_add_f32 {v(Y+4+2*i,2)}, {v(Y+4+2*i,2)}, {v(XU+8*rt+2*i,2)}")
        for i in range(4):
            a.e(f"v_cvt_pk_bf16_f32 v{O+4*rt+i}, v{Y+4+2*i}, v{Y+5+2*i}")
    lo = a.new("fo")
    if ph == 3:
        a.e(f"s_cmp_lg_u32 s{sLAY}, 0"); a.e(f"s_cbranch_scc1 {lo}_out")
    for rt in range(4):
        fin_rt.younger = rt
        fin_rt(rt)
        a.e(f"buffer_store_dwordx4 {v(O+4*rt,4)}, v{vL16}, s[{SW}:{SW+3}], s{sXn} offen offset:{rt*1024}")
    for rt in range(4):
        for i in range(4):
            a.e(f"v_dot2_f32_bf16 v{S+rt}, v{O+4*rt+i}, v{vOne}, " + ("0" if i == 0 else f"v{S+rt}"))
            a.e(f"v_dot2_f32_bf16 v{S+4+rt}, v{O+4*rt+i}, v{O+4*rt+i}, " + ("0" if i == 0 else f"v{S+4+rt}"))
    s_j = sCI if ph == 1 else sJ4
    a.e(f"s_lshl_b32 s{sT}, s{sMT}, 4"); a.e(f"s_add_u32 s{sT}, s{sT}, s{s_j}"); a.e(f"s_lshl_b32 s{sXo}, s{sT}, 8")
    a.e(f"s_lshl_b32 s{sT}, s{sT}, 11")
    if ph == 1:
        a.e(f"s_lshl_b32 s{sT2}, s{sLAY}, 20"); a.e(f"s_add_u32 s{sT}, s{sT}, s{sT2}"); a.e(f"s_add_u32 s{sT}, s{sT}, {M_ST}")
    else:
        a.e(f"s_add_u32 s{sT}, s{sT}, {M_ST + 524288}")
    a.e(f"s_lshr_b32 s{sT2}, s{sWAVE}, 1"); a.e(f"s_lshl_b32 s{sT2}, s{sT2}, 10"); a.e(f"s_add_u32 s{sT}, s{sT}, s{sT2}")
    a.e(f"s_and_b32 s{sT2}, s{sWAVE}, 1"); a.e(f"s_lshl_b32 s{sT2}, s{sT2}, 3"); a.e(f"s_add_u32 s{sT}, s{sT}, s{sT2}")
    a.e(f"s_add_u32 s{sXo}, s{sXo}, s{sT2}")
    for b in (S, S + 4):
        a.e(f"v_permlane16_swap_b32 v{b}, v{b+1}")
        a.e(f"v_permlane16_swap_b32 v{b+2}, v{b+3}")
    for b in (S, S + 4):
        a.e(f"v_add_f32 v{b}, v{b}, v{b+1}")
        a.e(f"v_add_f32 v{b+2}, v{b+2}, v{b+3}")
    a.e("s_nop 1")
    for b in (S, S + 4): a.e(f"v_permlane32_swap_b32 v{b}, v{b+2}")
    a.e(f"v_add_f32 v{S}, v{S}, v{S+2}")
    a.e(f"v_add_f32 v{S+1}, v{S+4}, v{S+6}")
    a.e(f"buffer_store_dwordx2 {v(S,2)}, v{vL16}, s[{SW}:{SW+3}], s{sT} offen")
    if ph == 1:
        signal(a, ph, E, E + 1)
        ts(a, opt, ph, 5)
        return
    lh = a.new("hl")
    a.e(f"s_cmp_lt_u32 s{sWAVE}, 2"); a.e(f"s_cbranch_scc1 {lh}_no")
    a.e(f"v_cmp_eq_u32 vcc, 0, v{vI}")
    a.e(f"s_lshl_b32 s{sT}, s{sMT}, 4"); a.e(f"s_add_u32 s{sT}, s{sT}, s{sJ4}"); a.e(f"s_lshl_b32 s{sT}, s{sT}, 1")
    a.e(f"s_and_b32 s{sT2}, s{sWAVE}, 1"); a.e(f"s_add_u32 s{sT}, s{sT}, s{sT2}"); a.e(f"s_lshl_b32 s{sT}, s{sT}, 10")
    a.e(f"s_add_u32 s{sT}, s{sT}, {M_HALO}")
    for i in range(4): a.e(f"v_cndmask_b32 v{E+4+i}, v{O+12+i}, v{vOne}, vcc")
    a.e(f"buffer_store_dwordx4 {v(E+4,4)}, v{vL16}, s[{SW}:{SW+3}], s{sT} offen{SC}")
    a.e(f"s_add_u32 s{sXo}, s{sXo}, {M_HST - 768}")
    a.e("s_mov_b32 exec_lo, 0"); a.e("s_mov_b32 exec_hi, 0xffff0000")
    a.e(f"buffer_store_dwordx2 {v(S,2)}, v{vL16}, s[{SW}:{SW+3}], s{sXo} offen{SC}")
    a.e("s_mov_b64 exec, -1")
    signal(a, ph, E, E + 1, pending=2)
    a.e(f"s_lshl_b32 s{sT}, s{sMT}, 4"); a.e(f"s_add_u32 s{sT}, s{sT}, s{sCI}"); a.e(f"s_lshl_b32 s{sT}, s{sT}, 5")
    a.e(f"s_and_b32 s{sT2}, s{sWAVE}, 1"); a.e(f"s_lshl_b32 s{sT2}, s{sT2}, 2"); a.e(f"s_add_u32 s{sT}, s{sT}, s{sT2}")
    a.e(f"s_add_u32 s{sT}, s{sT}, {M_HF}")
    a.e("s_waitcnt vmcnt(1)")
    a.e("s_mov_b64 exec, 1")
    a.e(f"buffer_store_dword v{E+1}, v{E}, s[{SW}:{SW+3}], s{sT} offen{SC}")
    a.e("s_mov_b64 exec, -1")
    a.e(f"s_branch {lh}_done")
    a.label(f"{lh}_no")
    signal(a, ph, E, E + 1)
    a.label(f"{lh}_done")
    ts(a, opt, ph, 5)
    a.e(f"s_branch {lo}_end")
    a.label(f"{lo}_out")
    make_srd(a, sIO, pOUT, 4 * MB)
    rowmajor(sJ4)
    a.e(f"v_and_b32 v{vT0}, 1, v{vG}"); a.e(f"v_lshl_add_u32 v{vRM}, v{vT0}, 5, v{vRM}")
    a.e(f"v_lshrrev_b32 v{vT0}, 1, v{vG}"); a.e(f"v_lshl_add_u32 v{vRM}, v{vT0}, 4, v{vRM}")
    for rt in range(4):
        fin_rt.younger = rt
        fin_rt(rt)
        a.e(f"s_mov_b32 s{sT}, {rt * 32768}")
        a.e("s_nop 0")
        a.e(f"v_permlane16_swap_b32 v{O+4*rt}, v{O+4*rt+2}")
        a.e(f"v_permlane16_swap_b32 v{O+4*rt+1}, v{O+4*rt+3}")
        a.e(f"buffer_store_dwordx4 {v(O+4*rt,4)}, v{vRM}, s[{sIO}:{sIO+3}], s{sT} offen")
    ts(a, opt, ph, 5)
    a.label(f"{lo}_end")
```

```python
from common import *
import res, g1, g3

def gen(name, opt):
    a = Asm(); kernel_header(a, name)
    nph = opt.get("nph", 8)
    a.e("s_cmp_ge_u32 s2, 256"); a.e("s_cbranch_scc1 L_end")
    a.e(f"s_load_dwordx4 s[{pAX}:{pAX+3}], s[0:1], 0")
    a.e(f"s_load_dwordx2 s[{sWS}:{sWS+1}], s[0:1], 72")
    a.e(f"s_load_dwordx2 s[{pWO}:{pWO+1}], s[0:1], 16")
    a.e(f"s_load_dwordx4 s[{pW1}:{pW1+3}], s[0:1], 32")
    a.e(f"s_load_dwordx4 s[{pW2}:{pW2+3}], s[0:1], 48")
    a.e(f"s_load_dwordx2 s[{pDBG}:{pDBG+1}], s[0:1], 64")
    a.e("v_lshrrev_b32 v1, 6, v0")
    a.e(f"v_and_b32 v{vL}, 63, v0")
    a.e(f"v_readfirstlane_b32 s{sWAVE}, v1")
    a.e(f"v_lshrrev_b32 v{vG}, 4, v{vL}"); a.e(f"v_and_b32 v{vI}, 15, v{vL}"); a.e(f"v_lshlrev_b32 v{vL16}, 4, v{vL}")
    if opt.get("ts"): a.e("v_mov_b32 v255, 0")
    a.e(f"s_and_b32 s{sX}, s2, 7"); a.e(f"s_lshr_b32 s{sCI}, s2, 4"); a.e(f"s_lshr_b32 s{sQ}, s2, 3"); a.e(f"s_and_b32 s{sQ}, s{sQ}, 1")
    a.e(f"s_lshl_b32 s{sMT}, s{sX}, 1"); a.e(f"s_sub_u32 s{sNT}, s{sCI}, s{sMT}"); a.e(f"s_and_b32 s{sNT}, s{sNT}, 15")
    a.e(f"s_add_u32 s{sMT}, s{sMT}, s{sQ}")
    a.e(f"s_add_u32 s{sN8}, s{sNT}, s{sX}"); a.e(f"s_and_b32 s{sN8}, s{sN8}, 7")
    a.e(f"s_lshl_b32 s{sJ4}, s{sN8}, 1"); a.e(f"s_lshr_b32 s{sT}, s{sNT}, 3"); a.e(f"s_add_u32 s{sJ4}, s{sJ4}, s{sT}")
    a.e(f"s_lshl_b32 s{sHP}, s{sX}, 1"); a.e(f"s_add_u32 s{sHP}, s{sHP}, s{sCI}"); a.e(f"s_and_b32 s{sHP}, s{sHP}, 15")
    a.e(f"s_mov_b32 s{sLB}, 0"); a.e(f"s_mov_b32 s{sXM}, 1")
    if opt.get("rot3", "x") == "x": a.e(f"s_lshl_b32 s{sK3}, s{sX}, 1")
    else: a.e(f"s_mov_b32 s{sK3}, s{sCI}")
    if opt.get("rot4", "x") == "x": a.e(f"s_mov_b32 s{sK4}, s{sX}")
    else: a.e(f"s_and_b32 s{sK4}, s{sNT}, 7")
    a.e(f"s_and_b32 s{sW4}, s{sWAVE}, 3")
    a.e(f"s_mov_b32 s{sLAY}, 0"); a.e(f"s_mov_b32 s{sSLOW}, 1"); a.e(f"s_mov_b32 s{sSPIN}, {opt.get('spin', SPIN)}")
    a.e("s_waitcnt lgkmcnt(0)")
    make_srd(a, SW, sWS, WS_SIZE)
    a.e(f"s_cmp_ge_u32 s{sWAVE}, 4"); a.e("s_cbranch_scc1 L_load")
    def stop_check(p):
        if nph < 8 and (nph - 1) % 4 == p:
            a.e(f"s_cmp_eq_u32 s{sLAY}, {(nph - 1) // 4}"); a.e("s_cbranch_scc1 L_fin")
    a.e(f"s_mul_i32 s{sT}, s{sWAVE}, {g1.AS}"); a.e(f"v_add_u32 v8, s{sT}, v{vL16}")
    for i in range(4): a.e(f"v_mov_b32 v{4+i}, 0x{ONES:08x}")
    a.e("s_mov_b64 exec, 0xff")
    a.e("ds_write_b128 v8, v[4:7]")
    a.e("s_mov_b64 exec, -1")
    a.e(f"s_lshl_b32 s{sT}, s{sWAVE}, 2"); a.e(f"s_add_u32 s{sT}, s{sT}, {L_XFL}")
    a.e(f"v_mov_b32 v8, s{sT}"); a.e("v_mov_b32 v0, 0")
    a.e("ds_write_b32 v8, v0")
    a.e(f"s_cmp_lg_u32 s{sWAVE}, 3"); a.e("s_cbranch_scc1 L_noinit")
    for i in range(1, 4): a.e(f"v_mov_b32 v{i}, 0")
    a.e(f"v_lshrrev_b32 v8, 1, v{vL}"); a.e("v_lshlrev_b32 v8, 13, v8"); a.e(f"v_and_b32 v9, 1, v{vL}"); a.e("v_lshl_add_u32 v8, v9, 4, v8")
    a.e(f"s_lshl_b32 s{sT}, s{sMT}, 4"); a.e(f"s_add_u32 s{sT}, s{sT}, s{sCI}"); a.e(f"s_lshl_b32 s{sT}, s{sT}, 5")
    a.e(f"s_add_u32 s{sT2}, s{sT}, {M_FL}")
    a.e("s_mov_b64 exec, 0xffff")
    a.e(f"buffer_store_dwordx4 v[0:3], v8, s[{SW}:{SW+3}], s{sT2} offen{SC}")
    a.e("s_mov_b64 exec, 3")
    a.e(f"s_add_u32 s{sT2}, s{sT}, {M_HF}")
    a.e(f"buffer_store_dwordx4 v[0:3], v{vL16}, s[{SW}:{SW+3}], s{sT2} offen{SC}")
    a.e(f"s_lshl_b32 s{sT}, s{sNT}, 4"); a.e(f"s_add_u32 s{sT}, s{sT}, s{sMT}"); a.e(f"s_lshl_b32 s{sT}, s{sT}, 5"); a.e(f"s_add_u32 s{sT2}, s{sT}, {M_CF}")
    a.e(f"buffer_store_dwordx4 v[0:3], v{vL16}, s[{SW}:{SW+3}], s{sT2} offen{SC}")
    a.e(f"s_lshl_b32 s{sT}, s{sMT}, 4"); a.e(f"s_add_u32 s{sT}, s{sT}, s{sNT}"); a.e(f"s_lshl_b32 s{sT}, s{sT}, 4"); a.e(f"s_add_u32 s{sT2}, s{sT}, {M_XF}")
    a.e(f"v_lshlrev_b32 v8, 12, v{vL}")
    a.e(f"buffer_store_dwordx4 v[0:3], v8, s[{SW}:{SW+3}], s{sT2} offen{SC}")
    a.e("s_mov_b64 exec, -1")
    a.label("L_noinit")
    g1.x0_stats(a, opt)
    a.e("s_waitcnt lgkmcnt(0)")
    a.label("C_layer")
    g1.g1_cons(a, opt); stop_check(0)
    res.res_cons(a, opt, 1); stop_check(1)
    G0 = g3.G3(a, opt, 0); G0.w_setup(); G0.run(0); stop_check(2)
    res.res_cons(a, opt, 3); stop_check(3)
    a.e(f"s_add_u32 s{sLAY}, s{sLAY}, 1"); set_mode(a, opt)
    a.e(f"s_cmp_lt_u32 s{sLAY}, 2"); a.e("s_cbranch_scc1 C_layer")
    a.e("s_branch L_fin")
    a.flush_tail()
    a.label("L_load")
    if opt.get("lprio", 3): a.e(f"s_setprio {opt.get('lprio', 3)}")
    n2 = g1.g1_load0(a, opt)
    a.e(f"v_mov_b32 v{vT0}, {L_MODE}"); a.e(f"ds_read_b32 v{vT0}, v{vT0}"); a.e("s_waitcnt lgkmcnt(0)")
    a.e(f"v_readfirstlane_b32 s{sSLOW}, v{vT0}")
    set_mode(a, opt)
    a.label("L_g2")
    stop_check(0)
    G3 = g3.G3(a, opt, 1)
    n3 = res.res_load(a, opt, 1, n2, G3.w_setup, lambda vm: G3.nxt(vm, opt.get("g3pre", 2)), lambda idx, n: 0 if n else opt.get("g3pc", 3)); stop_check(1)
    if opt.get("lprio", 3): a.e(f"s_setprio {opt.get('g3prio', 0)}")
    G3.run(n3); stop_check(2)
    if opt.get("lprio", 3): a.e(f"s_setprio {opt.get('lprio', 3)}")
    n1 = res.res_load(a, opt, 3, res.CFG[3]['RW'], lambda: g1.g1_w_setup(a, opt, 1), lambda vm: g1.g1_nxt(a, vm, opt.get("g1pre", 3)), lambda idx, n: 0); stop_check(3)
    a.e(f"s_cmp_eq_u32 s{sLAY}, 1"); a.e("s_cbranch_scc1 L_fin")
    a.e(f"s_mov_b32 s{sLAY}, 1"); set_mode(a, opt)
    n2b = g1.g1_load1(a, opt, n1)
    assert n2b == n2
    a.e("s_branch L_g2")
    a.flush_tail()
    a.label("L_fin")
    if opt.get("ts"):
        a.e(f"s_lshl_b32 s{sT}, s2, 3"); a.e(f"s_add_u32 s{sT}, s{sT}, s{sWAVE}"); a.e(f"s_lshl_b32 s{sT}, s{sT}, 8"); a.e(f"s_add_u32 s{sT}, s{sT}, {M_TS}")
        a.e(f"v_lshlrev_b32 v{vT0}, 2, v{vL}")
        a.e(f"buffer_store_dword v255, v{vT0}, s[{SW}:{SW+3}], s{sT} offen")
    a.label("L_abort")
    a.label("L_end")
    a.e("s_endpgm")
    return a.text()

if __name__ == "__main__":
    opt = parse_opts(sys.argv[2:])
    if opt.get("list"):
        t = build([("mega_kernel", 256, 512, 163840)], [gen("mega_kernel", opt)])
    else:
        KN = NAME + "_kernel"
        t = build([(KN, 256, 512, 163840)], [gen(KN, opt)], single=True)
    open(sys.argv[1], "w").write(t)
```

```python
class Asm:
    def __init__(self):
        self.L = []
    def e(self, s):
        self.L.append("    " + s)
    def c(self, s):
        self.L.append("    ; " + s)
    def label(self, s):
        self.L.append(s + ":")
    def raw(self, s):
        self.L.append(s)
    def text(self):
        return "\n".join(self.L) + "\n"

def vr(b, n=1):
    return f"v{b}" if n == 1 else f"v[{b}:{b+n-1}]"
def sr(b, n=1):
    return f"s{b}" if n == 1 else f"s[{b}:{b+n-1}]"

def interleave(main, others, start=0, end=None):
    n = len(main)
    if end is None: end = n
    out = []
    m = len(others)
    span = max(end - start, 1)
    j = 0
    for i, ins in enumerate(main):
        out.append(ins)
        if i >= start:
            want = min(m, ((i - start + 1) * m + span - 1) // span) if i < end else m
            while j < want:
                out.extend(others[j]); j += 1
    while j < m:
        out.extend(others[j]); j += 1
    return out
```

```python
import sys
from asmlib import *

NAME = "interleave_layers__sliding_local_dilated__glu_gated_swiglu__prompt"
WS_X   = 0
WS_O   = 4 << 20
WS_H   = 8 << 20
WS_ST  = 24 << 20
WS_CSQ = WS_ST + (1 << 20)
WS_CS1 = WS_CSQ + 16384
WS_CS3 = WS_CSQ + 32768
EPS_BITS = 0x3727c5ac
KA = dict(ax=0, wqkv=8, wo=16, bx=24, w1=32, w3=40, w2=48, out=56, dbg=64, ws=72)

kernels = []

def kernel_header(a, name):
    a.raw(".text")
    a.raw(f".globl {name}")
    a.raw(".p2align 8")
    a.raw(f".type {name},@function")
    a.label(name)

def kernel_desc(name, vg, sg):
    return f""".amdhsa_kernel {name}
  .amdhsa_next_free_vgpr {vg}
  .amdhsa_next_free_sgpr {sg}
  .amdhsa_accum_offset {(vg + 3) // 4 * 4}
  .amdhsa_group_segment_fixed_size 0
  .amdhsa_kernarg_size 80
  .amdhsa_user_sgpr_count 2
  .amdhsa_user_sgpr_kernarg_segment_ptr 1
  .amdhsa_system_sgpr_workgroup_id_x 1
.end_amdhsa_kernel
"""

def make_srd(a, d, lo, hi, size, add=0):
    if add:
        a.e(f"s_add_u32 s{d}, s{lo}, {add}")
        a.e(f"s_addc_u32 s{d+1}, s{hi}, 0")
    else:
        a.e(f"s_mov_b32 s{d}, s{lo}")
        a.e(f"s_mov_b32 s{d+1}, s{hi}")
    a.e(f"s_mov_b32 s{d+2}, {size}")
    a.e(f"s_mov_b32 s{d+3}, 0x00020000")

def round_bf16(a, v):
    a.e(f"v_cvt_pk_bf16_f32 v{v}, v{v}, v{v}")
    a.e(f"v_lshlrev_b32 v{v}, 16, v{v}")

def finish_stats(a, vsum, vsq, out_mean, out_rs):
    a.e(f"v_mul_f32 v{vsum}, 0x3a800000, v{vsum}")
    a.e(f"v_mul_f32 v{vsq}, 0x3a800000, v{vsq}")
    a.e(f"v_fma_f32 v{vsq}, -v{vsum}, v{vsum}, v{vsq}")
    a.e(f"v_max_f32 v{vsq}, 0, v{vsq}")
    a.e(f"v_mov_b32 v{out_mean}, v{vsum}")
    round_bf16(a, out_mean)
    round_bf16(a, vsq)
    a.e(f"v_add_f32 v{vsq}, 0x{EPS_BITS:08x}, v{vsq}")
    round_bf16(a, vsq)
    a.e(f"v_sqrt_f32 v{vsq}, v{vsq}")
    a.e("s_nop 0")
    round_bf16(a, vsq)
    a.e(f"v_rcp_f32 v{out_rs}, v{vsq}")
    a.e("s_nop 0")

def xreduce(a, regs, tmps, op="v_add_f32"):
    for sw in ("v_permlane16_swap_b32", "v_permlane32_swap_b32"):
        for v, t in zip(regs, tmps): a.e(f"v_mov_b32 v{t}, v{v}")
        a.e("s_nop 1")
        for v, t in zip(regs, tmps): a.e(f"{sw} v{v}, v{t}")
        for v, t in zip(regs, tmps): a.e(f"{op} v{v}, v{v}, v{t}")

def stamp(a, i, opt):
    if opt.get("stamp"):
        a.e(f"s_memtime s[{60+2*i}:{61+2*i}]")
        if i == 0: a.e("s_memrealtime s[76:77]")
        if i == 7: a.e("s_memrealtime s[78:79]")
        a.e("s_waitcnt lgkmcnt(0)")

def dump_stamps(a, n, opt, name, swave):
    if not opt.get("stamp"): return
    a.e(f"s_cmp_lg_u32 s2, {int(opt.get('stampwg', 0))}")
    a.e(f"s_cbranch_scc1 {name}_nostamp{dump_stamps.cnt}")
    a.e("s_load_dwordx2 s[56:57], s[0:1], 64")
    a.e("s_waitcnt lgkmcnt(0)")
    a.e("s_mov_b32 s58, 512")
    a.e("s_mov_b32 s59, 0x00020000")
    a.e(f"v_mov_b32 v1, s{swave}")
    a.e("v_lshlrev_b32 v1, 6, v1")
    for i in range(n):
        a.e(f"v_mov_b32 v2, s{60+2*i}")
        a.e(f"buffer_store_dword v2, v1, s[56:59], 0 offen offset:{4*i}")
    a.e("s_sub_u32 s76, s78, s76")
    a.e("v_mov_b32 v2, s76")
    a.e(f"buffer_store_dword v2, v1, s[56:59], 0 offen offset:60")
    a.label(f"{name}_nostamp{dump_stamps.cnt}")
    dump_stamps.cnt += 1
dump_stamps.cnt = 0

def wg_start(a, opt):
    if opt.get("wgt"):
        a.e("s_memrealtime s[80:81]")
def wg_end(a, opt, name, swave):
    if not opt.get("wgt"): return
    a.e("s_waitcnt vmcnt(0)")
    a.e("s_memrealtime s[82:83]")
    a.e("s_load_dwordx4 s[84:87], s[0:1], 64")
    a.e("s_waitcnt lgkmcnt(0)")
    a.e("s_sub_u32 s84, s84, s88")
    a.e("s_add_u32 s84, s84, s88")
    a.e("s_lshr_b32 s84, s84, 9")
    a.e("s_and_b32 s84, s84, 63")
    a.e("s_lshl_b32 s84, s84, 13")
    a.e("s_lshl_b32 s85, s2, 5")
    a.e("s_add_u32 s84, s84, s85")
    a.e(f"s_lshl_b32 s85, s{swave}, 2")
    a.e("s_add_u32 s84, s84, s85")
    a.e("s_add_u32 s86, s86, 0x4000000")
    a.e("s_addc_u32 s87, s87, 0")
    a.e("s_mov_b32 s88, s86")
    a.e("s_mov_b32 s89, s87")
    a.e("s_mov_b32 s90, 0x100000")
    a.e("s_mov_b32 s91, 0x00020000")
    a.e("v_mov_b32 v1, s84")
    a.e("v_mov_b32 v2, s80")
    a.e("v_mov_b32 v3, s92" if opt.get("wgtloop") else "v_mov_b32 v3, s82")
    a.e("buffer_store_dword v2, v1, s[88:91], 0 offen")
    a.e("s_mov_b32 s85, 0x80000")
    a.e("buffer_store_dword v3, v1, s[88:91], s85 offen")

def emit(a, groups):
    for g in groups:
        for x in g: a.e(x)

def merge(A, B):
    if not B: return list(A)
    if not A: return list(B)
    out = []; j = 0
    for i, g in enumerate(A):
        out.append(g)
        want = ((i + 1) * len(B)) // len(A)
        while j < want: out.append(B[j]); j += 1
    out += B[j:]
    return out

def zero_acc(a, base, n, vz):
    for i in range(4): a.e(f"v_mov_b32 v{vz+i}, 0")
    a.e("s_nop 1")
    for i in range(0, n, 16):
        a.e(f"v_mfma_f32_32x32x16_bf16 v[{base+i}:{base+i+15}], v[{vz}:{vz+3}], v[{vz}:{vz+3}], 0")

def load_row_stats(a, dst, vtmp, srd, s_rowbase, s_tmp, vL, vG):
    a.e(f"v_and_b32 v{vtmp}, 15, v{vL}")
    a.e(f"v_lshlrev_b32 v{vtmp}, 7, v{vtmp}")
    a.e(f"v_lshl_add_u32 v{vtmp}, v{vG}, 5, v{vtmp}")
    a.e(f"s_lshl_b32 s{s_tmp}, s{s_rowbase}, 7")
    a.e(f"buffer_load_dwordx4 v[{dst}:{dst+3}], v{vtmp}, s[{srd}:{srd+3}], s{s_tmp} offen")
    a.e(f"buffer_load_dwordx4 v[{dst+4}:{dst+7}], v{vtmp}, s[{srd}:{srd+3}], s{s_tmp} offen offset:16")

def reduce_row_stats(a, src, t0, t1, vMean, vRs):
    a.e(f"v_add_f32 v{src}, v{src}, v{src+2}")
    a.e(f"v_add_f32 v{src+1}, v{src+1}, v{src+3}")
    a.e(f"v_add_f32 v{src+4}, v{src+4}, v{src+6}")
    a.e(f"v_add_f32 v{src+5}, v{src+5}, v{src+7}")
    a.e(f"v_add_f32 v{src}, v{src}, v{src+4}")
    a.e(f"v_add_f32 v{src+1}, v{src+1}, v{src+5}")
    xreduce(a, [src, src + 1], [t0, t1])
    finish_stats(a, src, src + 1, vMean, vRs)

def gen_g3(name, opt):
    a = Asm()
    kernel_header(a, name)
    LDS_A = 0; A_SLOT = 16384; LDS_W = 49152; W_SLOT = 28672; W_MAT = 14336
    PW = 7168
    sA, sW, sH, sS = 8, 12, 16, 20
    s_wave, s_mt, s_nt, s_t0 = 24, 25, 26, 27
    sWg, sWd, sWn, sWc = 32, 33, 34, 35
    sAk, sAr, sAd, sAc0, sAc1, sAm0, sAm1 = 36, 37, 38, 39, 40, 41, 42
    sT, sT2, sCnt = 43, 44, 45
    ACC = 0; WF = 128; XF = 192
    vWp = 224; vAp = 228; vXa = 229; vWa = 231; vXc = 233; vWc = 234
    vMean, vRs = 236, 237
    vL, vG, vT0, vT1, vT2, vT3 = 238, 239, 240, 241, 242, 243
    vST = 244
    NV = 252
    def acc(mat, t, rt, NP): return ACC + ((mat * NP + t) * 4 + rt) * 4
    def wf(buf, mat, t, NP): return WF + buf * 32 + (mat * NP + t) * 4
    def xf(buf, rt): return XF + buf * 16 + rt * 4

    a.e("s_cmp_ge_u32 s2, 256")
    a.e(f"s_cbranch_scc1 {name}_end")
    a.e("s_load_dwordx2 s[4:5], s[0:1], 72")
    a.e("s_load_dwordx4 s[28:31], s[0:1], 32")
    wg_start(a, opt)
    stamp(a, 0, opt)
    a.e(f"v_lshrrev_b32 v{vT0}, 6, v0")
    a.e(f"v_and_b32 v{vL}, 63, v0")
    a.e(f"v_readfirstlane_b32 s{s_wave}, v{vT0}")
    a.e(f"v_lshrrev_b32 v{vG}, 4, v{vL}")
    a.e(f"s_and_b32 s{sT}, s2, 1")
    a.e(f"s_lshl_b32 s{sT}, s{sT}, 3")
    a.e(f"s_lshr_b32 s{sT2}, s2, 3")
    a.e(f"s_and_b32 s{s_mt}, s{sT2}, 7")
    a.e(f"s_add_u32 s{s_mt}, s{s_mt}, s{sT}")
    a.e(f"s_lshr_b32 s{sT}, s2, 1")
    a.e(f"s_and_b32 s{sT}, s{sT}, 3")
    a.e(f"s_lshl_b32 s{sT}, s{sT}, 2")
    a.e(f"s_lshr_b32 s{s_nt}, s2, 6")
    a.e(f"s_add_u32 s{s_nt}, s{s_nt}, s{sT}")
    a.e(f"v_lshrrev_b32 v{vT0}, 3, v{vL}")
    a.e(f"v_and_b32 v{vT1}, 6, v{vT0}")
    a.e(f"v_and_b32 v{vT2}, 7, v{vL}")
    a.e(f"v_xor_b32 v{vT1}, v{vT1}, v{vT2}")
    a.e(f"v_lshlrev_b32 v{vT1}, 4, v{vT1}")
    a.e(f"v_lshl_add_u32 v{vAp}, v{vT0}, 11, v{vT1}")
    a.e(f"s_lshr_b32 s{sT}, s{s_wave}, 2")
    a.e(f"s_xor_b32 s{sT}, s{sT}, 1")
    a.e(f"s_lshl_b32 s{sT}, s{sT}, 8")
    a.e(f"s_mov_b32 s{sT2}, 2341")
    for i in range(4):
        a.e(f"v_add_u32 v{vT0}, s{sT}, v{vL}")
        if i: a.e(f"v_add_u32 v{vT0}, {64*i}, v{vT0}")
        a.e(f"v_mul_lo_u32 v{vT1}, v{vT0}, s{sT2}")
        a.e(f"v_lshrrev_b32 v{vT1}, 16, v{vT1}")
        a.e(f"v_mul_u32_u24 v{vT2}, 28, v{vT1}")
        a.e(f"v_sub_u32 v{vT2}, v{vT0}, v{vT2}")
        a.e(f"v_lshrrev_b32 v{vT3}, 2, v{vT1}")
        a.e(f"v_and_b32 v{vT3}, 2, v{vT3}")
        a.e(f"v_xor_b32 v{vT2}, v{vT2}, v{vT3}")
        a.e(f"v_mul_u32_u24 v{vT1}, {PW}, v{vT1}")
        a.e(f"v_lshl_add_u32 v{vWp+i}, v{vT2}, 4, v{vT1}")
    a.e(f"s_lshr_b32 s{sT}, s{s_wave}, 1")
    a.e(f"s_and_b32 s{sT}, s{sT}, 1")
    a.e(f"s_mul_i32 s{sWg}, s{sT}, {16 * PW}")
    a.e(f"s_mul_i32 s{sT2}, s{s_nt}, 448")
    a.e(f"s_add_u32 s{sWg}, s{sWg}, s{sT2}")
    a.e(f"s_mul_i32 s{sWc}, s{sT}, 7168")
    a.e(f"s_and_b32 s{sT}, s{s_wave}, 1")
    a.e(f"s_mul_i32 s{sT}, s{sT}, {W_MAT}")
    a.e(f"s_add_u32 s{sWc}, s{sWc}, s{sT}")
    a.e(f"s_lshr_b32 s{sT}, s{s_wave}, 2")
    a.e(f"s_xor_b32 s{sT}, s{sT}, 1")
    a.e(f"s_lshl_b32 s{sT}, s{sT}, 12")
    a.e(f"s_add_u32 s{sWc}, s{sWc}, s{sT}")
    a.e(f"s_add_u32 s{sWc}, s{sWc}, {LDS_W}")
    a.e(f"s_lshl_b32 s{sT}, s{s_mt}, 7")
    a.e(f"s_lshl_b32 s{sT2}, s{s_wave}, 3")
    a.e(f"s_add_u32 s{sT}, s{sT}, s{sT2}")
    a.e(f"s_lshl_b32 s{sAc0}, s{sT}, 11")
    a.e(f"s_add_u32 s{sAc1}, s{sAc0}, {64 * 2048}")
    a.e(f"s_lshl_b32 s{sAm0}, s{s_wave}, 10")
    a.e(f"s_add_u32 s{sAm1}, s{sAm0}, {64 * 128}")
    a.e(f"s_mov_b32 s{sWd}, 0")
    a.e(f"s_mov_b32 s{sAk}, 0")
    a.e(f"s_mov_b32 s{sAd}, 0")
    a.e("s_waitcnt lgkmcnt(0)")
    stamp(a, 1, opt)
    make_srd(a, sA, 4, 5, 4 << 20, WS_X)
    a.e(f"s_and_b32 s{sT}, s{s_wave}, 1")
    a.e(f"s_cmp_eq_u32 s{sT}, 0")
    a.e(f"s_cselect_b32 s{sW}, s28, s30")
    a.e(f"s_cselect_b32 s{sW+1}, s29, s31")
    a.e(f"s_mov_b32 s{sW+2}, {1024 * PW}")
    a.e(f"s_mov_b32 s{sW+3}, 0x00020000")
    a.e(f"s_cmp_ge_u32 s{s_wave}, 4")
    a.e(f"s_cbranch_scc1 {name}_c1")

    for cls in (0, 1):
        NP = 4 - cls
        nWd = 3 + cls
        n = nWd + 1
        if cls: a.label(f"{name}_c1")
        def dmaW():
            g = []
            for i in range(nWd):
                grp = []
                if i == 0: grp.append(f"s_add_u32 m0, s{sWd}, s{sWc}")
                else: grp.append("s_add_u32 m0, m0, 1024")
                grp.append("s_nop 0")
                grp.append(f"buffer_load_dwordx4 v{vWp+i}, s[{sW}:{sW+3}], s{sWg} offen lds")
                g.append(grp)
            g.append([f"s_add_u32 s{sWg}, s{sWg}, {32 * PW}"])
            return g
        def dmaA(half):
            return [[f"s_add_u32 s{sT}, s{sAk}, s{sAc0 + half}",
                     f"s_add_u32 m0, s{sAd}, s{sAm0 + half}",
                     "s_nop 0",
                     f"buffer_load_dwordx4 v{vAp}, s[{sA}:{sA+3}], s{sT} offen lds"]]
        def wrap_add(dst, src, step, lim):
            return [f"s_add_u32 s{dst}, s{src}, {step}", f"s_cmp_eq_u32 s{dst}, {lim}", f"s_cselect_b32 s{dst}, 0, s{dst}"]
        def pro_group(j):
            if j >= 1:
                emit(a, dmaW())
                a.e(f"s_add_u32 s{sWd}, s{sWd}, {W_SLOT}")
            emit(a, dmaA(j & 1))
            if j & 1:
                a.e(f"s_add_u32 s{sAk}, s{sAk}, 128")
                a.e(f"s_add_u32 s{sAd}, s{sAd}, {A_SLOT}")
        for j in range(3): pro_group(j)
        make_srd(a, sH, 4, 5, 2048 * 7168, WS_H)
        make_srd(a, sS, 4, 5, 2 << 20, WS_ST)
        a.e(f"s_and_b32 s{sT}, s{s_wave}, 1")
        a.e(f"s_lshl_b32 s{sT}, s{sT}, 6")
        a.e(f"s_lshr_b32 s{sT2}, s{s_wave}, 1")
        a.e(f"s_lshl_b32 s{sT2}, s{sT2}, 4")
        a.e(f"s_add_u32 s{sT}, s{sT}, s{sT2}")
        a.e(f"s_lshl_b32 s{sT2}, s{s_mt}, 7")
        a.e(f"s_add_u32 s{sT}, s{sT}, s{sT2}")
        load_row_stats(a, vST, vT0, sS, sT, sT2, vL, vG)
        a.e(f"v_and_b32 v{vT0}, 15, v{vL}")
        a.e(f"s_and_b32 s{sT}, s{s_wave}, 1")
        a.e(f"s_lshl_b32 s{sT}, s{sT}, 13")
        a.e(f"v_lshlrev_b32 v{vT0}, 7, v{vT0}")
        a.e(f"v_add_u32 v{vT0}, s{sT}, v{vT0}")
        a.e(f"v_and_b32 v{vT1}, 6, v{vL}")
        a.e(f"v_xor_b32 v{vT1}, v{vT1}, v{vG}")
        a.e(f"v_lshl_add_u32 v{vXa}, v{vT1}, 4, v{vT0}")
        a.e(f"v_xor_b32 v{vXa+1}, 64, v{vXa}")
        a.e(f"v_and_b32 v{vT0}, 15, v{vL}")
        a.e(f"v_lshrrev_b32 v{vT1}, 2, v{vT0}")
        a.e(f"v_lshl_add_u32 v{vT1}, v{vG}, 3, v{vT1}")
        a.e(f"v_mul_u32_u24 v{vT1}, 448, v{vT1}")
        a.e(f"v_and_b32 v{vT0}, 3, v{vT0}")
        a.e(f"v_lshl_add_u32 v{vT1}, v{vT0}, 3, v{vT1}")
        a.e(f"v_add_u32 v{vT1}, {LDS_W}, v{vT1}")
        a.e(f"s_lshr_b32 s{sT}, s{s_wave}, 1")
        a.e(f"s_and_b32 s{sT}, s{sT}, 1")
        a.e(f"s_mul_i32 s{s_t0}, s{sT}, {NP}")
        if cls: a.e(f"s_add_u32 s{s_t0}, s{s_t0}, 8")
        a.e(f"v_and_b32 v{vT2}, 1, v{vG}")
        a.e(f"v_xor_b32 v{vT3}, s{s_t0}, v{vT2}")
        a.e(f"v_lshl_add_u32 v{vWa}, v{vT3}, 5, v{vT1}")
        a.e(f"s_add_u32 s{sT}, s{s_t0}, 1")
        a.e(f"v_xor_b32 v{vT3}, s{sT}, v{vT2}")
        a.e(f"v_lshl_add_u32 v{vWa+1}, v{vT3}, 5, v{vT1}")
        a.e(f"v_subrev_u32 v{vWa+1}, 32, v{vWa+1}")
        zero_acc(a, ACC, 2 * NP * 16, vT0)
        def reads(buf):
            g = []
            for rt in range(4):
                g.append([f"ds_read_b128 v[{xf(buf,rt)}:{xf(buf,rt)+3}], v{vXc} offset:{rt*2048}"])
            for t in range(NP):
                for mat in range(2):
                    b = wf(buf, mat, t, NP)
                    off = mat * W_MAT + 32 * t
                    g.append([f"ds_read_b64_tr_b16 v[{b}:{b+1}], v{vWc + (t&1)} offset:{off}"])
                    g.append([f"ds_read_b64_tr_b16 v[{b+2}:{b+3}], v{vWc + (t&1)} offset:{off + 4*448}"])
            return g
        def mfmas(buf):
            m = []
            for t in range(NP):
                for mat in range(2):
                    for rt in range(4):
                        c = acc(mat, t, rt, NP)
                        m.append(f"v_mfma_f32_16x16x32_bf16 v[{c}:{c+3}], v[{wf(buf,mat,t,NP)}:{wf(buf,mat,t,NP)+3}], v[{xf(buf,rt)}:{xf(buf,rt)+3}], v[{c}:{c+3}]")
            return m
        stamp(a, 2, opt)
        a.e(f"s_waitcnt vmcnt({n + 2})")
        a.e("s_barrier")
        stamp(a, 3, opt)
        a.e(f"v_mov_b32 v{vXc}, v{vXa}")
        a.e(f"v_mov_b32 v{vWc}, v{vWa}")
        a.e(f"v_mov_b32 v{vWc+1}, v{vWa+1}")
        emit(a, reads(0))
        for j in range(3, 5): pro_group(j)
        a.e(f"s_mov_b32 s{sWd}, 0")
        a.e(f"s_mov_b32 s{sAr}, 0")
        a.e(f"s_mov_b32 s{sAd}, {2 * A_SLOT}")
        a.e(f"s_mov_b32 s{sAk}, 256")
        a.e(f"s_waitcnt vmcnt({2*n})")
        reduce_row_stats(a, vST, vT0, vT1, vMean, vRs)
        def iteration(p, allowed, dma=True, rd=True):
            a.e(f"s_waitcnt vmcnt({allowed}) lgkmcnt(0)")
            a.e("s_barrier")
            pre = []
            pre += wrap_add(sWn, sWd, W_SLOT, 4 * W_SLOT)
            if p == 1:
                pre.append(f"s_mov_b32 s{sAd}, s{sAr}")
                pre += wrap_add(sAr, sAr, A_SLOT, 3 * A_SLOT)
                pre.append(f"s_add_u32 s{sAk}, s{sAk}, 128")
            pre.append(f"v_add_u32 v{vXc}, s{sAr}, v{vXa + (1 - p)}")
            pre.append(f"v_add_u32 v{vWc}, s{sWn}, v{vWa}")
            pre.append(f"v_add_u32 v{vWc+1}, s{sWn}, v{vWa+1}")
            m = mfmas(p)
            oth = reads(1 - p) if rd else []
            d = (dmaW() + dmaA(1 - p)) if dma else []
            merged = merge(oth, d)
            a.e(m[0])
            for x in pre: a.e(x)
            for x in interleave(m[1:], merged, 0, int(len(m) * opt.get("rdfrac", 0.8))): a.e(x)
            a.e(f"s_mov_b32 s{sWd}, s{sWn}")
        stamp(a, 4, opt)
        a.e(f"s_mov_b32 s{sCnt}, 14")
        a.label(f"{name}_loop{cls}")
        iteration(0, 2 * n); iteration(1, 2 * n)
        a.e(f"s_sub_u32 s{sCnt}, s{sCnt}, 1")
        a.e(f"s_cmp_lg_u32 s{sCnt}, 0")
        a.e(f"s_cbranch_scc1 {name}_loop{cls}")
        iteration(0, 2 * n, dma=False)
        iteration(1, n, dma=False)
        iteration(0, 0, dma=False)
        a.e(f"s_waitcnt lgkmcnt(0)")
        a.e("s_barrier")
        a.e(f"s_and_b32 s{sT}, s{s_wave}, 1")
        a.e(f"s_lshl_b32 s{sT}, s{sT}, 9")
        a.e(f"s_lshr_b32 s{sT2}, s{s_wave}, 1")
        a.e(f"s_lshl_b32 s{sT2}, s{sT2}, 7")
        a.e(f"s_add_u32 s{sT2}, s{sT}, s{sT2}")
        a.e(f"v_and_b32 v{vT0}, 15, v{vL}")
        a.e(f"v_lshlrev_b32 v{vT0}, 3, v{vT0}")
        a.e(f"v_add_u32 v{vT1}, s{sT2}, v{vT0}")
        a.e(f"v_add_u32 v{vT2}, s{sT}, v{vT0}")
        a.e(f"ds_write_b64 v{vT1}, v[{vMean}:{vRs}]")
        a.e(f"s_mul_i32 s{sT}, s{s_nt}, 224")
        a.e(f"s_lshl_b32 s{sT2}, s{s_t0}, 4")
        a.e(f"s_add_u32 s{sT}, s{sT}, s{sT2}")
        a.e(f"s_lshl_b32 s{sT}, s{sT}, 2")
        a.e(f"v_lshlrev_b32 v{vT0}, 4, v{vG}")
        CS = WF
        for mat in range(2):
            a.e(f"s_add_u32 s{sT2}, s{sT}, {(WS_CS1 if mat == 0 else WS_CS3) - WS_ST}")
            for t in range(NP):
                b = CS + (mat * NP + t) * 4
                a.e(f"buffer_load_dwordx4 v[{b}:{b+3}], v{vT0}, s[{sS}:{sS+3}], s{sT2} offen offset:{64*t}")
        for x in mfmas(1): a.e(x)
        stamp(a, 5, opt)
        a.e(f"s_waitcnt lgkmcnt(0)")
        a.e("s_barrier")
        MR = XF
        for rt in range(4):
            a.e(f"ds_read_b64 v[{MR+2*rt}:{MR+2*rt+1}], v{vT2} offset:{128*rt}")
        a.e(f"s_and_b32 s{sT}, s{s_wave}, 1")
        a.e(f"s_lshl_b32 s{sT}, s{sT}, 6")
        a.e(f"s_lshl_b32 s{sT2}, s{s_mt}, 7")
        a.e(f"s_add_u32 s{sT}, s{sT}, s{sT2}")
        a.e(f"v_and_b32 v{vT0}, 15, v{vL}")
        a.e(f"v_add_u32 v{vT0}, s{sT}, v{vT0}")
        a.e(f"v_mul_u32_u24 v{vT0}, {PW}, v{vT0}")
        a.e(f"s_mul_i32 s{sT}, s{s_nt}, 224")
        a.e(f"s_lshl_b32 s{sT2}, s{s_t0}, 4")
        a.e(f"s_add_u32 s{sT}, s{sT}, s{sT2}")
        a.e(f"s_lshl_b32 s{sT}, s{sT}, 1")
        a.e(f"v_add_u32 v{vT0}, s{sT}, v{vT0}")
        a.e(f"v_and_b32 v{vT1}, 1, v{vG}")
        a.e(f"v_lshlrev_b32 v{vT1}, 5, v{vT1}")
        a.e(f"v_lshrrev_b32 v{vT2}, 1, v{vG}")
        a.e(f"v_lshl_add_u32 v{vT1}, v{vT2}, 4, v{vT1}")
        a.e(f"v_add_u32 v{vT1}, v{vT0}, v{vT1}")
        a.e(f"v_lshl_add_u32 v{vT0}, v{vG}, 3, v{vT0}")
        a.e("s_waitcnt vmcnt(0) lgkmcnt(0)")
        NM, RL, I2 = XF + 8, XF + 12, XF + 16
        a.e(f"s_mov_b32 s{sT}, 0xbfb8aa3b")
        for rt in range(4):
            a.e(f"v_sub_f32 v{NM+rt}, 0, v{MR+2*rt}")
            a.e(f"v_mul_f32 v{RL+rt}, s{sT}, v{MR+2*rt+1}")
            a.e(f"v_mul_f32 v{I2+rt}, v{MR+2*rt+1}, v{MR+2*rt+1}")
        for rt in range(4):
            a.e(f"v_rcp_f32 v{I2+rt}, v{I2+rt}")
        E = XF + 20
        OUTS = [XF + 24, XF + 28]
        oi = 0
        def bc(reg):
            base = reg & ~1
            return f"v[{base}:{base+1}]", reg & 1
        def pk(op, d, srcs):
            ops = []; sel = []; selhi = []
            for kind, r in srcs:
                if kind == 'p': ops.append(f"v[{r}:{r+1}]"); sel.append(0); selhi.append(1)
                else:
                    o, hi = bc(r); ops.append(o); sel.append(hi); selhi.append(hi)
            a.e(f"{op} v[{d}:{d+1}], " + ", ".join(ops) + f" op_sel:[{','.join(map(str,sel))}] op_sel_hi:[{','.join(map(str,selhi))}]")
        for rt in range(4):
            t = 0
            while t < NP:
                pair = (t + 1 < NP)
                O = OUTS[oi]; oi ^= 1
                for tt in range(2 if pair else 1):
                    cg = acc(0, t + tt, rt, NP); cu = acc(1, t + tt, rt, NP)
                    sg = CS + (0 * NP + t + tt) * 4; su = CS + (1 * NP + t + tt) * 4
                    for r in (0, 2): pk("v_pk_fma_f32", cg + r, [('b', NM + rt), ('p', sg + r), ('p', cg + r)])
                    for r in (0, 2): pk("v_pk_mul_f32", E + r, [('b', RL + rt), ('p', cg + r)])
                    for r in range(4): a.e(f"v_exp_f32 v{E+r}, v{E+r}")
                    for r in (0, 2): pk("v_pk_fma_f32", cu + r, [('b', NM + rt), ('p', su + r), ('p', cu + r)])
                    for r in (0, 2): pk("v_pk_fma_f32", E + r, [('p', E + r), ('b', I2 + rt), ('b', I2 + rt)])
                    for r in range(4): a.e(f"v_rcp_f32 v{E+r}, v{E+r}")
                    for r in (0, 2): pk("v_pk_mul_f32", cg + r, [('p', cg + r), ('p', cu + r)])
                    for r in (0, 2): pk("v_pk_mul_f32", cg + r, [('p', cg + r), ('p', E + r)])
                    a.e(f"v_cvt_pk_bf16_f32 v{O+2*tt}, v{cg}, v{cg+1}")
                    a.e(f"v_cvt_pk_bf16_f32 v{O+2*tt+1}, v{cg+2}, v{cg+3}")
                off = rt * 16 * PW + 32 * t
                a.e(f"s_mov_b32 s{sT2}, {off}")
                if pair:
                    a.e("s_nop 0")
                    a.e(f"v_permlane16_swap_b32 v{O}, v{O+2}")
                    a.e(f"v_permlane16_swap_b32 v{O+1}, v{O+3}")
                    a.e(f"buffer_store_dwordx4 v[{O}:{O+3}], v{vT1}, s[{sH}:{sH+3}], s{sT2} offen")
                    t += 2
                else:
                    a.e(f"buffer_store_dwordx2 v[{O}:{O+1}], v{vT0}, s[{sH}:{sH+3}], s{sT2} offen")
                    t += 1
        stamp(a, 6, opt)
        if opt.get("stamp"): a.e("s_waitcnt vmcnt(0)")
        stamp(a, 7, opt)
        dump_stamps(a, 8, opt, name, s_wave)
        wg_end(a, opt, name, s_wave)
        a.e("s_endpgm")
    a.label(f"{name}_end")
    a.e("s_endpgm")
    kernels.append((name, NV, 96))
    return a.text()

def build(launch_list, bodies):
    hdr = open("interleave_layers__sliding_local_dilated__glu_gated_swiglu__prompt.s.ref").read().split("; Override launch")[0]
    out = hdr
    for (k, g, b, lds) in launch_list:
        out += f"; @launch kernel={k} grid=({g},1,1) block=({b},1,1) lds={lds}\n"
    out += '.amdgcn_target "amdgcn-amd-amdhsa--gfx950"\n'
    out += "".join(bodies)
    out += '.section .rodata,"a"\n'
    for (n, vg, sg) in kernels:
        out += ".p2align 6\n" + kernel_desc(n, vg, sg)
    return out

def parse_opts(args):
    opt = {}
    for x in args:
        k, _, v = x.partition("=")
        opt[k] = float(v) if v else True
    return opt

if __name__ == "__main__":
    opt = parse_opts(sys.argv[2:])
    b = [gen_g3("g3_kernel", opt)]
    open(sys.argv[1], "w").write(build([("g3_kernel", 256, 512, 163840)] * int(opt.get("rep", 1)), b))
```

```python
import sys
sys.path.insert(0, "dev")
from asmlib import *
import gen2
from gen2 import kernel_header, make_srd, build, kernels

RES_OFF = 200 << 20

def prologue(a, name, nwg=256):
    kernel_header(a, name)
    a.e(f"s_cmp_ge_u32 s2, {nwg}")
    a.e(f"s_cbranch_scc1 {name}_end")
    a.e("s_load_dwordx2 s[4:5], s[0:1], 72")
    a.e("s_load_dwordx2 s[6:7], s[0:1], 64")
    a.e("v_lshrrev_b32 v1, 6, v0")
    a.e("s_nop 0")
    a.e("v_readfirstlane_b32 s3, v1")
    a.e("v_and_b32 v1, 63, v0")
    a.e("s_waitcnt lgkmcnt(0)")
    make_srd(a, 8, 4, 5, 128 << 20)
    make_srd(a, 12, 4, 5, 16 << 20, RES_OFF)

def tstart(a):
    a.e("s_barrier")
    a.e("s_memtime s[60:61]")
    a.e("s_memrealtime s[62:63]")
    a.e("s_waitcnt lgkmcnt(0)")

def tend(a, name, kidx, barrier=True):
    a.e("s_waitcnt vmcnt(0) lgkmcnt(0)")
    if barrier: a.e("s_barrier")
    a.e("s_memtime s[64:65]")
    a.e("s_memrealtime s[66:67]")
    a.e("s_waitcnt lgkmcnt(0)")
    a.e("s_sub_u32 s64, s64, s60")
    a.e("s_sub_u32 s66, s66, s62")
    a.e("s_getreg_b32 s68, hwreg(HW_REG_XCC_ID)")
    a.e("v_mov_b32 v4, s64")
    a.e("v_mov_b32 v5, s66")
    a.e("v_mov_b32 v6, s68")
    a.e("v_mov_b32 v7, s62")
    a.e("s_lshl_b32 s69, s2, 4")
    a.e("s_add_u32 s69, s69, s3")
    a.e("s_lshl_b32 s69, s69, 4")
    a.e(f"s_add_u32 s69, s69, {kidx * 65536}")
    a.e("v_mov_b32 v8, 0")
    a.e("s_mov_b64 exec, 1")
    a.e("buffer_store_dwordx4 v[4:7], v8, s[12:15], s69 offen")
    a.e("s_waitcnt vmcnt(0)")
    a.label(f"{name}_end")
    a.e("s_endpgm")
```

```python
from mblib import *
def mk(name, kidx, pat="g4", U=2, swap=0, stag=True, depth=40, reps=3, mf=16, tsplit=True, askip=False, wfirst=True):
    a = Asm()
    prologue(a, name)
    a.e("s_and_b32 s20, s2, 7"); a.e("s_lshr_b32 s21, s2, 4"); a.e("s_lshr_b32 s30, s2, 3"); a.e("s_and_b32 s30, s30, 1")
    a.e(f"s_cmp_ge_u32 s3, 4"); a.e(f"s_cbranch_scc1 {name}_burn")
    if pat == "g4":
        NS = 48; step = 65536; nw = 2; na = 2
        a.e("v_lshrrev_b32 v2, 4, v1"); a.e("v_lshlrev_b32 v2, 14, v2")
        if tsplit:
            a.e("v_and_b32 v3, 7, v1"); a.e("v_lshl_add_u32 v2, v3, 4, v2"); a.e("v_and_b32 v3, 8, v1"); a.e("v_lshl_add_u32 v2, v3, 7, v2")
        else:
            a.e("v_and_b32 v3, 15, v1"); a.e("v_lshl_add_u32 v2, v3, 4, v2")
        a.e("s_lshl_b32 s24, s3, 12"); a.e("v_add_u32 v16, s24, v2"); a.e("v_add_u32 v17, 2048, v16")
        a.e("s_lshr_b32 s33, s21, 3"); a.e("s_and_b32 s23, s21, 7")
        a.e(f"s_mul_i32 s22, s33, {56 * step}"); a.e(f"s_lshl_b32 s24, s23, {7 if tsplit else 8}"); a.e("s_add_u32 s22, s22, s24")
        a.e("s_add_u32 s23, s23, s20"); a.e("s_and_b32 s23, s23, 7"); a.e("s_mul_i32 s38, s23, 6")
        a.e("s_lshl_b32 s34, s20, 1"); a.e("s_add_u32 s34, s34, s30"); a.e("s_lshl_b32 s34, s34, 1"); a.e("s_add_u32 s34, s34, s33")
    else:
        NS = 32; step = 32 * 6144; nw = 3; na = 2
        a.e("v_lshrrev_b32 v2, 3, v1"); a.e("v_lshlrev_b32 v2, 2, v2"); a.e("v_add_u32 v2, s3, v2"); a.e("v_mul_u32_u24 v2, 6144, v2")
        a.e("v_and_b32 v3, 7, v1"); a.e("v_lshl_add_u32 v16, v3, 4, v2"); a.e("v_add_u32 v17, 2048, v16"); a.e("v_add_u32 v18, 4096, v16")
        a.e("s_lshl_b32 s22, s21, 7")
        a.e("s_lshl_b32 s23, s20, 1"); a.e("s_add_u32 s23, s23, s21"); a.e("s_and_b32 s23, s23, 15"); a.e("s_lshl_b32 s38, s23, 1")
        a.e("s_lshl_b32 s34, s20, 1"); a.e("s_add_u32 s34, s34, s30")
    astep = 10240 if askip else 8192
    a.e(f"s_mul_i32 s34, s34, {56 * astep}"); a.e(f"s_add_u32 s34, s34, {16 << 20}")
    if askip:
        for j in range(2):
            a.e("v_lshrrev_b32 v4, 3, v1"); a.e("s_lshl_b32 s24, s3, 4"); a.e(f"s_add_u32 s24, s24, {8*j}"); a.e("v_add_u32 v4, s24, v4")
            a.e("v_add_u32 v5, 4, v4"); a.e("v_mul_u32_u24 v5, 9363, v5"); a.e("v_lshrrev_b32 v5, 16, v5"); a.e("v_add_u32 v4, v4, v5")
            a.e("v_and_b32 v5, 7, v1"); a.e("v_lshlrev_b32 v5, 4, v5"); a.e(f"v_lshl_add_u32 v{20+j}, v4, 7, v5")
    else:
        a.e("s_lshl_b32 s24, s3, 11"); a.e("v_lshlrev_b32 v20, 4, v1"); a.e("v_add_u32 v20, s24, v20"); a.e("v_add_u32 v21, 1024, v20")
    if swap:
        a.e(f"s_and_b32 s24, s21, {1 if stag else 0}")
        a.e(f"s_lshr_b32 s38, s38, 3"); a.e(f"s_mul_i32 s38, s38, {2*U}"); a.e(f"s_mul_i32 s24, s24, {U}"); a.e("s_add_u32 s38, s38, s24")
    a.e(f"s_mul_i32 s29, s3, {(nw+na) * 1024}")
    a.e("s_mov_b32 s40, s38")
    tstart(a)
    nper = NS * reps // U
    a.e(f"s_mov_b32 s26, {nper // 2}")
    a.label(f"{name}_loop")
    for half in range(2):
        a.e("s_barrier")
        if swap:
            a.e(f"s_mul_i32 s41, s40, {65536 // U + 1}"); a.e("s_lshr_b32 s41, s41, 16"); a.e("s_xor_b32 s41, s41, s30"); a.e(f"s_mul_i32 s41, s41, {U}")
        else: a.e("s_mov_b32 s41, s40")
        def W():
            a.e(f"s_mul_i32 s28, s41, {step}"); a.e("s_add_u32 s28, s28, s22")
            for u in range(U):
                for j in range(nw):
                    a.e(f"s_add_u32 m0, s29, {((half*U+u) % 7) * 20480 + j * 1024}"); a.e("s_nop 0")
                    a.e(f"buffer_load_dwordx4 v{16+j}, s[8:11], s28 offen lds")
                a.e(f"s_add_u32 s28, s28, {step}")
        def A():
            a.e(f"s_mul_i32 s36, s41, {astep}"); a.e("s_add_u32 s36, s36, s34")
            for u in range(U):
                for j in range(na):
                    a.e(f"s_add_u32 m0, s29, {((half*U+u) % 7) * 20480 + (nw+j) * 1024}"); a.e("s_nop 0")
                    a.e(f"buffer_load_dwordx4 v{20+j}, s[8:11], s36 offen sc1 lds")
                a.e(f"s_add_u32 s36, s36, {astep}")
        if wfirst: W(); A()
        else: A(); W()
        a.e(f"s_add_u32 s40, s40, {U}"); a.e(f"s_cmp_ge_u32 s40, {NS}"); a.e(f"s_cselect_b32 s41, {NS}, 0"); a.e("s_sub_u32 s40, s40, s41")
        a.e(f"s_waitcnt vmcnt({depth})")
    a.e("s_sub_u32 s26, s26, 1"); a.e("s_cmp_lg_u32 s26, 0"); a.e(f"s_cbranch_scc1 {name}_loop")
    a.e(f"s_branch {name}_fin")
    a.label(f"{name}_burn")
    a.e("v_lshlrev_b32 v2, 4, v1"); a.e("s_lshl_b32 s20, s3, 10"); a.e("v_add_u32 v2, s20, v2")
    for i in range(16, 256): a.e(f"v_mov_b32 v{i}, 0x3c003c00")
    tstart(a)
    a.e(f"s_mov_b32 s26, {nper // 2}")
    a.label(f"{name}_cl")
    k = 0
    for half in range(2):
        a.e("s_barrier")
        for u in range(U):
            hb = k & 1; k += 1
            fb = 128 + hb * 64
            rd = [[f"ds_read_b128 v[{128 + (1-hb)*64 + (i%16)*4}:{128 + (1-hb)*64 + (i%16)*4+3}], v2 offset:{(i*2048)%65536}"] for i in range(mf // 2 + 2)]
            m = [f"v_mfma_f32_16x16x32_bf16 v[{16+(i%28)*4}:{16+(i%28)*4+3}], v[{fb+(i%8)*4}:{fb+(i%8)*4+3}], v[{fb+32+(i//8%4)*4}:{fb+32+(i//8%4)*4+3}], v[{16+(i%28)*4}:{16+(i%28)*4+3}]" for i in range(mf)]
            for x in interleave(m, rd, 0, mf - 4): a.e(x)
            a.e("s_waitcnt lgkmcnt(0)")
    a.e("s_sub_u32 s26, s26, 1"); a.e("s_cmp_lg_u32 s26, 0"); a.e(f"s_cbranch_scc1 {name}_cl")
    a.label(f"{name}_fin")
    tend(a, name, kidx, barrier=False)
    kernels.append((name, 256, 102))
    return a.text(), nper * U / 100.0
cfgs = []
def add(**kw): cfgs.append(kw)
add(U=1); add(U=2); add(U=3); add(U=2, swap=1); add(U=3, swap=1); add(U=3, swap=1, stag=False); add(U=2, askip=True); add(U=3, swap=1, askip=True); add(U=2, tsplit=False)
add(pat="g1", mf=27, U=1); add(pat="g1", mf=27, U=2); add(pat="g1", mf=27, U=2, swap=1); add(pat="g1", mf=27, U=1, swap=1); add(pat="g1", mf=27, U=2, wfirst=False); add(pat="g1", mf=27, U=2, askip=True)
if __name__ == "__main__":
    L = []; B = []; meta = []
    for i, c in enumerate(cfgs):
        nm = f"k{i}_kernel"
        t, nb = mk(nm, i, **c)
        B.append(t); L.append((nm, 256, 512, 163840)); meta.append((c, nb))
    open(sys.argv[1], "w").write(build(L, B))
    import json
    json.dump(meta, open(sys.argv[1] + ".json", "w"))
```

```python
from common import *
import res

AS = 18432; RA = 4; LW = 73984; WSL = 12416; WG = 3104; RW = 6; PW = 6144
XSCR = 18432
def wslot(st): return LW + ((st + 1) % RW) * WSL
def aslot(u): return ((u + 1) % RA) * AS
def events(): return barrier_events(32) + [("BE", 31, 31)]
PH = 0
sW = 8; sXR = 12
sWo, sWlo, sWhi, sWm = 16, 17, 18, 19
sAo, sAlo, sAhi, sAm, sHo, sHm = 20, 21, 22, 23, 24, 25
vWp = 10
vAp = 13


def k0_units(a, opt, dst):
    r = opt.get("g1rot", "x")
    if r == "ci": a.e(f"s_mov_b32 s{dst}, s{sCI}")
    elif r == "x": a.e(f"s_lshl_b32 s{dst}, s{sX}, 1")
    else: a.e(f"s_mov_b32 s{dst}, 0")


def g1_w_setup(a, opt, lay_next):
    make_srd(a, sW, pWQKV, 1024 * PW)
    a.e(f"v_lshrrev_b32 v{vT0}, 3, v{vL}")
    if lay_next == 0:
        a.e(f"v_and_b32 v{vT1}, 3, v{vT0}"); a.e(f"v_lshlrev_b32 v{vT1}, 3, v{vT1}")
        a.e(f"v_and_b32 v{vT0}, 4, v{vT0}"); a.e(f"v_add_u32 v{vT0}, v{vT0}, v{vT1}")
    else:
        a.e(f"v_lshlrev_b32 v{vT0}, 2, v{vT0}")
    a.e(f"v_add_u32 v{vT0}, s{sW4}, v{vT0}")
    a.e(f"v_mul_u32_u24 v{vT0}, {PW}, v{vT0}")
    a.e(f"v_and_b32 v{vT1}, 7, v{vL}")
    a.e(f"v_lshl_add_u32 v{vWp}, v{vT1}, 4, v{vT0}")
    a.e(f"v_add_u32 v{vWp+1}, 2048, v{vWp}")
    a.e(f"v_add_u32 v{vWp+2}, 4096, v{vWp}")
    a.e(f"s_mul_i32 s{sWm}, s{sW4}, {WG}")
    a.e(f"s_lshl_b32 s{sWlo}, s{sHP}, 7")
    a.e(f"s_add_u32 s{sWhi}, s{sWlo}, {1024 * PW}")
    k0_units(a, opt, sT)
    a.e(f"s_mul_i32 s{sT}, s{sT}, {64 * PW}")
    a.e(f"s_add_u32 s{sWo}, s{sWlo}, s{sT}")


def g1_nxt(a, vm, n):
    return [(wslot(st), wslot(st) + WSL, (lambda st=st: g1_w_issue(a, st, vm, None))) for st in range(n)]


def g1_w_issue(a, st, vm, tag):
    for i in range(3):
        a.e(f"s_add_u32 m0, s{sWm}, {wslot(st) + i * 1024}"); a.e("s_nop 0")
        a.e(f"buffer_load_dwordx4 v{vWp+i}, s[{sW}:{sW+3}], s{sWo} offen lds")
        vm.op(tag)
    a.e(f"s_add_u32 s{sWo}, s{sWo}, {32 * PW}"); a.e(f"s_cmp_eq_u32 s{sWo}, s{sWhi}"); a.e(f"s_cselect_b32 s{sWo}, s{sWlo}, s{sWo}")


def pretouch_o(a, vm):
    a.e(f"s_lshl_b32 s{sT}, s{sMT}, 4"); a.e(f"s_add_u32 s{sT}, s{sT}, s{sHP}"); a.e(f"s_lshl_b32 s{sT}, s{sT}, 2")
    a.e(f"s_add_u32 s{sT}, s{sT}, s{sW4}"); a.e(f"s_lshl_b32 s{sT}, s{sT}, 12")
    a.e(f"s_lshl_b32 s{sT2}, s{sLB}, 22"); a.e(f"s_add_u32 s{sT}, s{sT}, s{sT2}"); a.e(f"s_add_u32 s{sT}, s{sT}, {WS_O}")
    a.e(f"v_lshlrev_b32 v{vT0}, 7, v{vL}")
    a.e("s_mov_b64 exec, 0xffffffff")
    a.e(f"buffer_load_dword v9, v{vT0}, s[{SW}:{SW+3}], s{sT} offen sc1"); vm.op()
    a.e("s_mov_b64 exec, -1")


def assist(a, opt, hooks):
    ah = opt.get("g1as", 4)
    if not ah: return
    assert opt.get("g1rot", "x") == "x"
    a.e("s_lshr_b32 s40, s2, 3"); a.e("s_lshl_b32 s40, s40, 2"); a.e(f"s_add_u32 s40, s40, s{sW4}")
    a.e("s_and_b32 s41, s40, 63"); a.e(f"s_mul_i32 s41, s41, {PW}")
    a.e("s_lshr_b32 s40, s40, 6"); a.e("s_lshl_b32 s40, s40, 10"); a.e("s_add_u32 s40, s40, s41"); a.e("s_add_u32 s40, s40, 384")
    a.e(f"s_add_u32 s40, s{pWQKV}, s40"); a.e(f"s_addc_u32 s41, s{pWQKV+1}, 0")
    def go(u):
        a.e(f"s_lshl_b32 s42, s{sX}, 1"); a.e(f"s_add_u32 s42, s42, {u}"); a.e("s_and_b32 s42, s42, 15"); a.e(f"s_mul_i32 s42, s42, {64 * PW}")
        a.e("s_add_u32 s44, s40, s42"); a.e("s_addc_u32 s45, s41, 0")
        for seg in range(3):
            for h in range(2): a.e(f"s_load_dword s43, s[44:45], {seg * 2048 + h * 64}")
    for p in range(-1, 16):
        us = [p + ah] if p >= 0 else list(range(2, ah))
        us = [u for u in us if u < 16]
        if not us: continue
        nm = f"B{p}" if p >= 0 else "Bm1"
        h0 = hooks.get(nm)
        hooks[nm] = (lambda us=us, h0=h0: ([go(u) for u in us], h0() if h0 else None))


def g1_sched(opt):
    la = lambda n, idx: 3
    cap = lambda idx: 2 if idx < 1 else 4
    nxtcap = lambda idx, n: opt.get("g2pc", 8)
    return la, cap, nxtcap


def g1_load0(a, opt):
    vm = VM(a)
    g1_w_setup(a, opt, 0)
    g1_w_issue(a, 0, vm, ("W", 0))
    make_srd(a, sXR, pAX, 4 * MB)
    a.e(f"v_lshrrev_b32 v{vT0}, 3, v{vL}")
    a.e(f"v_and_b32 v{vT1}, 6, v{vT0}")
    a.e(f"v_and_b32 v{vAp}, 7, v{vL}")
    a.e(f"v_xor_b32 v{vT1}, v{vT1}, v{vAp}")
    a.e(f"v_lshlrev_b32 v{vT1}, 4, v{vT1}")
    a.e(f"v_lshl_add_u32 v{vAp}, v{vT0}, 11, v{vT1}")
    for i in range(1, 4): a.e(f"v_add_u32 v{vAp+i}, {i * 16384}, v{vAp}")
    a.e(f"s_lshl_b32 s{sAlo}, s{sMT}, 18"); a.e(f"s_lshl_b32 s{sT}, s{sW4}, 16"); a.e(f"s_add_u32 s{sAlo}, s{sAlo}, s{sT}")
    a.e(f"s_add_u32 s{sAhi}, s{sAlo}, 2048")
    k0_units(a, opt, sT); a.e(f"s_lshl_b32 s{sT}, s{sT}, 7"); a.e(f"s_add_u32 s{sAo}, s{sAlo}, s{sT}")
    a.e(f"s_mul_i32 s{sHo}, s{sW4}, {(-24 * 2048) & 0xffffffff}"); a.e(f"s_sub_u32 s{sHo}, s{sHo}, 32768")
    a.e(f"s_cmp_eq_u32 s{sMT}, 0"); a.e(f"s_cselect_b32 s{sHo}, 0x7f000000, s{sHo}")
    a.e(f"s_lshl_b32 s{sAm}, s{sW4}, 12"); a.e(f"s_add_u32 s{sAm}, s{sAm}, 2048")
    a.e(f"s_lshl_b32 s{sHm}, s{sW4}, 10")
    a.e(f"s_cmp_eq_u32 s{sW4}, 0"); a.e(f"s_cselect_b32 s26, 0xffffff00, -1"); a.e("s_mov_b32 s27, -1")
    def issW(st): g1_w_issue(a, st, vm, ("W", st))
    def issA(u):
        l = a.new("nh")
        a.e(f"s_cmp_ge_u32 s{sW4}, 2"); a.e(f"s_cbranch_scc1 {l}")
        a.e(f"s_add_u32 m0, s{sHm}, {aslot(u)}"); a.e(f"s_add_u32 s{sT}, s{sAo}, s{sHo}")
        a.e("s_mov_b64 exec, s[26:27]")
        a.e(f"buffer_load_dwordx4 v{vAp}, s[{sXR}:{sXR+3}], s{sT} offen lds")
        a.e("s_mov_b64 exec, -1")
        a.label(l)
        for i in range(4):
            a.e(f"s_add_u32 m0, s{sAm}, {aslot(u) + i * 1024}"); a.e("s_nop 0")
            a.e(f"buffer_load_dwordx4 v{vAp+i}, s[{sXR}:{sXR+3}], s{sAo} offen lds"); vm.op(("A", u))
        a.e(f"s_add_u32 s{sAo}, s{sAo}, 128"); a.e(f"s_cmp_eq_u32 s{sAo}, s{sAhi}"); a.e(f"s_cselect_b32 s{sAo}, s{sAlo}, s{sAo}")
    W = Stream("W", 32, RW, issW, lambda u: (wslot(u), wslot(u) + WSL), issued=1)
    A = Stream("A", 32, RA, issA, lambda u: (aslot(u), aslot(u) + AS), unit=2)
    sXC = 32
    make_srd(a, 28, pDBG, 256)
    a.e(f"s_getreg_b32 s{sXC}, hwreg(HW_REG_XCC_ID)")
    a.e(f"s_and_b32 s{sXC}, s{sXC}, 15"); a.e(f"s_or_b32 s{sXC}, s{sXC}, 0x80")
    a.e(f"s_lshr_b32 s33, s{sCI}, 2"); a.e(f"s_cmp_eq_u32 s{sW4}, 3"); a.e("s_cselect_b32 s33, s33, 64")
    def arrive(k):
        l = a.new("ar")
        a.e(f"s_cmp_eq_u32 s33, {k}"); a.e(f"s_cbranch_scc1 {l}"); a.label(f"{l}_b")
        a.ool([f"{l}:", f"v_mov_b32 v72, s{sXC}", "v_mov_b32 v73, 0", "s_mov_b64 exec, 1",
               f"buffer_store_byte v72, v73, s[28:31], s2 offen{SC}", "s_mov_b64 exec, -1", f"s_branch {l}_b"])
    def hs1():
        a.e(f"v_lshlrev_b32 v71, 2, v{vL}")
        a.e(f"buffer_load_dword v72, v71, s[28:31], 0 offen sc1"); vm.op("HS")
    def hs2():
        l = a.new("hs")
        vm.wait("HS")
        a.e("v_and_b32 v73, 0x80808080, v72")
        a.e("v_cmp_ne_u32 vcc, 0x80808080, v73")
        a.e(f"s_cbranch_vccnz {l}")
        a.label(f"{l}_b")
        h = Asm()
        h.label(l)
        h.e(f"buffer_load_dword v72, v71, s[28:31], 0 offen sc1")
        spin_guard(h)
        h.e("s_waitcnt vmcnt(0)")
        h.e("v_and_b32 v73, 0x80808080, v72")
        h.e("v_cmp_ne_u32 vcc, 0x80808080, v73")
        h.e(f"s_cbranch_vccnz {l}")
        h.e(f"s_branch {l}_b")
        a.ool([x.strip() for x in h.L])
        a.e(f"s_lshl_b32 s{sT}, s{sMT}, 11"); a.e(f"s_mul_i32 s{sT2}, s{sW4}, 288"); a.e(f"s_add_u32 s{sT}, s{sT}, s{sT2}")
        a.e(f"s_add_u32 s{sT}, s{sT}, {M_S0}")
        a.e("s_mov_b64 exec, 0x3ffff")
        a.e(f"buffer_load_dwordx4 {v(76,4)}, v{vL16}, s[{SW}:{SW+3}], s{sT} offen{SC}"); vm.op("S0")
        a.e("s_mov_b64 exec, -1")
        a.e(f"s_add_u32 s{sT2}, s{sT2}, {L_ST}"); a.e(f"v_add_u32 v75, s{sT2}, v{vL16}")
        a.e(f"s_and_b32 s{sT}, s{sX}, 3"); a.e(f"s_lshl_b32 s{sT}, s{sT}, 3")
        a.e(f"v_bfe_u32 v72, v72, s{sT}, 8")
        a.e(f"v_cmp_ne_u32 vcc, s{sXC}, v72")
        a.e(f"s_lshr_b32 s{sT}, s{sX}, 2")
        a.e(f"s_lshl_b32 s{sT2}, 0x55555555, s{sT}")
        a.e(f"s_or_b32 s{sT}, vcc_lo, vcc_hi"); a.e(f"s_and_b32 s{sT}, s{sT}, s{sT2}")
        a.e(f"s_cselect_b32 s{sSLOW}, 1, 0")
        if opt.get("forceslow"): a.e(f"s_mov_b32 s{sSLOW}, 1")
        set_mode(a, opt)
    def hs3():
        vm.wait("S0")
        a.e(f"v_mov_b32 v72, s{sSLOW}"); a.e(f"v_mov_b32 v73, {L_MODE}")
        a.e("s_mov_b64 exec, 0x3ffff")
        a.e(f"ds_write_b128 v75, {v(76,4)}")
        a.e("ds_write_b32 v73, v72")
        a.e("s_mov_b64 exec, -1")
    wstride = opt.get("warm", 0)
    warm = []
    if wstride:
        a.e("s_and_b32 s34, s2, 127"); a.e(f"s_lshl_b32 s34, s34, 2"); a.e(f"s_add_u32 s34, s34, s{sW4}"); a.e("s_mul_i32 s34, s34, 14336")
        a.e("s_cmp_lt_u32 s2, 128")
        a.e(f"s_cselect_b32 s36, s{pW1}, s{pW3}"); a.e(f"s_cselect_b32 s37, s{pW1+1}, s{pW3+1}")
        a.e("s_add_u32 s36, s36, s34"); a.e("s_addc_u32 s37, s37, 0")
        warm += [f"s_load_dword s35, s[36:37], {o}" for o in range(0, 14336, wstride)]
        if opt.get("warm2", 1):
            a.e(f"s_lshl_b32 s34, s2, 2"); a.e(f"s_add_u32 s34, s34, s{sW4}"); a.e("s_mul_i32 s34, s34, 7168")
            a.e(f"s_add_u32 s38, s{pW2}, s34"); a.e(f"s_addc_u32 s39, s{pW2+1}, 0")
            warm += [f"s_load_dword s35, s[38:39], {o}" for o in range(0, 7168, wstride)]
    def tail():
        pretouch_o(a, vm); res.res_w_setup(a, 1)
    hooks = {f"B{k+1}": (lambda k=k: arrive(k)) for k in range(4)}
    hooks["B11"] = hs1; hooks["B13"] = hs2; hooks["B15"] = hs3
    wper = -(-len(warm) // 14)
    for p in range(14):
        h0 = hooks.get(f"B{p}")
        hooks[f"B{p}"] = (lambda p=p, h0=h0: (h0() if h0 else None, a.es(warm[p * wper:(p + 1) * wper])))
    if opt.get("vw", 1):
        a.e("s_cmp_lt_u32 s2, 128")
        a.e(f"s_cselect_b32 s36, s{pW1}, s{pW3}"); a.e(f"s_cselect_b32 s37, s{pW1+1}, s{pW3+1}")
        a.e(f"s_mov_b32 s38, {1024 * 7168}"); a.e("s_mov_b32 s39, 0x00020000")
        a.e("s_and_b32 s34, s2, 127"); a.e("s_mul_i32 s34, s34, 57344")
        a.e(f"v_lshlrev_b32 v70, 7, v{vL}")
        at = [int(x) for x in str(opt.get("vwat", "1x5x9x13")).split("x")]
        nl = 112 // len(at)
        a.e(f"s_mul_i32 s35, s{sW4}, 14336"); a.e("s_add_u32 s34, s34, s35")
        def vwarm(i):
            if nl < 64:
                mk = (1 << nl) - 1
                a.e(f"s_mov_b32 exec_lo, {mk & 0xffffffff}"); a.e(f"s_mov_b32 exec_hi, {mk >> 32}")
            a.e("buffer_load_dword v69, v70, s[36:39], s34 offen"); vm.op()
            a.e("s_mov_b64 exec, -1")
            a.e(f"s_add_u32 s34, s34, {nl * 128}")
        for i, p in enumerate(at):
            nm = f"B{p}" if p < 16 else "BE"
            h0 = hooks.get(nm)
            hooks[nm] = (lambda i=i, h0=h0: (h0() if h0 else None, vwarm(i)))
    assist(a, opt, hooks)
    ts(a, opt, PH, 0)
    pre = ["A", "W", "W", "A", "W", "W"]
    la, cap, nxtcap = g1_sched(opt)
    log = []
    n = run_loader(a, vm, events(), [A, W], pre, la, cap, hooks, tail, res.res_nxt(a, 1, vm, 22), nxtcap, log, tl=opt.get("tl") == "g1a", lgk={"BE"})
    if opt.get("log"): print("g1a", log)
    ts(a, opt, PH, 2)
    return n


def g1_load1(a, opt, prefetched):
    vm = VM(a)
    a.e(f"s_lshl_b32 s{sAlo}, s{sMT}, 18"); a.e(f"s_lshl_b32 s{sT}, s{sXM}, 22"); a.e(f"s_add_u32 s{sAlo}, s{sAlo}, s{sT}")
    a.e(f"s_lshl_b32 s{sT}, s{sW4}, 11"); a.e(f"s_add_u32 s{sAlo}, s{sAlo}, s{sT}")
    a.e(f"s_lshl_b32 s{sAm}, s{sW4}, 12"); a.e(f"s_add_u32 s{sAm}, s{sAm}, 2048")
    a.e(f"s_add_u32 s{sAhi}, s{sAlo}, {32 * 8192}")
    k0_units(a, opt, sT)
    a.e(f"s_lshl_b32 s{sT2}, s{sT}, 14"); a.e(f"s_add_u32 s{sAo}, s{sAlo}, s{sT2}")
    sHlo, sHk, sMP = 26, 27, 28
    a.e(f"s_sub_u32 s{sMP}, s{sMT}, 1"); a.e(f"s_and_b32 s{sMP}, s{sMP}, 15")
    a.e(f"s_lshl_b32 s{sHlo}, s{sMP}, 15"); a.e(f"s_add_u32 s{sHlo}, s{sHlo}, {M_HALO}")
    a.e(f"s_lshl_b32 s{sHk}, s{sT}, 11")
    a.e(f"s_lshl_b32 s{sT}, s{sMT}, 9"); a.e(f"s_add_u32 s{sT}, s{sT}, {M_FL + 3 * 8192}")
    a.e(f"v_lshlrev_b32 v{res.vPO}, 5, v{vL}")
    nw1 = opt.get("w1n", 0)
    if nw1:
        a.e(f"s_lshl_b32 s32, s{sQ}, 2"); a.e(f"s_add_u32 s32, s32, s{sW4}"); a.e(f"s_mul_i32 s32, s32, {4 * PW}"); a.e(f"s_add_u32 s32, s32, s{sWlo}")
        a.e(f"s_add_u32 s32, s{pWQKV}, s32"); a.e(f"s_addc_u32 s33, s{pWQKV+1}, 0")
        for st in range(prefetched, prefetched + nw1):
            k0_units(a, opt, 34)
            a.e("s_lshl_b32 s34, s34, 1"); a.e(f"s_add_u32 s34, s34, {st}"); a.e("s_and_b32 s34, s34, 31"); a.e(f"s_mul_i32 s34, s34, {32 * PW}")
            a.e("s_add_u32 s36, s32, s34"); a.e("s_addc_u32 s37, s33, 0")
            for rr in range(4):
                for o in (0, 64, 2048, 2112, 4096, 4160): a.e(f"s_load_dword s35, s[36:37], {rr * PW + o}")
    ts(a, opt, PH, 0)
    poll(a, sT, res.vPO, res.vPL, 4, "0xffff")
    ts(a, opt, PH, 3)
    a.e(f"s_lshl_b32 s{sT}, s{sX}, 1"); a.e(f"s_sub_u32 s{sT}, s{sT}, 1")
    a.e(f"v_add_u32 v{vT0}, s{sT}, v{vG}"); a.e(f"v_and_b32 v{vT0}, 15, v{vT0}"); a.e(f"v_lshlrev_b32 v{vT0}, 9, v{vT0}")
    a.e(f"v_lshl_add_u32 v{res.vPO}, v{vI}, 5, v{vT0}")
    a.e(f"s_mov_b32 s{sT}, {M_HF}")
    a.e(f"s_mov_b32 s{sEXS}, -1"); a.e(f"s_mov_b32 s{sEXS+1}, 0xffff")
    poll(a, sT, res.vPO, res.vPL, 2, f"s[{sEXS}:{sEXS+1}]", acquire=True)
    ts(a, opt, PH, 1)
    def issW(st): g1_w_issue(a, st, vm, ("W", st))
    def issA(st):
        base = aslot(st >> 1) + (st & 1) * 1024
        l = a.new("nh")
        a.e(f"s_cmp_lg_u32 s{sW4}, {9 if opt.get('dbgnohalo') else st & 3}"); a.e(f"s_cbranch_scc1 {l}")
        a.e(f"s_add_u32 s{sT}, s{sHk}, {st * 1024}"); a.e(f"s_and_b32 s{sT}, s{sT}, 0x7fff")
        a.e(f"s_mov_b32 m0, {base}"); a.e(f"s_add_u32 s{sT}, s{sT}, s{sHlo}")
        a.e(f"buffer_load_dwordx4 v{vL16}, s[{SW}:{SW+3}], s{sT} offen sc1 lds")
        a.label(l)
        for i in range(2):
            a.e(f"s_add_u32 m0, s{sAm}, {base + i * 1024}"); a.e("s_nop 0")
            a.e(f"buffer_load_dwordx4 v{vL16}, s[{SW}:{SW+3}], s{sAo} offen offset:{i*1024} sc1 lds"); vm.op(("A", st))
        if not opt.get("dbgsameA"):
            a.e(f"s_add_u32 s{sAo}, s{sAo}, 8192"); a.e(f"s_cmp_eq_u32 s{sAo}, s{sAhi}"); a.e(f"s_cselect_b32 s{sAo}, s{sAlo}, s{sAo}")
    W = Stream("W", 32, RW, issW, lambda u: (wslot(u), wslot(u) + WSL), issued=prefetched)
    A = Stream("A", 32, 2 * RA, issA, lambda u: (aslot(u >> 1), aslot(u >> 1) + AS))
    SB = 32; HB = 64; vX = 80
    sSO = 29
    def hst_load():
        a.e(f"s_lshl_b32 s{sT}, s{sMP}, 12"); a.e(f"s_add_u32 s{sT}, s{sT}, {M_HST}")
        a.e(f"v_lshlrev_b32 v{vX+1}, 4, v{vI}"); a.e(f"v_lshl_add_u32 v{vX+1}, v{vG}, 10, v{vX+1}")
        l = a.new("hs")
        a.e(f"s_cmp_lg_u32 s{sW4}, 3"); a.e(f"s_cbranch_scc1 {l}")
        for i in range(4):
            a.e(f"buffer_load_dwordx4 {v(HB+4*i,4)}, v{vX+1}, s[{SW}:{SW+3}], s{sT} offen offset:{i*256} sc1")
        a.label(l)
        a.e(f"s_lshl_b32 s{sSO}, s{sMT}, 15"); a.e(f"s_lshl_b32 s{sT2}, s{sW4}, 9"); a.e(f"s_add_u32 s{sSO}, s{sSO}, s{sT2}")
        a.e(f"s_add_u32 s{sSO}, s{sSO}, {M_ST + 524288}")
        a.e(f"v_and_b32 v{vX}, 31, v{vL}"); a.e(f"v_lshlrev_b32 v{vX}, 4, v{vX}")
        a.e(f"v_lshrrev_b32 v{vT0}, 5, v{vL}"); a.e(f"v_lshl_add_u32 v{vX}, v{vT0}, 14, v{vX}")
    def st_load(k):
        for i in (2 * k, 2 * k + 1):
            a.e(f"buffer_load_dwordx4 {v(SB+4*i,4)}, v{vX}, s[{SW}:{SW+3}], s{sSO} offen offset:{(i&1)*2048} sc1"); vm.op("S")
        a.e(f"s_add_u32 s{sSO}, s{sSO}, 4096")
    def st_fin():
        for w in (4, 2, 1):
            for i in range(w):
                for r in (0, 2): a.e(f"v_pk_add_f32 {v(SB+4*i+r,2)}, {v(SB+4*i+r,2)}, {v(SB+4*(i+w)+r,2)}")
        a.e(f"v_add_f32 v{SB}, v{SB}, v{SB+2}"); a.e(f"v_add_f32 v{SB+1}, v{SB+1}, v{SB+3}")
        a.e(f"v_mov_b32 v{SB+2}, v{SB}"); a.e(f"v_mov_b32 v{SB+3}, v{SB+1}"); a.e("s_nop 1")
        a.e(f"v_permlane32_swap_b32 v{SB}, v{SB+2}"); a.e(f"v_permlane32_swap_b32 v{SB+1}, v{SB+3}")
        a.e(f"v_add_f32 v{SB}, v{SB}, v{SB+2}"); a.e(f"v_add_f32 v{SB+1}, v{SB+1}, v{SB+3}")
        finish_stats(a, SB, SB + 1)
        a.e(f"v_and_b32 v{vX}, 31, v{vL}"); a.e(f"s_lshl_b32 s{sSO}, s{sW4}, 8"); a.e(f"s_add_u32 s{sSO}, s{sSO}, {L_ST + 128}")
        a.e(f"v_lshlrev_b32 v{vX}, 3, v{vX}"); a.e(f"v_add_u32 v{vX}, s{sSO}, v{vX}")
        a.e(f"ds_write_b64 v{vX}, {v(SB,2)}")
    def hst_fin():
        l = a.new("hf")
        a.e(f"s_cmp_lg_u32 s{sW4}, 3"); a.e(f"s_cbranch_scc1 {l}")
        for w in (2, 1):
            for i in range(w):
                for r in (0, 2): a.e(f"v_pk_add_f32 {v(HB+4*i+r,2)}, {v(HB+4*i+r,2)}, {v(HB+4*(i+w)+r,2)}")
        a.e(f"v_add_f32 v{HB}, v{HB}, v{HB+2}"); a.e(f"v_add_f32 v{HB+1}, v{HB+1}, v{HB+3}")
        xreduce(a, [HB, HB + 1], [HB + 2, HB + 3])
        finish_stats(a, HB, HB + 1)
        a.e(f"v_lshlrev_b32 v{vX+1}, 3, v{vI}"); a.e(f"v_add_u32 v{vX+1}, {L_ST}, v{vX+1}")
        a.e(f"ds_write_b64 v{vX+1}, {v(HB,2)}")
        a.label(l)
    def tail():
        pretouch_o(a, vm); res.res_w_setup(a, 1)
    def capture(fn):
        n0 = len(a.L); fn(); o = a.L[n0:]; del a.L[n0:]; return [x.strip() for x in o]
    hooks = {"B4": hst_load}
    for k in range(4): hooks[f"B{5+k}"] = (lambda k=k: st_load(k))
    hooks["B9"] = hst_fin
    def piece(i, cuts=(0, 10, 20, 36, 99)):
        if i == 0:
            vm.wait("S"); piece.L = capture(st_fin)
        a.es(piece.L[cuts[i]:cuts[i + 1]])
    for i in range(4): hooks[f"B{11+i}"] = (lambda i=i: piece(i))
    assist(a, opt, hooks)
    pre = ["A", "A"] + ["W"] * max(0, 3 - prefetched) + ["A"]
    la, cap, nxtcap = g1_sched(opt)
    cap = lambda idx: 2 if idx < 1 else opt.get("g1cap", 5)
    log = []
    n = run_loader(a, vm, events(), [A, W], pre, la, cap, hooks, tail, res.res_nxt(a, 1, vm, 22), nxtcap, log, tl=opt.get("tl") == "g1b", lgk={"BE"})
    if opt.get("log"): print("g1b", log)
    ts(a, opt, PH, 2)
    return n


def x0_stats(a, opt):
    make_srd(a, 8, pAX, 4 * MB)
    D = 16; S = 48; vOne = 56
    a.e(f"s_lshl_b32 s16, s{sCI}, 2"); a.e(f"s_add_u32 s16, s16, s{sWAVE}"); a.e("s_lshl_b32 s16, s16, 1")
    a.e(f"s_lshl_b32 s17, s{sMT}, 7"); a.e("s_add_u32 s18, s17, s16"); a.e("s_lshl_b32 s18, s18, 11")
    a.e(f"s_add_u32 s19, s17, s{sCI}"); a.e("s_sub_u32 s19, s19, 16"); a.e("s_lshl_b32 s19, s19, 11")
    a.e(f"s_cmp_eq_u32 s{sMT}, 0"); a.e("s_cselect_b32 s19, 0x7f000000, s19")
    a.e(f"s_cmp_lg_u32 s{sWAVE}, 0"); a.e("s_cselect_b32 s19, 0x7f000000, s19")
    for i in range(4): a.e(f"buffer_load_dwordx4 {v(D+4*i,4)}, v{vL16}, s[8:11], s18 offen offset:{i*1024}")
    l = a.new("xs")
    for i in range(8): a.e(f"v_mov_b32 v{D+16+i}, 0")
    a.e(f"s_cbranch_scc1 {l}")
    for i in range(2): a.e(f"buffer_load_dwordx4 {v(D+16+4*i,4)}, v{vL16}, s[8:11], s19 offen offset:{i*1024}")
    a.label(l)
    a.e(f"v_mov_b32 v{vOne}, 0x{ONES:08x}")
    a.e("s_waitcnt vmcnt(0)")
    for k in range(3):
        for i in range(8):
            a.e(f"v_dot2_f32_bf16 v{S+2*k}, v{D+8*k+i}, v{vOne}, " + ("0" if i == 0 else f"v{S+2*k}"))
            a.e(f"v_dot2_f32_bf16 v{S+2*k+1}, v{D+8*k+i}, v{D+8*k+i}, " + ("0" if i == 0 else f"v{S+2*k+1}"))
    a.e("s_nop 2")
    for pat in ("quad_perm:[1,0,3,2]", "quad_perm:[2,3,0,1]", "row_half_mirror", "row_mirror"):
        for i in range(6): a.e(f"v_add_f32_dpp v{S+i}, v{S+i}, v{S+i} {pat} row_mask:0xf bank_mask:0xf")
    xreduce(a, list(range(S, S + 6)), list(range(D, D + 6)))
    for k in (1, 2):
        a.e(f"v_cmp_eq_u32 vcc, {k}, v{vL}"); a.e("s_nop 1")
        a.e(f"v_cndmask_b32 v{S}, v{S}, v{S+2*k}, vcc"); a.e(f"v_cndmask_b32 v{S+1}, v{S+1}, v{S+2*k+1}, vcc")
    finish_stats(a, S, S + 1)
    a.e("s_add_u32 s16, s16, 16")
    a.e(f"v_add_u32 v{D}, s16, v{vL}"); a.e(f"v_mov_b32 v{D+1}, s{sCI}")
    a.e(f"v_cndmask_b32 v{D}, v{D}, v{D+1}, vcc"); a.e(f"v_lshlrev_b32 v{D}, 3, v{D}")
    a.e(f"s_lshl_b32 s17, s{sMT}, 11"); a.e(f"s_add_u32 s17, s17, {M_S0}")
    a.e(f"s_cmp_eq_u32 s{sWAVE}, 0"); a.e("s_cselect_b64 exec, 7, 3")
    a.e(f"buffer_store_dwordx2 {v(S,2)}, v{D}, s[{SW}:{SW+3}], s17 offen{SC}")
    a.e("s_mov_b64 exec, -1")


def g1_cons(a, opt):
    ACCQ = 0; ACCK = 32; ACCV = 72; AQH = 112
    XF = 116; WF = 156
    vXa = 204; vXc = 206; vW0 = 208; vWc = 209; vOA = 210
    sSl, sAs, sCnt, s_h, sRH, sO, sZ, sSC = 16, 17, 18, 19, 20, 21, 22, 23
    sM = 28; sPM = 44
    def aq(j, ab): return ACCQ + ((j - 1) * 2 + ab) * 4
    def ak(j, ab): return ACCK + (j * 2 + ab) * 4
    def av(j, ab): return ACCV + (j * 2 + ab) * 4
    def xf(b, j): return XF + b * 20 + j * 4
    def wf(b, seg, ab): return WF + b * 24 + (seg * 2 + ab) * 4
    a.e(f"s_and_b32 s{s_h}, s{sWAVE}, 1"); a.e(f"s_lshr_b32 s{sRH}, s{sWAVE}, 1")
    l = a.new("ad")
    a.e(f"s_cmp_lg_u32 s{sLAY}, 0"); a.e(f"s_cbranch_scc1 {l}_f")
    a.e(f"v_lshlrev_b32 v{vT0}, 7, v{vI}")
    a.e(f"v_and_b32 v{vT1}, 6, v{vL}"); a.e(f"v_xor_b32 v{vT1}, v{vT1}, v{vG}")
    a.e(f"v_lshl_add_u32 v{vXa}, v{vT1}, 4, v{vT0}")
    a.e(f"v_xor_b32 v{vXa+1}, 64, v{vXa}")
    a.e(f"s_branch {l}_d")
    a.label(f"{l}_f")
    a.e(f"v_mov_b32 v{vXa}, v{vL16}"); a.e(f"v_add_u32 v{vXa+1}, 1024, v{vL16}")
    a.label(f"{l}_d")
    a.e(f"v_lshrrev_b32 v{vT0}, 2, v{vI}"); a.e(f"v_mul_u32_u24 v{vT0}, {WG}, v{vT0}")
    a.e(f"v_lshl_add_u32 v{vT0}, v{vG}, 7, v{vT0}")
    a.e(f"v_and_b32 v{vT1}, 3, v{vI}"); a.e(f"v_lshl_add_u32 v{vT0}, v{vT1}, 3, v{vT0}")
    a.e(f"s_lshl_b32 s{sT}, s{s_h}, 6"); a.e(f"s_add_u32 s{sT}, s{sT}, {LW}")
    a.e(f"v_add_u32 v{vW0}, s{sT}, v{vT0}")
    a.e(f"v_mov_b32 v{vWc}, v{vW0}")
    a.e(f"s_mov_b32 s{sSl}, 0"); a.e(f"s_mov_b32 s{sAs}, {aslot(0)}")
    a.e(f"v_add_u32 v{vXc}, s{sAs}, v{vXa}"); a.e(f"v_add_u32 v{vXc+1}, s{sAs}, v{vXa+1}")
    a.e(f"s_lshl_b32 s{sO}, s{sMT}, 4"); a.e(f"s_add_u32 s{sO}, s{sO}, s{sHP}"); a.e(f"s_lshl_b32 s{sO}, s{sO}, 1")
    a.e(f"s_add_u32 s{sO}, s{sO}, s{s_h}"); a.e(f"s_lshl_b32 s{sO}, s{sO}, 1"); a.e(f"s_add_u32 s{sO}, s{sO}, s{sRH}"); a.e(f"s_lshl_b32 s{sO}, s{sO}, 12")
    a.e(f"s_lshl_b32 s{sT}, s{sLB}, 22"); a.e(f"s_add_u32 s{sO}, s{sO}, s{sT}"); a.e(f"s_add_u32 s{sO}, s{sO}, {WS_O}")
    sPAR, sCUR, sFM = 28, 30, 34
    vMK = 232
    vE, vC, vC2, vS1, vS2 = 236, 237, 238, 239, 240
    a.e(f"v_and_b32 v{vT1}, 1, v{vI}")
    a.e(f"v_cmp_eq_u32 s[{sPAR}:{sPAR+1}], 1, v{vT1}")
    a.e(f"v_lshlrev_b32 v{vT0}, 2, v{vG}"); a.e(f"v_sub_u32 v{vT0}, v{vI}, v{vT0}"); a.e(f"v_sub_u32 v{vT0}, v{vT0}, v{vT1}")
    a.e(f"v_lshlrev_b32 v{vT1}, 4, v{vT1}"); a.e(f"v_mov_b32 v{vOA}, 0xffff"); a.e(f"v_lshlrev_b32 v{vOA}, v{vT1}, v{vOA}")
    for k in range(2): a.e(f"v_cmp_le_i32 s[{sCUR+2*k}:{sCUR+2*k+1}], {2*k}, v{vT0}")
    a.e(f"s_or_b32 s{sZ}, s{sMT}, s{sRH}")
    a.e(f"s_cmp_eq_u32 s{sZ}, 0")
    for k in range(2): a.e(f"s_cselect_b64 s[{sFM+2*k}:{sFM+2*k+1}], s[{sCUR+2*k}:{sCUR+2*k+1}], -1")
    for k in range(2):
        a.e(f"v_cndmask_b32 v{vMK+k}, v{vOA}, 0, s[{sCUR+2*k}:{sCUR+2*k+1}]")
        a.e(f"v_cndmask_b32 v{vMK+2+k}, 0, v{vOA}, s[{sCUR+2*k}:{sCUR+2*k+1}]")
    a.e(f"s_mov_b32 s{sSC}, 0x{fbits((32 ** -0.5) * 1.4426950408889634):08x}")
    a.e(f"s_mul_i32 s{sT}, s{s_h}, 6144"); a.e(f"s_add_u32 s{sT}, s{sT}, {XSCR}"); a.e(f"v_add_u32 v{vE}, s{sT}, v{vL16}")
    a.e(f"s_mul_i32 s{sT}, s{s_h}, 384"); a.e(f"s_add_u32 s{sT}, s{sT}, {L_CS1}")
    a.e(f"v_lshlrev_b32 v{vC}, 4, v{vG}"); a.e(f"v_add_u32 v{vC}, s{sT}, v{vC}")
    a.e(f"v_lshlrev_b32 v{vC2}, 2, v{vI}"); a.e(f"v_add_u32 v{vC2}, s{sT}, v{vC2}")
    a.e(f"s_lshl_b32 s{sT}, s{sRH}, 9"); a.e(f"s_add_u32 s{sT}, s{sT}, {L_ST}")
    a.e(f"v_lshlrev_b32 v{vS1}, 3, v{vI}"); a.e(f"v_add_u32 v{vS1}, s{sT}, v{vS1}")
    a.e(f"v_lshlrev_b32 v{vS2}, 5, v{vG}"); a.e(f"v_add_u32 v{vS2}, s{sT}, v{vS2}")
    a.e(f"v_mov_b32 v241, {L_MODE}")
    for i in range(4): a.e(f"v_mov_b32 v{212+i}, 0")
    a.e(f"s_mov_b32 s{sCnt}, 16")
    a.e("s_nop 0")
    for i in range(0, 128, 16): a.e(f"v_mfma_f32_32x32x16_bf16 {v(i,16)}, {v(212,4)}, {v(212,4)}, 0")
    a.e("s_nop 7"); a.e("s_nop 3")
    a.e(f"s_cmp_eq_u32 s{sRH}, 1"); a.e("s_cbranch_scc1 g1c_r1")
    for rh in range(2):
        if rh: a.label("g1c_r1")
        def reads(b):
            g = []
            ws = [(1, 0), (1, 1), (2, 0), (2, 1), (0, 0), (0, 1)]
            xs = [0, 1, 2, 3, 4]
            wo = WSL if b == 0 else 0
            for i in range(6):
                if i < 5:
                    j = xs[i]
                    g.append(f"ds_read_b128 {v(xf(b,j),4)}, v{vXc+b} offset:{(4*rh + j) * 2048 if j else 0}")
                seg, ab = ws[i]
                g.append(f"ds_read_b64_tr_b16 {v(wf(b,seg,ab),2)}, v{vWc} offset:{wo + seg*1024 + ab*32}")
                g.append(f"ds_read_b64_tr_b16 {v(wf(b,seg,ab)+2,2)}, v{vWc} offset:{wo + seg*1024 + ab*32 + 512}")
            return g
        def mfs(b):
            Q = [mfma(aq(j, ab), wf(b, 0, ab), xf(b, j)) for ab in range(2) for j in range(1, 5)]
            K = [mfma(ak(j, ab), wf(b, 1, ab), xf(b, j)) for ab in range(2) for j in range(1, 5)]
            V = [mfma(av(j, ab), xf(b, j), wf(b, 2, ab)) for ab in range(2) for j in range(1, 5)]
            Hh = [mfma(AQH, wf(b, 0, rh), xf(b, 0))]
            if rh == 0: Hh += [mfma(ak(0, ab), wf(b, 1, ab), xf(b, 0)) for ab in range(2)]
            else: Hh += [mfma(av(0, ab), xf(b, 0), wf(b, 2, ab)) for ab in range(2)]
            return Hh + K + V + Q
        advW = [[f"s_add_u32 s{sSl}, s{sSl}, {2*WSL}", f"s_cmp_eq_u32 s{sSl}, {RW * WSL}"], [f"s_cselect_b32 s{sSl}, 0, s{sSl}"],
                [f"v_add_u32 v{vWc}, s{sSl}, v{vW0}"]]
        advA = [[f"s_add_u32 s{sAs}, s{sAs}, {AS}", f"s_cmp_eq_u32 s{sAs}, {RA * AS}"], [f"s_cselect_b32 s{sAs}, 0, s{sAs}"],
                [f"v_add_u32 v{vXc}, s{sAs}, v{vXa}"], [f"v_add_u32 v{vXc+1}, s{sAs}, v{vXa+1}"]]
        rdend = opt.get("g1rd", 17)
        def step(b, post):
            m = mfs(b); sl = {}
            spread(reads(1 - b), 0, rdend, sl)
            spread(post, rdend + 1, 25, sl)
            sl.setdefault(26, []).append("s_waitcnt vmcnt(0) lgkmcnt(0)" if b else "s_waitcnt lgkmcnt(0)")
            a.es(place(m, sl))
        ts(a, opt, PH, 0)
        a.e("s_barrier")
        ts(a, opt, PH, 1)
        a.es(reads(0))
        for gq in advW: a.es(gq)
        a.e("s_waitcnt lgkmcnt(0)")
        tsc(a, opt, PH, 6)
        a.label(f"g1c_loop{rh}")
        a.e("s_barrier")
        step(0, advA)
        step(1, advW + [[f"s_sub_u32 s{sCnt}, s{sCnt}, 1", f"s_cmp_lg_u32 s{sCnt}, 0"]])
        a.e(f"s_cbranch_scc1 g1c_loop{rh}")
        tsc(a, opt, PH, 7)
        ts(a, opt, PH, 2)
        CSQ = 116; MQ = 132; SV = 156; CSV = 196; CQ = 200; VP = 212
        if rh == 0:
            for i, r in enumerate((ak(4, 0), ak(4, 1), av(4, 0), av(4, 1))): a.e(f"ds_write_b128 v{vE}, {v(r,4)} offset:{i*1024}")
            a.e("s_mov_b32 exec_lo, 0x00010001"); a.e("s_mov_b32 exec_hi, 0x00010001")
            a.e(f"ds_write_b128 v{vC}, {v(AQH,4)}")
            for ab in range(2): a.e(f"ds_write_b128 v{vC}, {v(ak(0,ab),4)} offset:{128 + 64*ab}")
        else:
            for ab in range(2): a.e(f"ds_write_b128 v{vE}, {v(av(0,ab),4)} offset:{(4+ab)*1024}")
            a.e("s_mov_b32 exec_lo, 0x00010001"); a.e("s_mov_b32 exec_hi, 0x00010001")
            a.e(f"ds_write_b128 v{vC}, {v(AQH,4)} offset:64")
            a.e("s_mov_b64 exec, 0xffff")
            for ab in range(2): a.e(f"ds_write_b32 v{vC2}, v{av(0,ab)} offset:{256 + 64*ab}")
        a.e("s_mov_b64 exec, -1")
        a.e("s_waitcnt lgkmcnt(0)")
        a.e("s_barrier")
        for seg in range(2):
            for ab in range(2):
                a.e(f"ds_read_b128 {v(CSQ+(seg*2+ab)*4,4)}, v{vC} offset:{128*seg + 64*ab}")
        for j in (1, 2, 3, 4, 0):
            a.e(f"ds_read2_b32 {v(MQ+4*j,2)}, v{vS1} offset0:{32*j} offset1:{32*j}")
            a.e(f"ds_read2_b32 {v(MQ+4*j+2,2)}, v{vS1} offset0:{32*j+1} offset1:{32*j+1}")
        a.e("s_waitcnt lgkmcnt(2)")
        if rh == 0:
            for ab in range(2): a.e(f"ds_read_b128 {v(av(0,ab),4)}, v{vE} offset:{(4+ab)*1024}")
        else:
            for i, r in enumerate((ak(0, 0), ak(0, 1), av(0, 0), av(0, 1))): a.e(f"ds_read_b128 {v(r,4)}, v{vE} offset:{i*1024}")
        if rh == 0: a.e("s_branch g1c_epi")
    a.label("g1c_epi")
    a.e("ds_read_b32 v241, v241")
    for ab in range(2): a.e(f"ds_read2_b32 {v(CSV+2*ab,2)}, v{vC2} offset0:{64 + 16*ab} offset1:{64 + 16*ab}")
    ts(a, opt, PH, 3)
    NEGM = " neg_lo:[1,0,0] neg_hi:[1,0,0]"
    def svread(j):
        return [f"ds_read2_b32 {v(SV+8*j+2*k,2)}, v{vS2} offset0:{32*j + o} offset1:{32*j + o + 2}" for k, o in enumerate((0, 4, 1, 5))]
    def pack4(c): return [f"v_cvt_pk_bf16_f32 v{c+k}, v{c+2*k}, v{c+2*k+1}" for k in range(4)]
    def normq(j):
        c = aq(j, 0)
        return [f"v_pk_fma_f32 {v(c+r,2)}, {v(MQ+4*j,2)}, {v(CSQ+r,2)}, {v(c+r,2)}{NEGM}" for r in (0, 2, 4, 6)] + pack4(c) + \
               [f"v_mul_f32 v{CQ+j-1}, s{sSC}, v{MQ+4*j+2}"]
    def normk(j):
        c = ak(j, 0)
        return [f"v_pk_fma_f32 {v(c+r,2)}, {v(MQ+4*j,2)}, {v(CSQ+8+r,2)}, {v(c+r,2)}{NEGM}" for r in (0, 2, 4, 6)] + \
               [f"v_pk_mul_f32 {v(c+r,2)}, {v(MQ+4*j+2,2)}, {v(c+r,2)}" for r in (0, 2, 4, 6)] + pack4(c)
    for j in range(1, 5):
        a.es(normq(j)); a.es(svread(j))
        a.es(normk(j))
        if j == 2: a.e("s_waitcnt lgkmcnt(4)")
    a.es(svread(0))
    a.e("s_waitcnt lgkmcnt(4)")
    a.es(normk(0))
    a.e(f"v_readfirstlane_b32 s{sSLOW}, v241")
    S = [116, 124, 132, 140]
    J = range(4)
    set_mode(a, opt)
    for i in J:
        j = i + 1
        a.e(mfma(S[i], ak(j, 0), aq(j, 0), "0"))
        a.e(mfma(S[i] + 4, ak(j - 1, 0), aq(j, 0), "0"))
    for j in (1, 2, 3, 4, 0):
        if j == 0: a.e("s_waitcnt lgkmcnt(0)")
        for ab in range(2):
            c = av(j, ab)
            for k in range(2): a.e(f"v_pk_fma_f32 {v(c+2*k,2)}, {v(SV+8*j+2*k,2)}, {v(CSV+2*ab,2)}, {v(c+2*k,2)}{NEGM}")
            for k in range(2): a.e(f"v_pk_mul_f32 {v(c+2*k,2)}, {v(SV+8*j+4+2*k,2)}, {v(c+2*k,2)}")
            P = VP + ab * 10 + 2 * j
            a.e(f"v_cvt_pk_bf16_f32 v{P}, v{c}, v{c+1}")
            a.e(f"v_cvt_pk_bf16_f32 v{P+1}, v{c+2}, v{c+3}")
    X = [148, 150, 152, 154]; MX = [0, 1, 2, 3]; PP = [8, 12, 16, 20]; OO = [24, 32, 40, 48]; OP = [56, 60, 64, 68]; NEG = 4
    a.e(f"s_mov_b64 vcc, s[{sPAR}:{sPAR+1}]")
    a.e(f"v_mov_b32 v{NEG}, 0xf149f2ca")
    for i in J:
        for k in range(2):
            a.e(f"v_cndmask_b32 v{S[i]+2*k}, v{S[i]+2*k}, v{S[i]+2*k+1}, vcc")
            a.e(f"v_cndmask_b32 v{S[i]+4+2*k}, v{S[i]+4+2*k}, v{S[i]+4+2*k+1}, vcc")
        for k in range(2):
            a.e(f"v_cndmask_b32 v{X[i]+k}, v{S[i]+4+2*k}, v{S[i]+2*k}, s[{sCUR+2*k}:{sCUR+2*k+1}]")
    for k in range(2): a.e(f"v_cndmask_b32 v{X[0]+k}, v{NEG}, v{X[0]+k}, s[{sFM+2*k}:{sFM+2*k+1}]")
    def tred(op, mid=None):
        m = MX
        a.e("s_nop 0")
        a.e(f"v_permlane16_swap_b32 v{m[0]}, v{m[1]}"); a.e(f"v_permlane16_swap_b32 v{m[2]}, v{m[3]}")
        a.e(f"{op} v{m[0]}, v{m[0]}, v{m[1]}"); a.e(f"{op} v{m[2]}, v{m[2]}, v{m[3]}")
        a.e("s_nop 1")
        a.e(f"v_permlane32_swap_b32 v{m[0]}, v{m[2]}")
        a.e(f"{op} v{m[0]}, v{m[0]}, v{m[2]}")
        if mid: a.e(f"{mid} v{m[0]}, v{m[0]}"); a.e("s_nop 0")
        a.e(f"v_mov_b32 v{m[2]}, v{m[0]}")
        a.e("s_nop 1")
        a.e(f"v_permlane32_swap_b32 v{m[0]}, v{m[2]}")
        a.e(f"v_mov_b32 v{m[1]}, v{m[0]}"); a.e(f"v_mov_b32 v{m[3]}, v{m[2]}")
        a.e("s_nop 0")
        a.e(f"v_permlane16_swap_b32 v{m[0]}, v{m[1]}"); a.e(f"v_permlane16_swap_b32 v{m[2]}, v{m[3]}")
    for i in J: a.e(f"v_max_f32 v{MX[i]}, v{X[i]}, v{X[i]+1}")
    tred("v_max_f32")
    for i in J:
        for k in range(2): a.e(f"v_sub_f32 v{X[i]+k}, v{X[i]+k}, v{MX[i]}")
    for i in J:
        for k in range(2): a.e(f"v_mul_f32 v{X[i]+k}, v{CQ+i}, v{X[i]+k}")
    for i in J:
        for k in range(2): a.e(f"v_exp_f32 v{X[i]+k}, v{X[i]+k}")
    for i in J: a.e(f"v_add_f32 v{MX[i]}, v{X[i]}, v{X[i]+1}")
    tred("v_add_f32", "v_rcp_f32")
    for i in J:
        for k in range(2): a.e(f"v_mul_f32 v{X[i]+k}, v{X[i]+k}, v{MX[i]}")
        for k in range(2): a.e(f"v_cvt_pk_bf16_f32 v{X[i]+k}, v{X[i]+k}, v{X[i]+k}")
        for k in range(4): a.e(f"v_and_b32 v{PP[i]+k}, v{X[i]+(k&1)}, v{vMK+k}")
        if i:
            for ab in range(2): a.e(mfma(OO[i-1] + 4 * ab, VP + ab * 10 + 2 * (i-1), PP[i-1], "0"))
    for ab in range(2): a.e(mfma(OO[3] + 4 * ab, VP + ab * 10 + 6, PP[3], "0"))
    for i in J:
        for k in range(4): a.e(f"v_cvt_pk_bf16_f32 v{OP[i]+k}, v{OO[i]+2*k}, v{OO[i]+2*k+1}")
        a.e(f"buffer_store_dwordx4 {v(OP[i],4)}, v{vL16}, s[{SW}:{SW+3}], s{sO} offen offset:{i*1024}")
    ts(a, opt, PH, 4)
    signal(a, PH, 108, 109)
    ts(a, opt, PH, 5)
```

```python
from common import *
import res

AS = 8192; LW = 36736; WSL = 28800; WM = 14400; WR = 7200; PW = 7168
PH = 2
def wph(st): return (st + 1) % 4


class G3:
    def __init__(self, a, opt, cls):
        self.gen = g3(a, opt, cls, self)
    def w_setup(self): next(self.gen)
    def nxt(self, vm, n):
        def mk(st, k):
            def f():
                self.a.es(self.dmaW(st, range(7))[k]); vm.op()
            return f
        return [(LW + wph(st) * WSL, LW + (wph(st) + 1) * WSL, mk(st, k)) for st in range(n) for k in range(7)]
    def warm(self, order):
        a = self.a
        if not order: return []
        a.e(f"s_lshl_b32 s32, s{sQ}, 1"); a.e(f"s_lshr_b32 s33, s{sW4}, 1"); a.e("s_add_u32 s32, s32, s33"); a.e(f"s_mul_i32 s32, s32, {8 * PW}")
        a.e(f"s_mul_i32 s33, s{sNT}, 448"); a.e("s_add_u32 s32, s32, s33")
        a.e("s_add_u32 s32, s8, s32"); a.e("s_addc_u32 s33, s9, 0")
        o = []
        for st in order:
            hd = [f"s_lshl_b32 s34, s{sK3}, 1", f"s_add_u32 s34, s34, {st}", "s_and_b32 s34, s34, 31", f"s_mul_i32 s34, s34, {32 * PW}",
                  "s_add_u32 s36, s32, s34", "s_addc_u32 s37, s33, 0"]
            ld = [[f"s_load_dword s35, s[36:37], {rr * PW + c * 64}"] for rr in range(8) for c in range(7)]
            ld[0] = hd + ld[0]
            o += ld
        return o
    def vtouch(self, nsteps):
        a = self.a
        l = a.new("vt")
        if nsteps == 1: a.e(f"s_cmp_ge_u32 s{sW4}, 2"); a.e(f"s_cbranch_scc1 {l}")
        a.e(f"s_lshl_b32 s34, s{sK3}, 1"); a.e(f"s_lshr_b32 s35, s{sW4}, 1"); a.e("s_add_u32 s34, s34, s35"); a.e("s_add_u32 s34, s34, 2")
        a.e("s_and_b32 s34, s34, 31"); a.e("s_lshl_b32 s34, s34, 1"); a.e(f"s_add_u32 s34, s34, s{sQ}"); a.e(f"s_mul_i32 s34, s34, {16 * PW}")
        a.e(f"s_mul_i32 s35, s{sNT}, 448"); a.e("s_and_b32 s35, s35, 0xffffff80"); a.e("s_add_u32 s34, s34, s35")
        a.e(f"v_mul_u32_u24 v247, {PW}, v{vI}"); a.e(f"v_lshl_add_u32 v247, v{vG}, 7, v247")
        a.e("buffer_load_dword v248, v247, s[8:11], s34 offen")
        a.label(l)
    def run(self, npre, prev_signal=None):
        self.prev_signal = prev_signal
        assert npre % 7 == 0
        self.npre = npre // 7
        for _ in self.gen: pass


def g3(a, opt, cls, self):
    self.a = a
    NP = 4 - cls
    nW0 = opt.get("g3nw0", 4)
    ks_ = list(range(7 - nW0, 7)) if cls == 0 else list(range(0, 7 - nW0))
    n = len(ks_) + 2 * cls
    sW = 8
    sWo, sWlo, sWhi, sWm = 16, 17, 18, 19
    sAo, sAlo, sAhi, sAm = 20, 21, 22, 23
    sCnt, sH, sH2, sHK, sC0 = 24, 25, 26, 27, 28
    if cls == 0:
        WF = 128; WFS = 32; XF = 192; AD = 224
    else:
        WF = 96; WFS = 24; XF = 144; TMP = 176; AD = 228
    vWp = AD
    vXa = AD + 7; vWa = AD + 8
    vWb = AD + 10
    tag = f"g3c{cls}"
    def acc(mat, t, rt): return ((mat * NP + t) * 4 + rt) * 4
    def wf(b, mat, t): return WF + b * WFS + (mat * NP + t) * 4
    def xf(b, rt): return XF + b * 16 + rt * 4
    def wreg(k): return vWp + (k if cls else k - (7 - nW0))
    a.e(f"s_and_b32 s{sT}, s{sWAVE}, 1")
    a.e(f"s_cmp_eq_u32 s{sT}, 0")
    a.e(f"s_cselect_b32 s{sW}, s{pW1}, s{pW3}")
    a.e(f"s_cselect_b32 s{sW+1}, s{pW1+1}, s{pW3+1}")
    a.e(f"s_mov_b32 s{sW+2}, {1024 * PW}")
    a.e(f"s_mov_b32 s{sW+3}, 0x00020000")
    a.e(f"s_mul_i32 s{sWm}, s{sT}, {WM}")
    a.e(f"s_lshr_b32 s{sT}, s{sW4}, 1")
    a.e(f"s_mul_i32 s{sT2}, s{sT}, {WR}")
    a.e(f"s_add_u32 s{sWm}, s{sWm}, s{sT2}")
    a.e(f"s_add_u32 s{sWm}, s{sWm}, {LW}")
    a.e(f"s_mul_i32 s{sWlo}, s{sT}, {4 * PW}")
    a.e(f"s_mul_i32 s{sT2}, s{sNT}, 448")
    a.e(f"s_add_u32 s{sWlo}, s{sWlo}, s{sT2}")
    a.e(f"s_add_u32 s{sWhi}, s{sWlo}, {1024 * PW}")
    LA = opt.get("g3la", 3)
    first = 0 if cls else LA
    a.e(f"s_lshl_b32 s{sT}, s{sK3}, 1")
    if first: a.e(f"s_add_u32 s{sT}, s{sT}, {first}"); a.e(f"s_and_b32 s{sT}, s{sT}, 31")
    a.e(f"s_mul_i32 s{sT2}, s{sT}, {32 * PW}")
    a.e(f"s_add_u32 s{sWo}, s{sWlo}, s{sT2}")
    a.e(f"s_mov_b32 s{sT3}, 2341")
    for k in (range(7) if cls else ks_):
        a.e(f"v_add_u32 v{vT0}, {64 * k}, v{vL}")
        a.e(f"v_mul_lo_u32 v{vT1}, v{vT0}, s{sT3}")
        a.e(f"v_lshrrev_b32 v{vT1}, 16, v{vT1}")
        a.e(f"v_mul_u32_u24 v{wreg(k)}, 28, v{vT1}")
        a.e(f"v_sub_u32 v{vT0}, v{vT0}, v{wreg(k)}")
        a.e(f"v_and_b32 v{wreg(k)}, 12, v{vT1}")
        a.e(f"v_add_u32 v{vT1}, v{vT1}, v{wreg(k)}")
        a.e(f"v_mul_u32_u24 v{vT1}, {PW}, v{vT1}")
        a.e(f"v_lshl_add_u32 v{wreg(k)}, v{vT0}, 4, v{vT1}")
    def dmaW(st, ks):
        g = []
        for k in ks:
            g.append([f"s_add_u32 m0, s{sWm}, {wph(st) * WSL + 1024 * k}", "s_nop 0",
                      f"buffer_load_dwordx4 v{wreg(k)}, s[{sW}:{sW+3}], s{sWo} offen lds"])
        adv = [f"s_add_u32 s{sWo}, s{sWo}, {32 * PW}", f"s_cmp_eq_u32 s{sWo}, s{sWhi}", f"s_cselect_b32 s{sWo}, s{sWlo}, s{sWo}"]
        if g: g[-1] = g[-1] + adv
        return g
    advA = [f"s_add_u32 s{sAo}, s{sAo}, 8192", f"s_cmp_eq_u32 s{sAo}, s{sAhi}", f"s_cselect_b32 s{sAo}, s{sAlo}, s{sAo}"]
    def dmaA(st):
        if cls == 0: return []
        return [[f"s_add_u32 m0, s{sAm}, {(st % 4) * AS}", "s_nop 0",
                 f"buffer_load_dwordx4 v{vL16}, s[{SW}:{SW+3}], s{sAo} offen sc1 lds"],
                [f"s_add_u32 m0, s{sAm}, {(st % 4) * AS}", "s_nop 0",
                 f"buffer_load_dwordx4 v{vL16}, s[{SW}:{SW+3}], s{sAo} offen offset:1024 sc1 lds"] + advA]
    self.dmaW = dmaW
    yield
    vm = VM(a)
    nPre = self.npre
    if cls:
        a.e(f"s_lshl_b32 s{sAlo}, s{sLB}, 23")
        a.e(f"s_lshl_b32 s{sT}, s{sMT}, 18")
        a.e(f"s_add_u32 s{sAlo}, s{sAlo}, s{sT}")
        a.e(f"s_lshl_b32 s{sAm}, s{sW4}, 11")
        a.e(f"s_add_u32 s{sAlo}, s{sAlo}, s{sAm}")
        a.e(f"s_add_u32 s{sAhi}, s{sAlo}, {32 * 8192}")
        a.e(f"s_add_u32 s{sT}, s{sK3}, 1"); a.e(f"s_and_b32 s{sT}, s{sT}, 15"); a.e(f"s_lshl_b32 s{sT}, s{sT}, 14")
        a.e(f"s_add_u32 s{sAo}, s{sAlo}, s{sT}")
    a.e(f"s_and_b32 s{sT}, s{sWAVE}, 1"); a.e(f"s_lshl_b32 s{sT}, s{sT}, 12")
    a.e(f"v_add_u32 v{vXa}, s{sT}, v{vL16}")
    a.e(f"v_lshrrev_b32 v{vT0}, 1, v{vG}")
    a.e(f"v_lshrrev_b32 v{vT1}, 2, v{vI}")
    a.e(f"v_lshl_add_u32 v{vT0}, v{vT0}, 2, v{vT1}")
    a.e(f"v_mul_u32_u24 v{vT0}, 448, v{vT0}")
    a.e(f"v_and_b32 v{vT1}, 1, v{vG}")
    a.e(f"v_mul_u32_u24 v{vT1}, {WR}, v{vT1}")
    a.e(f"v_add_u32 v{vT0}, v{vT0}, v{vT1}")
    a.e(f"v_and_b32 v{vT1}, 3, v{vI}")
    a.e(f"v_lshl_add_u32 v{vT0}, v{vT1}, 3, v{vT0}")
    a.e(f"v_add_u32 v{vT0}, {LW}, v{vT0}")
    a.e(f"s_lshr_b32 s{sT}, s{sW4}, 1")
    a.e(f"s_lshl_b32 s{sC0}, s{sT}, 2")
    if cls: a.e(f"s_add_u32 s{sC0}, s{sC0}, 8")
    a.e(f"s_lshl_b32 s{sT2}, s{sC0}, 5")
    a.e(f"v_add_u32 v{vWa}, s{sT2}, v{vT0}")
    a.e(f"v_add_u32 v{vWa+1}, {2 * WSL}, v{vWa}")
    if cls:
        a.e(f"s_add_u32 s{sT2}, s{sT}, 10"); a.e(f"s_lshl_b32 s{sT2}, s{sT2}, 5")
        a.e(f"v_add_u32 v{vWb}, s{sT2}, v{vT0}")
        a.e(f"v_add_u32 v{vWb+1}, {2 * WSL}, v{vWb}")
        vCa = TMP + 48
        a.e(f"s_mul_i32 s{sT2}, s{sT}, 224")
        a.e(f"s_and_b32 s{sT}, s{sWAVE}, 1"); a.e(f"s_mul_i32 s{sT}, s{sT}, {WM}"); a.e(f"s_add_u32 s{sT2}, s{sT2}, s{sT}")
        a.e(f"v_add_u32 v{vCa}, s{sT2}, v{vT0}")
        for i in range(4): a.e(f"v_mov_b32 v{TMP+44+i}, 0x{ONES:08x}")
    a.e(f"s_mul_i32 s{sH}, s{sMT}, 112"); a.e(f"s_mul_i32 s{sT}, s{sNT}, 7"); a.e(f"s_add_u32 s{sH}, s{sH}, s{sT}")
    a.e(f"s_lshl_b32 s{sH}, s{sH}, 13")
    a.e(f"s_lshl_b32 s{sT}, s{sLB}, 24"); a.e(f"s_add_u32 s{sH}, s{sH}, s{sT}"); a.e(f"s_add_u32 s{sH}, s{sH}, {WS_H}")

    def reads(st):
        b = st & 1; sl = st % 4; g = []
        for rt in range(4):
            g.append(f"ds_read_b128 {v(xf(b,rt),4)}, v{vXa} offset:{sl * AS + rt * 1024}")
        for t in range(NP):
            for mat in range(2):
                third = cls and t == 2
                reg = (vWb if third else vWa) + (wph(st) >> 1)
                off = (wph(st) & 1) * WSL + mat * WM + (0 if third else 32 * t)
                g.append(f"ds_read_b64_tr_b16 {v(wf(b,mat,t),2)}, v{reg} offset:{off}")
                g.append(f"ds_read_b64_tr_b16 {v(wf(b,mat,t)+2,2)}, v{reg} offset:{off + 3584}")
        return g
    def mfmas(st, zero=False):
        b = st & 1
        return [mfma(acc(mat, t, rt), wf(b, mat, t), xf(b, rt), "0" if zero else None)
                for t in range(NP) for mat in range(2) for rt in range(4)]
    def merge(A, B):
        if not B: return list(A)
        out = []; j = 0
        for i, g in enumerate(A):
            out.append(g)
            want = ((i + 1) * len(B)) // len(A)
            while j < want: out.append(B[j]); j += 1
        return out + B[j:]
    def step(st, dma=True, rd=True, zero=False, extra=None, track=False, fill=None, fill0=0, nvm=0, pre=None):
        m = mfmas(st, zero); sl = {}
        r = [[x] for x in reads(st + 1)] if rd else []
        d = (dmaW(st + LA, ks_) + dmaA(st + LA)) if dma else []
        if track:
            for _ in d: vm.op(("D", st + LA))
            for _ in range(nvm): vm.op("X")
        spread(merge(r, d) if r else d, 0, int(len(m) * opt.get("g3rd", 0.8)), sl)
        if pre: sl[-1] = list(pre)
        if fill: spread(fill, fill0, len(m) - 1, sl)
        for frac, grp in (extra or []): sl.setdefault(int(frac * (len(m) - 1)), []).extend(grp)
        a.es(place(m, sl))

    def colsum_hook(tgt):
        l = a.new("cs")
        a.e(f"s_cmp_eq_u32 s{sHK}, {tgt >> 1}")
        a.e(f"s_cbranch_scc1 {l}")
        a.label(f"{l}_b")
        CA = TMP; CFR = TMP + 28; ON = TMP + 44; vCa = TMP + 48; vX = TMP + 49
        o = [f"{l}:", f"v_add_u32 v{vX}, {wph(tgt) * WSL}, v{vCa}"]
        for t0, t1 in ((0, 4), (4, 7)):
            for t in range(t0, t1):
                o.append(f"ds_read_b64_tr_b16 {v(CFR+4*(t-t0),2)}, v{vX} offset:{32*t}")
                o.append(f"ds_read_b64_tr_b16 {v(CFR+4*(t-t0)+2,2)}, v{vX} offset:{32*t + 3584}")
            o.append("s_waitcnt lgkmcnt(0)")
            for t in range(t0, t1):
                o.append(mfma(CA + 4 * t, CFR + 4 * (t - t0), ON, "0" if tgt % 2 == 0 else None))
            o.append("s_nop 7")
        if tgt % 2 == 1:
            o += [f"s_lshl_b32 s{sT}, s{sMT}, 1", f"s_and_b32 s{sT2}, s{sWAVE}, 1", f"s_add_u32 s{sT}, s{sT}, s{sT2}",
                  f"s_mul_i32 s{sT}, s{sT}, {3584 * 4}", f"s_mul_i32 s{sT2}, s{sNT}, 896", f"s_add_u32 s{sT}, s{sT}, s{sT2}",
                  f"s_lshr_b32 s{sT2}, s{sW4}, 1", f"s_mul_i32 s{sT2}, s{sT2}, 448", f"s_add_u32 s{sT}, s{sT}, s{sT2}",
                  f"s_add_u32 s{sT}, s{sT}, {M_CS}", f"v_lshlrev_b32 v{vX}, 4, v{vG}",
                  "s_mov_b32 exec_lo, 0x00010001", "s_mov_b32 exec_hi, 0x00010001"]
            for t in range(7):
                o.append(f"buffer_store_dwordx4 {v(CA+4*t,4)}, v{vX}, s[{SW}:{SW+3}], s{sT} offen offset:{64*t}{SC}")
            o += ["s_mov_b64 exec, -1", "s_nop 3"]
        o.append(f"s_branch {l}_b")
        a.ool(o)

    ts(a, opt, PH, 0)
    if cls == 0:
        for i in range(4): a.e(f"v_mov_b32 v{XF+i}, 0")
        a.e("s_nop 1")
        for i in range(0, 128, 16):
            a.e(f"v_mfma_f32_32x32x16_bf16 {v(i,16)}, {v(XF,4)}, {v(XF,4)}, 0")
        self.prev_signal(0)
        a.e("s_waitcnt lgkmcnt(0)")
        a.e("s_barrier")
        ts(a, opt, PH, 1)
        a.es(reads(0))
        tsc(a, opt, PH, 6)
        a.e(f"s_mov_b32 s{sCnt}, 7")
        a.label(f"{tag}_loop")
        for st in range(4):
            a.e(f"s_waitcnt vmcnt({(LA - 2) * n}) lgkmcnt(0)"); a.e("s_barrier")
            if opt.get("tl") == "g3":
                a.e(f"s_memtime s[{sTS}:{sTS+1}]"); a.e("s_waitcnt lgkmcnt(0)")
                a.e(f"s_lshl_b32 s{sTS+1}, s{sCnt}, 2"); a.e(f"s_sub_u32 s{sTS+1}, {28 + st}, s{sTS+1}")
                a.e(f"s_lshl_b32 s{sT}, s{sLAY}, 5"); a.e(f"s_add_u32 m0, s{sT}, s{sTS+1}"); a.e("s_nop 0")
                a.e(f"v_writelane_b32 v246, s{sTS}, m0")
            step(st)
        a.e(f"s_sub_u32 s{sCnt}, s{sCnt}, 1"); a.e(f"s_cmp_lg_u32 s{sCnt}, 0"); a.e(f"s_cbranch_scc1 {tag}_loop")
        if opt.get("tl") == "g3":
            a.e(f"s_lshl_b32 s{sT}, s2, 3"); a.e(f"s_add_u32 s{sT}, s{sT}, s{sWAVE}"); a.e(f"s_mul_i32 s{sT}, s{sT}, 768"); a.e(f"s_add_u32 s{sT}, s{sT}, {M_TS + MB}")
            a.e(f"v_lshlrev_b32 v{vT0}, 2, v{vL}")
            a.e(f"buffer_store_dword v246, v{vT0}, s[{SW}:{SW+3}], s{sT} offen")
    else:
        a.e(f"s_cmp_eq_u32 s{sLAY}, {5 if opt.get('dbgnocs') else 0}"); a.e(f"s_cselect_b32 s{sHK}, s{sQ}, 7")
        sFo = 31
        flag_off(a, sFo, PH - 1)
        a.e(f"v_lshlrev_b32 v{res.vPO}, 5, v{vL}")
        assert nPre == 2 and LA == 3
        a.e("s_waitcnt vmcnt(0)"); a.e("s_barrier")
        ts(a, opt, PH, 1)
        a.es(reads(0))
        w2e = opt.get("g3w2e", 7)
        w2 = dmaW(2, range(7))
        for gq in w2[:w2e]: a.es(gq); vm.op(("D", 2))
        colsum_hook(0)
        tsc(a, opt, PH, 6)
        vX = TMP + 49
        def lines(fn):
            h = Asm(); h.uid = a.uid + 500; fn(h); a.uid = h.uid
            a.tail += h.tail
            return [x.strip() for x in h.L]
        def tree(h):
            for w in (4, 2, 1):
                for i in range(w):
                    for r in (0, 2): h.e(f"v_pk_add_f32 {v(TMP+4*i+r,2)}, {v(TMP+4*i+r,2)}, {v(TMP+4*(i+w)+r,2)}")
        def st_setup(h):
            h.e(f"s_lshl_b32 s{sH2}, s{sMT}, 15"); h.e(f"s_lshl_b32 s{sT2}, s{sLAY}, 20"); h.e(f"s_add_u32 s{sH2}, s{sH2}, s{sT2}")
            h.e(f"s_lshl_b32 s{sT2}, s{sW4}, 9"); h.e(f"s_add_u32 s{sH2}, s{sH2}, s{sT2}"); h.e(f"s_add_u32 s{sH2}, s{sH2}, {M_ST}")
            h.e(f"v_and_b32 v{vX}, 31, v{vL}"); h.e(f"v_lshlrev_b32 v{vX}, 4, v{vX}")
            h.e(f"v_lshrrev_b32 v{vT0}, 5, v{vL}"); h.e(f"v_lshl_add_u32 v{vX}, v{vT0}, 14, v{vX}")
        def st_loads(lo):
            o = []
            for i in range(lo, lo + 4):
                o.append([f"buffer_load_dwordx4 {v(TMP+4*i,4)}, v{vX}, s[{SW}:{SW+3}], s{sH2} offen offset:{(i&1)*2048} sc1"] +
                         ([f"s_add_u32 s{sH2}, s{sH2}, 4096"] if i & 1 else []))
            return o
        def st_red(h):
            tree(h)
            h.e(f"v_add_f32 v{TMP}, v{TMP}, v{TMP+2}"); h.e(f"v_add_f32 v{TMP+1}, v{TMP+1}, v{TMP+3}")
            h.e(f"v_mov_b32 v{TMP+2}, v{TMP}"); h.e(f"v_mov_b32 v{TMP+3}, v{TMP+1}"); h.e("s_nop 1")
            h.e(f"v_permlane32_swap_b32 v{TMP}, v{TMP+2}"); h.e(f"v_permlane32_swap_b32 v{TMP+1}, v{TMP+3}")
            h.e(f"v_add_f32 v{TMP}, v{TMP}, v{TMP+2}"); h.e(f"v_add_f32 v{TMP+1}, v{TMP+1}, v{TMP+3}")
            finish_stats(h, TMP, TMP + 1)
            h.e(f"v_and_b32 v{vX}, 31, v{vL}"); h.e(f"s_lshl_b32 s{sT}, s{sW4}, 8"); h.e(f"s_add_u32 s{sT}, s{sT}, {L_ST}")
            h.e(f"v_lshlrev_b32 v{vX}, 3, v{vX}"); h.e(f"v_add_u32 v{vX}, s{sT}, v{vX}")
            h.e(f"ds_write_b64 v{vX}, {v(TMP,2)}")
        def cf_flag():
            l = a.new("cf")
            a.e(f"s_cmp_eq_u32 s{sLAY}, {5 if opt.get('dbgnocs') else 0}"); a.e(f"s_cbranch_scc1 {l}"); a.label(f"{l}_b")
            a.ool([f"{l}:", f"s_lshl_b32 s{sT}, s{sNT}, 4", f"s_add_u32 s{sT}, s{sT}, s{sMT}", f"s_lshl_b32 s{sT}, s{sT}, 3",
                   f"s_add_u32 s{sT}, s{sT}, s{sW4}", f"s_lshl_b32 s{sT}, s{sT}, 2", f"s_add_u32 s{sT}, s{sT}, {M_CF}",
                   f"v_mov_b32 v{TMP+40}, 0", f"v_mov_b32 v{TMP+41}, 1", "s_mov_b64 exec, 1",
                   f"buffer_store_dword v{TMP+41}, v{TMP+40}, s[{SW}:{SW+3}], s{sT} offen{SC}", "s_mov_b64 exec, -1", f"s_branch {l}_b"])
        for st in range(8):
            tags = [("D", st + 1)] + (["X"] if st == 7 else [])
            vm.wait(tags, "lgkmcnt(0)"); a.e("s_barrier")
            if st < 3: colsum_hook(st + 1)
            if st == 6: cf_flag()
            kw = {}
            if st == 0:
                m = mfmas(0, True); sl = {}
                pp = opt.get("g3pp", 10)
                spread([[x] for x in reads(1)], 0, pp, sl)
                sl.setdefault(pp, []).extend(lines(lambda h: poll(h, sFo, res.vPO, res.vPL, 4, "0xffff")))
                vm.drain()
                d = dmaA(2) + w2[w2e:]
                for _ in d: vm.op(("D", 2))
                sl[pp] += [x for gq in d for x in gq]
                d = dmaA(3) + dmaW(3, ks_)
                for _ in d: vm.op(("D", 3))
                spread(d, pp + 1, len(m) - 2, sl)
                a.es(place(m, sl))
                continue
            if st == 3: kw = dict(fill=[[x] for x in lines(st_setup)], fill0=12)
            if st == 4: kw = dict(fill=st_loads(0), fill0=20, nvm=4)
            if st == 5: kw = dict(fill=st_loads(4), fill0=20, nvm=4)
            if st == 7: kw = dict(fill=[[x] for x in lines(st_red)])
            step(st, zero=(st == 0), track=True, **kw)
        a.e(f"s_mov_b32 s{sCnt}, 5")
        a.e(f"s_cmp_eq_u32 s{sLAY}, {5 if opt.get('dbgnocs') else 0}"); a.e(f"s_cselect_b32 s{sHK}, 6, 0")
        if opt.get("vw2", 1):
            a.e(f"s_sub_u32 s{sT}, 5, s{sW4}"); a.e(f"s_max_u32 s{sT}, s{sT}, 3"); a.e(f"s_lshl_b32 s{sT}, 1, s{sT}")
            a.e(f"s_cmp_eq_u32 s{sLAY}, 0"); a.e(f"s_cselect_b32 s{sT}, s{sT}, 0"); a.e(f"s_or_b32 s{sHK}, s{sHK}, s{sT}")
        a.label(f"{tag}_loop")
        for st in range(4):
            a.e(f"s_waitcnt vmcnt({(LA - 2) * n}) lgkmcnt(0)"); a.e("s_barrier")
            if st == 0:
                a.e(f"s_bitcmp1_b32 s{sHK}, s{sCnt}"); a.e(f"s_cbranch_scc1 {tag}_hook"); a.label(f"{tag}_hb")
            step(st)
        a.e(f"s_sub_u32 s{sCnt}, s{sCnt}, 1"); a.e(f"s_cmp_lg_u32 s{sCnt}, 0"); a.e(f"s_cbranch_scc1 {tag}_loop")
        def hooks(h):
            F = TMP + 40
            h.label(f"{tag}_hook")
            if opt.get("vw2", 1):
                h.e(f"s_cmp_lt_u32 s{sCnt}, 3"); h.e(f"s_cbranch_scc1 {tag}_h2")
                make_srd(h, 12, pW2, 3584 * 2048)
                h.e(f"s_lshl_b32 s{sT}, s2, 2"); h.e(f"s_add_u32 s{sT}, s{sT}, s{sW4}"); h.e(f"s_mul_i32 s{sT}, s{sT}, 7168")
                h.e(f"v_lshlrev_b32 v247, 7, v{vL}")
                h.e("s_mov_b32 exec_hi, 0x00ffffff")
                h.e(f"buffer_load_dword v248, v247, s[12:15], s{sT} offen")
                h.e("s_mov_b64 exec, -1")
                h.e(f"s_branch {tag}_hb")
                h.label(f"{tag}_h2")
            h.e(f"s_lshl_b32 s{sT}, s{sNT}, 9"); h.e(f"s_add_u32 s{sT}, s{sT}, {M_CF}")
            h.e(f"v_lshlrev_b32 v{vX}, 5, v{vI}")
            h.e(f"s_cmp_eq_u32 s{sCnt}, 1"); h.e(f"s_cbranch_scc1 {tag}_h1")
            h.e(f"buffer_load_dwordx4 {v(F,4)}, v{vX}, s[{SW}:{SW+3}], s{sT} offen sc1")
            h.e(f"s_branch {tag}_hb")
            h.label(f"{tag}_h1")
            h.e(f"v_and_b32 v{F}, v{F}, v{F+1}"); h.e(f"v_and_b32 v{F+2}, v{F+2}, v{F+3}"); h.e(f"v_and_b32 v{F}, v{F}, v{F+2}")
            h.e(f"v_cmp_ne_u32 vcc, 1, v{F}")
            h.e(f"s_cbranch_vccz {tag}_h1b")
            poll(h, sT, vX, F, 4, "0xffff", acquire=False)
            h.label(f"{tag}_h1b")
            h.e(f"s_and_b32 s{sT}, s{sWAVE}, 1"); h.e(f"s_mul_i32 s{sT}, s{sT}, {3584 * 4}")
            h.e(f"s_mul_i32 s{sT2}, s{sNT}, 896"); h.e(f"s_add_u32 s{sT}, s{sT}, s{sT2}")
            h.e(f"s_lshr_b32 s{sT2}, s{sW4}, 1"); h.e(f"s_mul_i32 s{sT2}, s{sT2}, 448"); h.e(f"s_add_u32 s{sT}, s{sT}, s{sT2}")
            h.e(f"s_add_u32 s{sT}, s{sT}, {M_CS}")
            h.e(f"v_and_b32 v{vX}, 31, v{vL}"); h.e(f"v_lshlrev_b32 v{vX}, 4, v{vX}")
            h.e(f"v_lshrrev_b32 v{vT0}, 5, v{vL}"); h.e(f"v_mul_u32_u24 v{vT0}, {8 * 28672}, v{vT0}"); h.e(f"v_add_u32 v{vX}, v{vT0}, v{vX}")
            h.e("s_mov_b32 exec_lo, 0x0fffffff"); h.e("s_mov_b32 exec_hi, 0x0fffffff")
            for i in range(8):
                h.e(f"buffer_load_dwordx4 {v(TMP+4*i,4)}, v{vX}, s[{SW}:{SW+3}], s{sT} offen sc1")
                h.e(f"s_add_u32 s{sT}, s{sT}, 28672")
            h.e("s_mov_b64 exec, -1")
            h.e(f"s_branch {tag}_hb")
        a.ool(lines(hooks))
        def cs_red(h):
            tree(h)
            for i in range(4): h.e(f"v_mov_b32 v{TMP+4+i}, v{TMP+i}")
            h.e("s_nop 1")
            for i in range(4): h.e(f"v_permlane32_swap_b32 v{TMP+i}, v{TMP+4+i}")
            for i in range(4): h.e(f"v_add_f32 v{TMP+i}, v{TMP+i}, v{TMP+4+i}")
        csl = [[x] for x in lines(cs_red)]
        csl.append([f"s_and_b32 s{sT}, s{sWAVE}, 1", f"s_mul_i32 s{sT}, s{sT}, 896", f"s_lshr_b32 s{sT2}, s{sW4}, 1",
                    f"s_mul_i32 s{sT2}, s{sT2}, 448", f"s_add_u32 s{sT}, s{sT}, s{sT2}", f"s_add_u32 s{sT}, s{sT}, {L_CS3}",
                    f"v_add_u32 v{vX}, s{sT}, v{vL16}", f"s_cmp_lg_u32 s{sLAY}, 0", f"s_cbranch_scc1 {tag}_ncs",
                    "s_mov_b64 exec, 0x0fffffff", f"ds_write_b128 v{vX}, {v(TMP,4)}", "s_mov_b64 exec, -1", f"{tag}_ncs:"])
    vY = 247
    def touch(k):
        o = [f"v_lshlrev_b32 v{vY}, 7, v{vL}", f"s_add_u32 s29, s{sWAVE}, {8*k}", f"s_lshl_b32 s30, s29, 12", f"s_add_u32 s30, s30, s{sH}",
             f"s_cmp_lt_u32 s29, s{sHK}", f"s_cselect_b32 s30, s30, 0x7f000000", "s_mov_b64 exec, 0xffffffff",
             f"buffer_load_dword v248, v{vY}, s[{SW}:{SW+3}], s30 offen sc1", "s_mov_b64 exec, -1"]
        return o
    a.e(f"s_sub_u32 s{sHK}, s{sNT}, s{sK4}"); a.e(f"s_and_b32 s{sHK}, s{sHK}, 7")
    a.e(f"s_cmp_lt_u32 s{sHK}, {opt.get('htouch', 4)}"); a.e(f"s_cselect_b32 s{sHK}, 14, 0")
    pf = []
    if cls:
        for st in range(res.CFG[3]['RW']): pf += res.res_w_issue(3, st)
    n300 = opt.get("g3pf300", 8); n30 = opt.get("g3pf30", 6); n31 = opt.get("g3pf31", 6)
    d28 = (LA == 3)
    if opt.get("noptH"): ex = [[], []]
    elif d28: ex = [[], [(0.05, touch(0)), (0.55, touch(1))] if cls == 0 else [(0.3, touch(0)), (0.9, touch(1))]]
    else: ex = [[(0.05, touch(0))], [(0.05, touch(1))]] if cls == 0 else [[(0.6, touch(0))], [(0.6, touch(1))]]
    a.e(f"s_waitcnt vmcnt({(LA - 2) * n}) lgkmcnt(0)"); a.e("s_barrier")
    step(28, dma=d28, extra=ex[0], fill=csl if cls else None)
    a.e(f"s_waitcnt vmcnt({n + len(ex[0])}) lgkmcnt(0)"); a.e("s_barrier")
    step(29, dma=False, extra=ex[1], fill=[[x] for x in lines(lambda h: res.res_w_setup(h, 3))] if cls else None)
    a.e(f"s_waitcnt vmcnt({len(ex[1]) + (0 if d28 else len(ex[0]))}) lgkmcnt(0)"); a.e("s_barrier")
    if opt.get("g3tp", 1): a.e(f"s_setprio {2 if cls == 0 else 1}")
    m = mfmas(30); sl = {}
    if cls == 0:
        spread([[x] for x in reads(31)], 0, 13, sl)
        sl.setdefault(20, []).extend(["s_waitcnt lgkmcnt(0)", "s_barrier"])
    else:
        sl[-1] = reads(31) + ["s_waitcnt lgkmcnt(0)"] + [x for gq in pf[:2] for x in gq] + ["s_barrier"] + [x for gq in pf[2:n300] for x in gq]
        spread(pf[n300:n300 + n30], 0, len(m) - 1, sl)
    a.es(place(m, sl))
    pf = pf[n300 + n30:]
    CS = WF; MR = XF
    a.e(f"s_and_b32 s{sT}, s{sWAVE}, 1"); a.e(f"s_lshl_b32 s{sT}, s{sT}, 9"); a.e(f"s_add_u32 s{sT}, s{sT}, {L_ST}")
    a.e(f"v_lshlrev_b32 v{vT0}, 3, v{vI}"); a.e(f"v_add_u32 v{vT0}, s{sT}, v{vT0}")
    a.e(f"s_lshl_b32 s{sT}, s{sC0}, 6"); a.e(f"s_add_u32 s{sT}, s{sT}, {L_CS3}")
    a.e(f"v_lshlrev_b32 v{vT1}, 4, v{vG}"); a.e(f"v_add_u32 v{vXa}, s{sT}, v{vT1}")
    if cls:
        a.e(f"s_lshr_b32 s{sT}, s{sW4}, 1"); a.e(f"s_add_u32 s{sT}, s{sT}, 10"); a.e(f"s_lshl_b32 s{sT}, s{sT}, 6"); a.e(f"s_add_u32 s{sT}, s{sT}, {L_CS3}")
        a.e(f"v_add_u32 v{vWb}, s{sT}, v{vT1}")
    er = [f"ds_read_b64 {v(MR+2*rt,2)}, v{vT0} offset:{128*rt}" for rt in range(4)]
    for mat in range(2):
        for t in range(NP):
            third = cls and t == 2
            er.append(f"ds_read_b128 {v(CS+(mat*NP+t)*4,4)}, v{vWb if third else vXa} offset:{mat*896 + (0 if third else 64*t)}")
    m = mfmas(31); sl = {}
    spread([[x] for x in er], 0, len(m) // 2, sl)
    spread(pf[:n31], 0, len(m) - 2, sl)
    a.es(place(m, sl))
    pf = pf[n31:]
    if opt.get("g3tp", 1) and cls == 0: a.e("s_setprio 0")
    tsc(a, opt, PH, 7)
    ts(a, opt, PH, 2)
    a.e(f"s_and_b32 s{sT}, s{sWAVE}, 1"); a.e(f"s_lshl_b32 s{sT}, s{sT}, 12"); a.e(f"s_add_u32 s{sH}, s{sH}, s{sT}")
    a.e(f"s_lshr_b32 s{sT}, s{sW4}, 1")
    if cls == 0:
        a.e(f"s_lshl_b32 s{sT}, s{sT}, 14"); a.e(f"s_add_u32 s{sH}, s{sH}, s{sT}"); a.e(f"s_add_u32 s{sH2}, s{sH}, 8192")
    else:
        a.e(f"s_lshl_b32 s{sT2}, s{sT}, 3"); a.e(f"s_add_u32 s{sH2}, s{sH}, s{sT2}"); a.e(f"s_add_u32 s{sH2}, s{sH2}, {5 * 8192}")
        a.e(f"s_lshl_b32 s{sT}, s{sT}, 14"); a.e(f"s_add_u32 s{sH}, s{sH}, s{sT}"); a.e(f"s_add_u32 s{sH}, s{sH}, {4 * 8192}")
    vLo, vLo2 = vWa, vWa + 1
    assert res.aslot(3, 1) == 0 and res.aslot(3, 0) == 7 * AS
    a.e(f"s_and_b32 s{sT}, s{sWAVE}, 1"); a.e(f"s_lshl_b32 s{sT}, s{sT}, 12")
    a.e(f"s_lshr_b32 s{sT2}, s{sW4}, 1")
    if cls == 0:
        a.e(f"s_lshl_b32 s{sT2}, s{sT2}, 14"); a.e(f"s_add_u32 s{sT}, s{sT}, s{sT2}")
        a.e(f"v_add_u32 v{vLo2}, s{sT}, v{vL16}")
        a.e(f"v_add_u16 v{vLo}, 0xe000, v{vLo2}")
    else:
        a.e(f"s_lshl_b32 s{sT3}, s{sT2}, 3"); a.e(f"s_add_u32 s{sT3}, s{sT3}, s{sT}"); a.e(f"s_add_u32 s{sT3}, s{sT3}, {4 * AS}")
        a.e(f"v_add_u32 v{vLo2}, s{sT3}, v{vL16}")
        a.e(f"s_lshl_b32 s{sT2}, s{sT2}, 14"); a.e(f"s_add_u32 s{sT}, s{sT}, s{sT2}"); a.e(f"s_add_u32 s{sT}, s{sT}, {3 * AS}")
        a.e(f"v_add_u32 v{vLo}, s{sT}, v{vL16}")
    a.e("s_waitcnt lgkmcnt(0)")
    B1 = WF + WFS
    NM, RL, I2 = B1, B1 + 8, B1 + 16
    a.e(f"s_mov_b32 s{sT}, 0xbfb8aa3b")
    for rt in range(4):
        a.e(f"v_mul_f32 v{I2+2*rt}, v{MR+2*rt+1}, v{MR+2*rt+1}")
        for d in range(2):
            a.e(f"v_sub_f32 v{NM+2*rt+d}, 0, v{MR+2*rt}")
            a.e(f"v_mul_f32 v{RL+2*rt+d}, s{sT}, v{MR+2*rt+1}")
    for rt in range(4):
        a.e(f"v_rcp_f32 v{I2+2*rt+1}, v{I2+2*rt}")
        a.e(f"v_rcp_f32 v{I2+2*rt}, v{I2+2*rt}")
    E = XF + 20; OUTS = [XF + 24, XF + 28]
    ep = []
    def pk(op, d, srcs):
        ep.append(f"{op} {v(d,2)}, " + ", ".join(v(r, 2) for kind, r in srcs))
    oi = 0
    for rt in range(4):
        t = 0
        while t < NP:
            pair = (t + 1 < NP)
            O = OUTS[oi]; oi ^= 1
            for tt in range(2 if pair else 1):
                cg = acc(0, t + tt, rt); cu = acc(1, t + tt, rt)
                sg = CS + (0 * NP + t + tt) * 4; su = CS + (1 * NP + t + tt) * 4
                for r in (0, 2): pk("v_pk_fma_f32", cg + r, [('b', NM + 2*rt), ('p', sg + r), ('p', cg + r)])
                for r in (0, 2): pk("v_pk_mul_f32", E + r, [('b', RL + 2*rt), ('p', cg + r)])
                for r in range(4): ep.append(f"v_exp_f32 v{E+r}, v{E+r}")
                for r in (0, 2): pk("v_pk_fma_f32", cu + r, [('b', NM + 2*rt), ('p', su + r), ('p', cu + r)])
                for r in (0, 2): pk("v_pk_fma_f32", E + r, [('p', E + r), ('b', I2 + 2*rt), ('b', I2 + 2*rt)])
                for r in range(4): ep.append(f"v_rcp_f32 v{E+r}, v{E+r}")
                for r in (0, 2): pk("v_pk_mul_f32", cg + r, [('p', cg + r), ('p', cu + r)])
                for r in (0, 2): pk("v_pk_mul_f32", cg + r, [('p', cg + r), ('p', E + r)])
                ep.append(f"v_cvt_pk_bf16_f32 v{O+2*tt}, v{cg}, v{cg+1}")
                ep.append(f"v_cvt_pk_bf16_f32 v{O+2*tt+1}, v{cg+2}, v{cg+3}")
            so = sH if t == 0 else sH2
            if pair: ep.append(f"buffer_store_dwordx4 {v(O,4)}, v{vL16}, s[{SW}:{SW+3}], s{so} offen offset:{rt*1024}")
            else: ep.append(f"buffer_store_dwordx2 {v(O,2)}, v{vL16}, s[{SW}:{SW+3}], s{so} offen offset:{rt*1024}")
            ep.append(f"ds_write_b{128 if pair else 64} v{vLo if t == 0 else vLo2}, {v(O, 4 if pair else 2)} offset:{rt*1024}")
            t += 2 if pair else 1
    sl = {}
    spread(pf, 0, int(len(ep) * opt.get("g3pff", 0.6)), sl)
    a.es(place(ep, sl))
    ts(a, opt, PH, 3)
    if cls: signal(a, PH, XF, XF + 1); ts(a, opt, PH, 4)
```

```python
from common import *

RA = 8; AS = 8192; LW = 65536
CFG = {1: dict(NS=32, WS=4224, RW=22, NT=2, WROT=12, AROT=0, SKIP=(14, 15)), 3: dict(NS=56, WS=8448, RW=10, NT=4, WROT=5, AROT=7, SKIP=(0, 2, 27))}
def wslot(ph, st):
    c = CFG[ph]; return LW + ((st + c['WROT']) % c['RW']) * c['WS']
def aslot(ph, st): return ((st + CFG[ph]['AROT']) % RA) * AS

sWR = 12
sWo, sWlo, sWhi, sWm = 48, 49, 50, 51
sAo, sAlo, sAhi, sAm = 52, 53, 54, 55
sD4 = 50
vWp = 244
vPL = 240
vPO = 246


def res_w_setup(a, ph):
    c = CFG[ph]
    if ph == 1:
        make_srd(a, sWR, pWO, 1024 * 2048)
        a.e(f"v_lshrrev_b32 v{vT0}, 3, v{vL}")
        a.e(f"v_lshlrev_b32 v{vT0}, 13, v{vT0}")
        a.e(f"v_and_b32 v{vT1}, 7, v{vL}")
        a.e(f"v_lshl_add_u32 v{vT0}, v{vT1}, 4, v{vT0}")
        a.e(f"s_lshl_b32 s{sT}, s{sW4}, 11")
        a.e(f"v_add_u32 v{vWp}, s{sT}, v{vT0}")
        a.e(f"s_mul_i32 s{sWm}, s{sW4}, 1056")
        a.e(f"s_lshl_b32 s{sWlo}, s{sCI}, 7")
        a.e(f"s_lshl_b32 s{sT}, s{sHP}, 17")
    else:
        make_srd(a, sWR, pW2, 3584 * 2048)
        a.e(f"s_and_b32 s{sT}, s{sNT}, 8")
        a.e(f"v_xor_b32 v{vT1}, s{sT}, v{vI}")
        a.e(f"v_lshlrev_b32 v{vT0}, 14, v{vG}")
        a.e(f"v_and_b32 v{vT1}, 8, v{vT1}")
        a.e(f"v_lshl_add_u32 v{vT0}, v{vT1}, 7, v{vT0}")
        a.e(f"v_and_b32 v{vT1}, 7, v{vI}")
        a.e(f"v_lshl_add_u32 v{vT0}, v{vT1}, 4, v{vT0}")
        a.e(f"s_lshl_b32 s{sT}, s{sW4}, 12")
        a.e(f"v_add_u32 v{vWp}, s{sT}, v{vT0}")
        a.e(f"v_add_u32 v{vWp+1}, 2048, v{vWp}")
        a.e(f"s_mul_i32 s{sWm}, s{sW4}, 2112")
        a.e(f"s_lshr_b32 s{sT}, s{sNT}, 3")
        a.e(f"s_mul_i32 s{sWlo}, s{sT}, {56 * 65536}")
        a.e(f"s_lshl_b32 s{sT2}, s{sN8}, 7")
        a.e(f"s_add_u32 s{sWlo}, s{sWlo}, s{sT2}")
        a.e(f"s_sub_u32 s{sD4}, s{sNT}, s{sK4}"); a.e(f"s_and_b32 s{sD4}, s{sD4}, 7")
        return
    a.e(f"s_add_u32 s{sWhi}, s{sWlo}, {c['NS'] * 65536}")
    a.e(f"s_add_u32 s{sWo}, s{sWlo}, s{sT}")


def chunk_base(pos, dst, lo, mul):
    if pos == 0: o = [f"s_and_b32 s{dst}, s{sNT}, 7"]
    else: o = [f"s_cmp_le_u32 s{sD4}, {pos - 1}", f"s_addc_u32 s{dst}, s{sK4}, {pos - 1}", f"s_and_b32 s{dst}, s{dst}, 7"]
    return o + [f"s_mul_i32 s{dst}, s{dst}, {mul}", f"s_add_u32 s{dst}, s{dst}, s{lo}"]


def res_w_issue(ph, st):
    c = CFG[ph]; g = []
    for i in range(c['NT'] // 2):
        g.append([f"s_add_u32 m0, s{sWm}, {wslot(ph, st) + i * 1056}", "s_nop 0",
                  f"buffer_load_dwordx4 v{vWp+i}, s[{sWR}:{sWR+3}], s{sWo} offen lds"])
    g[-1] += [f"s_add_u32 s{sWo}, s{sWo}, 65536"]
    if ph == 1: g[-1] += [f"s_cmp_eq_u32 s{sWo}, s{sWhi}", f"s_cselect_b32 s{sWo}, s{sWlo}, s{sWo}"]
    elif st % 7 == 0: g[0] = chunk_base(st // 7, sWo, sWlo, 7 * 65536) + g[0]
    return g


def res_nxt(a, ph, vm, n):
    def mk(st):
        def f():
            for g in res_w_issue(ph, st):
                a.es(g); vm.op()
        return f
    return [(wslot(ph, st), wslot(ph, st) + CFG[ph]['WS'], mk(st)) for st in range(n)]


def touch_x(a, ph, vm):
    l = a.new("pt")
    a.e(f"s_cmp_ge_u32 s{sW4}, 2"); a.e(f"s_cbranch_scc1 {l}")
    xnew_off(a, ph, sT)
    a.e(f"v_lshlrev_b32 v{vT0}, 7, v{vL}")
    a.e(f"s_lshl_b32 s{sT2}, s{sW4}, 13"); a.e(f"s_add_u32 s{sT}, s{sT}, s{sT2}")
    a.e(f"buffer_load_dword v{vT1}, v{vT0}, s[{SW}:{SW+3}], s{sT} offen sc1")
    a.label(l)


def res_load(a, opt, ph, prefetched, nxt_setup, nxt_items, nxtcap, warm=None, vtouch=None):
    c = CFG[ph]; NS = c['NS']
    vm = VM(a)
    nxt_setup()
    if ph == 1:
        touch_x(a, ph, vm)
        a.e(f"s_lshl_b32 s{sAlo}, s{sLB}, 22")
        a.e(f"s_lshl_b32 s{sT}, s{sMT}, 18")
        a.e(f"s_add_u32 s{sAlo}, s{sAlo}, s{sT}")
        a.e(f"s_add_u32 s{sAlo}, s{sAlo}, {WS_O}")
        a.e(f"s_lshl_b32 s{sT2}, s{sHP}, 14")
    else:
        a.e(f"s_lshl_b32 s{sAlo}, s{sLB}, 24")
        a.e(f"s_mul_i32 s{sT}, s{sMT}, {112 * 8192}")
        a.e(f"s_add_u32 s{sAlo}, s{sAlo}, s{sT}")
        a.e(f"s_lshr_b32 s{sT}, s{sNT}, 3")
        a.e(f"s_mul_i32 s{sT}, s{sT}, {56 * 8192}")
        a.e(f"s_add_u32 s{sAlo}, s{sAlo}, s{sT}")
        a.e(f"s_add_u32 s{sAlo}, s{sAlo}, {WS_H}")
    a.e(f"s_lshl_b32 s{sAm}, s{sW4}, 11")
    a.e(f"s_add_u32 s{sAlo}, s{sAlo}, s{sAm}")
    if ph == 1:
        a.e(f"s_add_u32 s{sAhi}, s{sAlo}, {NS * 8192}")
        a.e(f"s_add_u32 s{sAo}, s{sAlo}, s{sT2}")
    sFo = 56
    flag_off(a, sFo, ph - 1)
    if ph == 1:
        a.e(f"v_lshlrev_b32 v{vPO}, 5, v{vL}")
        mask = "0xffff"
    else:
        a.e(f"v_lshlrev_b32 v{vPO}, 4, v{vL}")
        a.e(f"v_lshrrev_b32 v{vT0}, 1, v{vL}")
        a.e(f"s_lshl_b32 s{sT2}, s{sX}, 1")
        a.e(f"v_subrev_u32 v{vT0}, s{sT2}, v{vT0}")
        a.e(f"v_xor_b32 v{vT0}, s{sNT}, v{vT0}")
        a.e(f"v_and_b32 v{vT0}, 8, v{vT0}")
        a.e(f"v_cmp_eq_u32 vcc, 0, v{vT0}")
        a.e(f"s_mov_b32 s{sEXS}, vcc_lo")
        a.e(f"s_mov_b32 s{sEXS+1}, 0")
        mask = f"s[{sEXS}:{sEXS+1}]"
    def do_poll():
        ts(a, opt, ph, 0)
        poll(a, sFo, vPO, vPL, 4, mask); vm.drain()
        ts(a, opt, ph, 1)
    wl = []
    if ph == 1:
        wl = warm() if warm else []
        n0 = opt.get("w3a", 96)
        a.es([x for gq in wl[:n0] for x in gq]); wl = wl[n0:]
        if opt.get("vt", 1) and opt.get("vtb", -1) < 0: vtouch(opt.get("vt", 1))
        do_poll()

    def issW(st):
        for g in res_w_issue(ph, st):
            a.es(g); vm.op(("W", st))
    def issA(st):
        if ph == 3 and st % 7 == 0: a.es(chunk_base(st // 7, sAo, sAlo, 7 * 8192))
        a.e(f"s_add_u32 m0, s{sAm}, {aslot(ph, st)}")
        a.e("s_nop 0")
        for i in range(2):
            a.e(f"buffer_load_dwordx4 v{vL16}, s[{SW}:{SW+3}], s{sAo} offen offset:{i*1024} sc1 lds"); vm.op(("A", st))
        a.e(f"s_add_u32 s{sAo}, s{sAo}, 8192")
        if ph == 1: a.e(f"s_cmp_eq_u32 s{sAo}, s{sAhi}"); a.e(f"s_cselect_b32 s{sAo}, s{sAlo}, s{sAo}")
    W = Stream("W", NS, c['RW'], issW, lambda u: (wslot(ph, u), wslot(ph, u) + c['WS']), issued=prefetched)
    A = Stream("A", NS, RA, issA, lambda u: (aslot(ph, u), aslot(ph, u) + AS), issued=0 if ph == 1 else 7)
    def touchP():
        a.e(f"v_lshlrev_b32 v{vT0}, 7, v{vL}")
        p_off(a, sT, sNT, sW4)
        a.e(f"buffer_load_dword v{vPL}, v{vT0}, s[{SW}:{SW+3}], s{sT} offen sc1"); vm.op()
    def touchX():
        xnew_off(a, ph, sT)
        a.e(f"s_lshl_b32 s{sT2}, s{sW4}, 12"); a.e(f"s_add_u32 s{sT}, s{sT}, s{sT2}")
        a.e(f"s_lshl_b32 s{sT2}, s{sX}, 1"); a.e(f"s_sub_u32 s{sT2}, s{sJ4}, s{sT2}"); a.e(f"s_and_b32 s{sT2}, s{sT2}, 15")
        a.e(f"s_cmp_lt_u32 s{sT2}, {opt.get('xtouch', 16)}"); a.e(f"s_cselect_b32 s{sT}, s{sT}, 0x7f000000")
        a.e(f"v_lshlrev_b32 v{vT0}, 7, v{vL}")
        a.e("s_mov_b64 exec, 0xffffffff")
        a.e(f"buffer_load_dword v{vPL+1}, v{vT0}, s[{SW}:{SW+3}], s{sT} offen sc1"); vm.op()
        a.e("s_mov_b64 exec, -1")
    ev0 = barrier_events(NS, deep=(ph == 1)); ev = []
    for e in ev0:
        if e[0] != "Bm1" and int(e[0][1:]) in c['SKIP']: ev[-1] = (ev[-1][0], e[1], ev[-1][2])
        else: ev.append(e)
    hooks = {}; pre_hooks = {}
    if ph == 1:
        pre = ["A"] * 4
        wp = opt.get("w3p", 10)
        for p in range(13):
            hooks[f"B{p}"] = (lambda p=p: a.es([x for gq in wl[p * wp:(p + 1) * wp] for x in gq]))
        if opt.get("vt", 1) and opt.get("vtb", -1) >= 0: hooks[f"B{opt.get('vtb')}"] = lambda: vtouch(opt.get("vt", 1))
        laA = opt.get("g2la", 4)
        la = lambda n, idx: laA if n == "A" else 14
        cap = lambda idx: 3
    else:
        pre = []
        l4 = opt.get("g4la", 3)
        la = lambda n, idx: (0 if idx == 0 else (opt.get("g4l1", 2) if idx == 1 else l4))
        cap = lambda idx: opt.get("g4c1", 4) if idx == 1 else opt.get("g4cap", 4) + (1 if idx < 8 else 0)
        pre_hooks["B1"] = do_poll
        if not opt.get("noptP"): hooks[f"B{opt.get('ptb', 25)}"] = lambda: (None if opt.get("sP") else touchP(), touchX())
        nw4 = opt.get("w4n", 0)
        if nw4:
            a.es(chunk_base(1, 42, sWlo, 7 * 65536))
            a.e(f"s_lshl_b32 s43, s{sQ}, 2"); a.e(f"s_add_u32 s43, s43, s{sW4}"); a.e("s_lshl_b32 s43, s43, 13"); a.e("s_add_u32 s42, s42, s43")
            a.e(f"s_add_u32 s44, s{pW2}, s42"); a.e(f"s_addc_u32 s45, s{pW2+1}, 0")
            w4l = [f"s_load_dword s43, s[44:45], {(3 + u) * 65536 + rr * 2048 + o}" for u in range(nw4) for rr in range(4) for o in (0, 64, 1024, 1088)]
            a.e("s_waitcnt lgkmcnt(0)")
            a.es(w4l)
        sp = opt.get("sP", 0)
        if sp:
            p_off(a, 38, sNT, sW4)
            a.e(f"s_add_u32 s38, s{sWS}, s38"); a.e(f"s_addc_u32 s39, s{sWS+1}, 0")
            pl = [f"s_load_dword s43, s[38:39], {o}" for o in range(0, 8192, 64)]
            np_ = -(-len(pl) // sp)
            for i in range(np_):
                nm = f"B{26 - np_ + i}"; h0 = hooks.get(nm)
                hooks[nm] = (lambda i=i, h0=h0: (a.es(pl[i * sp:(i + 1) * sp]), h0() if h0 else None))
        ah = opt.get("g4as", 6)
        if ah:
            a.e("s_lshr_b32 s40, s2, 3"); a.e("s_lshl_b32 s40, s40, 2"); a.e(f"s_add_u32 s40, s40, s{sW4}")
            a.e("s_and_b32 s41, s40, 31"); a.e("s_lshl_b32 s41, s41, 11")
            a.e("s_lshr_b32 s46, s40, 5"); a.e("s_and_b32 s46, s46, 1")
            a.e("s_lshr_b32 s40, s40, 6"); a.e(f"s_mul_i32 s40, s40, {56 * 65536}"); a.e("s_add_u32 s40, s40, s41")
            a.e(f"s_add_u32 s40, s{pW2}, s40"); a.e(f"s_addc_u32 s41, s{pW2+1}, 0")
            a.e(f"s_mul_i32 s47, s{sK4}, 7"); a.e("s_add_u32 s46, s46, s47")
            def go(u):
                a.e(f"s_add_u32 s42, s46, {2 * u}"); a.e("s_cmp_ge_u32 s42, 56"); a.e("s_cselect_b32 s47, 56, 0"); a.e("s_sub_u32 s42, s42, s47")
                a.e("s_lshl_b32 s42, s42, 16")
                a.e("s_add_u32 s44, s40, s42"); a.e("s_addc_u32 s45, s41, 0")
                for o in (384, 448, 1408, 1472): a.e(f"s_load_dword s43, s[44:45], {o}")
            done = 5
            for e in ev:
                p = -1 if e[0] == "Bm1" else int(e[0][1:])
                us = list(range(done, min(p + ah + 1, 28))); done = max(done, min(p + ah + 1, 28))
                if us:
                    h0 = pre_hooks.get(e[0])
                    pre_hooks[e[0]] = (lambda us=us, h0=h0: ([go(u) for u in us], h0() if h0 else None))
    log = []
    n = run_loader(a, vm, ev, [A, W], pre, la, cap, hooks, None, nxt_items(vm), nxtcap, log, tl=opt.get('tl') == f'g{ph+1}',
                   lgk=set() if (ph == 1 or opt.get("w4n", 0)) else {"Bm1"}, pre_hooks=pre_hooks)
    if opt.get("log"): print(ph, log)
    ts(a, opt, ph, 2)
    return n


def p_off(a, dst, s_nt, s_w):
    a.e(f"s_lshl_b32 s{dst}, s{sMT}, 4")
    a.e(f"s_add_u32 s{dst}, s{dst}, s{s_nt}")
    a.e(f"s_lshl_b32 s{dst}, s{dst}, 2")
    a.e(f"s_add_u32 s{dst}, s{dst}, s{s_w}")
    a.e(f"s_lshl_b32 s{dst}, s{dst}, 13")
    a.e(f"s_lshl_b32 s{sT3}, s{sLB}, 23")
    a.e(f"s_add_u32 s{dst}, s{dst}, s{sT3}")
    a.e(f"s_add_u32 s{dst}, s{dst}, {WS_P}")


def xtile_off(a, dst, s_j, idx_mul, idx_add):
    a.e(f"s_lshl_b32 s{dst}, s{sMT}, 4")
    a.e(f"s_add_u32 s{dst}, s{dst}, s{s_j}")
    a.e(f"s_lshl_b32 s{dst}, s{dst}, 14")
    if idx_mul:
        a.e(f"s_mul_i32 s{sT3}, s{sLB}, {idx_mul * 4 * MB}")
        a.e(f"s_add_u32 s{dst}, s{dst}, s{sT3}")
    if idx_add:
        a.e(f"s_mul_i32 s{sT3}, s{sXM}, {idx_add * 4 * MB}")
        a.e(f"s_add_u32 s{dst}, s{dst}, s{sT3}")
    assert WS_X == 0


def xnew_off(a, ph, dst):
    if ph == 1: xtile_off(a, dst, sCI, 2, 0)
    else: xtile_off(a, dst, sJ4, 0, 1)


def res_cons(a, opt, ph, prev_signal=None):
    nxo = 4
    c = CFG[ph]; NS = c['NS']; NT = c['NT']; RW = c['RW']; WS_ = c['WS']
    FB = 32 if ph == 1 else 64; FS = 16 + 4 * NT
    XO = 128
    XU = 144
    RC = 176
    E = 208
    vA, vW0, vWc = 240, 241, 242
    sSl, sCnt, sXo, sXn = 16, 17, 18, 19
    sIO = 8
    def acc(t, rt): return (t * 4 + rt) * 4
    def xf(b, rt, sub=0): return FB + (b * (2 if ph == 1 else 1) + sub) * FS + rt * 4
    def wf(b, t, sub=0): return FB + (b * (2 if ph == 1 else 1) + sub) * FS + 16 + t * 4
    tag = f"r{ph}"
    a.e(f"s_lshr_b32 s{sT}, s{sWAVE}, 1"); a.e(f"s_lshl_b32 s{sT}, s{sT}, 12")
    a0 = aslot(ph, 0) - (0 if ph == 1 else AS); w0 = wslot(ph, 0) - LW - (0 if ph == 1 else WS_)
    assert a0 % (2 * AS) == 0 and w0 % (2 * WS_) == 0 and a0 >= 0 and w0 >= 0
    if a0: a.e(f"s_add_u32 s{sT}, s{sT}, {a0}")
    a.e(f"v_add_u32 v{vA}, s{sT}, v{vL16}")
    a.e(f"v_lshrrev_b32 v{vT0}, 2, v{vI}")
    if ph == 1:
        a.e(f"v_mul_u32_u24 v{vT0}, 1056, v{vT0}")
        a.e(f"v_lshl_add_u32 v{vT0}, v{vG}, 7, v{vT0}")
        toff = [0, 32]
    else:
        a.e(f"v_and_b32 v{vT1}, 1, v{vG}")
        a.e(f"v_lshl_add_u32 v{vT0}, v{vT1}, 2, v{vT0}")
        a.e(f"v_mul_u32_u24 v{vT0}, 1056, v{vT0}")
        a.e(f"v_lshrrev_b32 v{vT1}, 1, v{vG}")
        a.e(f"v_lshl_add_u32 v{vT0}, v{vT1}, 8, v{vT0}")
        toff = [0, 32, 128, 160]
    a.e(f"v_and_b32 v{vT1}, 3, v{vI}")
    a.e(f"v_lshl_add_u32 v{vT0}, v{vT1}, 3, v{vT0}")
    a.e(f"s_and_b32 s{sT}, s{sWAVE}, 1"); a.e(f"s_lshl_b32 s{sT}, s{sT}, 6"); a.e(f"s_add_u32 s{sT}, s{sT}, {LW}")
    a.e(f"v_add_u32 v{vW0}, s{sT}, v{vT0}")
    a.e(f"s_mov_b32 s{sSl}, {w0}")
    a.e(f"v_add_u32 v{vWc}, s{sSl}, v{vW0}")
    a.e(f"s_and_b32 s{sT}, s{sWAVE}, 1"); a.e(f"s_lshl_b32 s{sT}, s{sT}, 13")
    a.e(f"s_lshr_b32 s{sT2}, s{sWAVE}, 1"); a.e(f"s_lshl_b32 s{sT2}, s{sT2}, 12")
    a.e(f"s_add_u32 s{sCnt}, s{sT}, s{sT2}")
    xnew_off(a, ph, sXn); a.e(f"s_add_u32 s{sXn}, s{sXn}, s{sCnt}")
    vOwn = 239
    if ph == 1: a.e(f"v_add_u32 v{vOwn}, s{sCnt}, v{vL16}")
    vRM = 243
    def rowmajor(s_j):
        a.e(f"s_lshl_b32 s{sT}, s{sMT}, 1"); a.e(f"s_lshr_b32 s{sT2}, s{sWAVE}, 1"); a.e(f"s_add_u32 s{sT}, s{sT}, s{sT2}")
        a.e(f"s_lshl_b32 s{sT}, s{sT}, 17")
        a.e(f"s_lshl_b32 s{sT2}, s{s_j}, 7"); a.e(f"s_add_u32 s{sT}, s{sT}, s{sT2}")
        a.e(f"s_and_b32 s{sT2}, s{sWAVE}, 1"); a.e(f"s_lshl_b32 s{sT2}, s{sT2}, 6"); a.e(f"s_add_u32 s{sT}, s{sT}, s{sT2}")
        a.e(f"v_lshlrev_b32 v{vRM}, 11, v{vI}")
        a.e(f"v_add_u32 v{vRM}, s{sT}, v{vRM}")
    if ph == 1:
        l = a.new("xo")
        a.e(f"s_cmp_lg_u32 s{sLAY}, 0"); a.e(f"s_cbranch_scc1 {l}_f")
        make_srd(a, sIO, pAX, 4 * MB)
        rowmajor(sCI)
        a.e(f"v_lshl_add_u32 v{vRM}, v{vG}, 3, v{vRM}")
        for rt in range(4):
            a.e(f"s_mov_b32 s{sT}, {rt * 32768}")
            a.e(f"buffer_load_dwordx2 {v(XO+4*rt,2)}, v{vRM}, s[{sIO}:{sIO+3}], s{sT} offen")
            a.e(f"buffer_load_dwordx2 {v(XO+4*rt+2,2)}, v{vRM}, s[{sIO}:{sIO+3}], s{sT} offen offset:32")
        a.e(f"s_branch {l}_d")
        a.label(f"{l}_f")
        xtile_off(a, sXo, sCI, 0, 1)
    else:
        xtile_off(a, sXo, sJ4, 2, 0)
    a.e(f"s_add_u32 s{sXo}, s{sXo}, s{sCnt}")
    for rt in range(4):
        a.e(f"buffer_load_dwordx4 {v(XO+4*rt,4)}, v{vL16}, s[{SW}:{SW+3}], s{sXo} offen offset:{rt*1024} sc1")
    if ph == 1: a.label(f"{l}_d")

    KS = 2 if ph == 1 else 1
    def rd_list(b, sub, ao, wo):
        g = []
        for i in range(4):
            g.append(f"ds_read_b128 {v(xf(b,i,sub),4)}, v{vA} offset:{ao + i*1024}")
            if i < NT:
                g.append(f"ds_read_b64_tr_b16 {v(wf(b,i,sub),2)}, v{vWc} offset:{wo + toff[i]}")
                g.append(f"ds_read_b64_tr_b16 {v(wf(b,i,sub)+2,2)}, v{vWc} offset:{wo + toff[i] + 512}")
        return g
    adv = [[f"v_add_u16 v{vA}, 0x4000, v{vA}"], [f"s_add_u32 s{sSl}, s{sSl}, {2*WS_}", f"s_cmp_eq_u32 s{sSl}, {RW * WS_}"],
           [f"s_cselect_b32 s{sSl}, 0, s{sSl}"], [f"v_add_u32 v{vWc}, s{sSl}, v{vW0}"]]
    torder = [2, 3, 0, 1] if NT == 4 else [0, 1]
    def mf(b, sub): return [mfma(acc(t, rt), wf(b, t, sub), xf(b, rt, sub)) for t in torder for rt in range(4)]
    rdend = opt.get(f"g{ph+1}rd", 9 if ph == 3 else 10)
    def seg(m, rd, post):
        sl = {}
        spread(rd, 0, rdend, sl)
        spread(post, rdend + 1, 14, sl)
        sl.setdefault(15, []).append("s_waitcnt lgkmcnt(0)")
        a.es(place(m, sl))
    for i in range(4): a.e(f"v_mov_b32 v{E+i}, 0")
    a.e("s_nop 1")
    for i in range(0, 16 * NT, 16): a.e(f"v_mfma_f32_32x32x16_bf16 {v(i,16)}, {v(E,4)}, {v(E,4)}, 0")
    a.e(f"s_mov_b32 s{sCnt}, {NS // 4}")
    if prev_signal: prev_signal(nxo)
    ts(a, opt, ph, 0)
    a.e("s_waitcnt lgkmcnt(0)")
    a.e("s_barrier")
    ts(a, opt, ph, 1)
    if ph == 1:
        a.es(rd_list(0, 0, 0, 0) + rd_list(0, 1, AS, WS_))
    else:
        a.es(rd_list(0, 0, AS, WS_))
    for g in adv: a.es(g)
    a.e("s_waitcnt lgkmcnt(0)")
    tsc(a, opt, ph, 6)
    a.label(f"{tag}_loop")
    for per in range(2):
        mk = sum(1 << (NS // 4 - p // 2) for p in c['SKIP'] if p % 2 == per)
        if mk:
            a.e(f"s_bitcmp1_b32 {mk}, s{sCnt}"); a.e(f"s_cbranch_scc1 {tag}_nb{per}")
        a.e("s_barrier")
        a.label(f"{tag}_nb{per}")
        cnt = [[f"s_sub_u32 s{sCnt}, s{sCnt}, 1", f"s_cmp_lg_u32 s{sCnt}, 0"]] if per == 1 else []
        if ph == 1:
            seg(mf(per, 0) + mf(per, 1), rd_list(1 - per, 0, 0, 0) + rd_list(1 - per, 1, AS, WS_), adv + cnt)
        else:
            seg(mf(0, 0), rd_list(1, 0, 0, 0), [])
            seg(mf(1, 0), rd_list(0, 0, AS, WS_), adv + cnt)
    a.e(f"s_cbranch_scc1 {tag}_loop")
    tsc(a, opt, ph, 7)
    ts(a, opt, ph, 2)
    def unpack_x():
        a.e("s_waitcnt vmcnt(0)" if ph == 1 else "s_waitcnt vmcnt(8)")
        for i in range(16):
            a.e(f"v_lshlrev_b32 v{XU+2*i}, 16, v{XO+i}")
            a.e(f"v_and_b32 v{XU+2*i+1}, 0xffff0000, v{XO+i}")
    if ph == 3:
        sP, sF = 20, 21
        p_off(a, sP, sNT, sWAVE)
        a.e(f"s_add_u32 s{sT2}, s{sP}, 4096")
        for i in range(8):
            so = sP if i < 4 else sT2
            if opt.get("noPst"): a.e(f"buffer_store_dwordx4 {v(32+4*i,4)}, v{vL16}, s[{SW}:{SW+3}], s{sP} offen")
            else: a.e(f"buffer_store_dwordx4 {v(32+4*i,4)}, v{vL16}, s[{SW}:{SW+3}], s{so} offen offset:{(i%4)*1024}" + opt.get("pfl", "").replace("_", " "))
        a.e(f"s_lshl_b32 s{sF}, s{sLAY}, 4"); a.e(f"s_add_u32 s{sF}, s{sF}, s{sMT}"); a.e(f"s_lshl_b32 s{sF}, s{sF}, 4")
        a.e(f"s_add_u32 s{sF}, s{sF}, s{sNT}"); a.e(f"s_lshl_b32 s{sF}, s{sF}, 2"); a.e(f"s_add_u32 s{sF}, s{sF}, s{sWAVE}")
        a.e(f"s_lshl_b32 s{sF}, s{sF}, 2"); a.e(f"s_add_u32 s{sF}, s{sF}, {M_XF}")
        unpack_x()
        store_flag(a, sF, E, E + 1)
        ts(a, opt, ph, 3)
        a.e(f"s_xor_b32 s{sF}, s{sF}, 128")
        a.e(f"s_xor_b32 s{sP}, s{sP}, {8 * 4 * 8192}")
        poll(a, sF, E, E + 2, 1, "1")
        a.e(f"s_add_u32 s{sT2}, s{sP}, 4096")
        for i in range(8):
            so = sP if i < 4 else sT2
            a.e(f"buffer_load_dwordx4 {v(RC+4*i,4)}, v{vL16}, s[{SW}:{SW+3}], s{so} offen offset:{(i%4)*1024} sc1")
        ts(a, opt, ph, 4)
    else:
        a.e("s_nop 4")
        unpack_x()
    O = 64
    S = 80
    vOne = 88
    Y = E
    a.e(f"v_mov_b32 v{vOne}, 0x{ONES:08x}")
    def fin_rt(rt):
        if ph == 3:
            a.e(f"s_waitcnt vmcnt({3 - rt + fin_rt.younger})")
            for t in range(2):
                for r in (0, 2):
                    cc = acc(t, rt) + r; rr = RC + 4 * (t * 4 + rt) + r
                    a.e(f"v_pk_add_f32 {v(cc,2)}, {v(cc,2)}, {v(rr,2)}")
        for t in range(2):
            cc = acc(t, rt)
            a.e(f"v_cvt_pk_bf16_f32 v{Y+2*t}, v{cc}, v{cc+1}")
            a.e(f"v_cvt_pk_bf16_f32 v{Y+2*t+1}, v{cc+2}, v{cc+3}")
        for i in range(4):
            a.e(f"v_lshlrev_b32 v{Y+4+2*i}, 16, v{Y+i}")
            a.e(f"v_and_b32 v{Y+5+2*i}, 0xffff0000, v{Y+i}")
        for i in range(4):
            a.e(f"v_pk_add_f32 {v(Y+4+2*i,2)}, {v(Y+4+2*i,2)}, {v(XU+8*rt+2*i,2)}")
        for i in range(4):
            a.e(f"v_cvt_pk_bf16_f32 v{O+4*rt+i}, v{Y+4+2*i}, v{Y+5+2*i}")
    lo = a.new("fo")
    if ph == 3:
        a.e(f"s_cmp_lg_u32 s{sLAY}, 0"); a.e(f"s_cbranch_scc1 {lo}_out")
    for rt in range(4):
        fin_rt.younger = rt
        fin_rt(rt)
        a.e(f"buffer_store_dwordx4 {v(O+4*rt,4)}, v{vL16}, s[{SW}:{SW+3}], s{sXn} offen offset:{rt*1024}")
        if ph == 1: a.e(f"ds_write_b128 v{vOwn}, {v(O+4*rt,4)} offset:{rt*1024}")
    for rt in range(4):
        for i in range(4):
            a.e(f"v_dot2_f32_bf16 v{S+rt}, v{O+4*rt+i}, v{vOne}, " + ("0" if i == 0 else f"v{S+rt}"))
            a.e(f"v_dot2_f32_bf16 v{S+4+rt}, v{O+4*rt+i}, v{O+4*rt+i}, " + ("0" if i == 0 else f"v{S+4+rt}"))
    s_j = sCI if ph == 1 else sJ4
    a.e(f"s_lshl_b32 s{sT}, s{sMT}, 4"); a.e(f"s_add_u32 s{sT}, s{sT}, s{s_j}"); a.e(f"s_lshl_b32 s{sXo}, s{sT}, 8")
    a.e(f"s_lshl_b32 s{sT}, s{sT}, 11")
    if ph == 1:
        a.e(f"s_lshl_b32 s{sT2}, s{sLAY}, 20"); a.e(f"s_add_u32 s{sT}, s{sT}, s{sT2}"); a.e(f"s_add_u32 s{sT}, s{sT}, {M_ST}")
    else:
        a.e(f"s_add_u32 s{sT}, s{sT}, {M_ST + 524288}")
    a.e(f"s_lshr_b32 s{sT2}, s{sWAVE}, 1"); a.e(f"s_lshl_b32 s{sT2}, s{sT2}, 10"); a.e(f"s_add_u32 s{sT}, s{sT}, s{sT2}")
    a.e(f"s_and_b32 s{sT2}, s{sWAVE}, 1"); a.e(f"s_lshl_b32 s{sT2}, s{sT2}, 3"); a.e(f"s_add_u32 s{sT}, s{sT}, s{sT2}")
    a.e(f"s_add_u32 s{sXo}, s{sXo}, s{sT2}")
    for b in (S, S + 4):
        a.e(f"v_permlane16_swap_b32 v{b}, v{b+1}")
        a.e(f"v_permlane16_swap_b32 v{b+2}, v{b+3}")
    for b in (S, S + 4):
        a.e(f"v_add_f32 v{b}, v{b}, v{b+1}")
        a.e(f"v_add_f32 v{b+2}, v{b+2}, v{b+3}")
    a.e("s_nop 1")
    for b in (S, S + 4): a.e(f"v_permlane32_swap_b32 v{b}, v{b+2}")
    a.e(f"v_add_f32 v{S}, v{S}, v{S+2}")
    a.e(f"v_add_f32 v{S+1}, v{S+4}, v{S+6}")
    a.e(f"buffer_store_dwordx2 {v(S,2)}, v{vL16}, s[{SW}:{SW+3}], s{sT} offen")
    if ph == 1:
        ts(a, opt, ph, 5)
        return
    lh = a.new("hl")
    a.e(f"s_cmp_lt_u32 s{sWAVE}, 2"); a.e(f"s_cbranch_scc1 {lh}_no")
    a.e(f"v_cmp_eq_u32 vcc, 0, v{vI}")
    a.e(f"s_lshl_b32 s{sT}, s{sMT}, 4"); a.e(f"s_add_u32 s{sT}, s{sT}, s{sJ4}"); a.e(f"s_lshl_b32 s{sT}, s{sT}, 1")
    a.e(f"s_and_b32 s{sT2}, s{sWAVE}, 1"); a.e(f"s_add_u32 s{sT}, s{sT}, s{sT2}"); a.e(f"s_lshl_b32 s{sT}, s{sT}, 10")
    a.e(f"s_add_u32 s{sT}, s{sT}, {M_HALO}")
    for i in range(4): a.e(f"v_cndmask_b32 v{E+4+i}, v{O+12+i}, v{vOne}, vcc")
    a.e(f"buffer_store_dwordx4 {v(E+4,4)}, v{vL16}, s[{SW}:{SW+3}], s{sT} offen{SC}")
    a.e(f"s_add_u32 s{sXo}, s{sXo}, {M_HST - 768}")
    a.e("s_mov_b32 exec_lo, 0"); a.e("s_mov_b32 exec_hi, 0xffff0000")
    a.e(f"buffer_store_dwordx2 {v(S,2)}, v{vL16}, s[{SW}:{SW+3}], s{sXo} offen{SC}")
    a.e("s_mov_b64 exec, -1")
    signal(a, ph, E, E + 1, pending=2)
    a.e(f"s_lshl_b32 s{sT}, s{sMT}, 4"); a.e(f"s_add_u32 s{sT}, s{sT}, s{sCI}"); a.e(f"s_lshl_b32 s{sT}, s{sT}, 5")
    a.e(f"s_and_b32 s{sT2}, s{sWAVE}, 1"); a.e(f"s_lshl_b32 s{sT2}, s{sT2}, 2"); a.e(f"s_add_u32 s{sT}, s{sT}, s{sT2}")
    a.e(f"s_add_u32 s{sT}, s{sT}, {M_HF}")
    a.e("s_waitcnt vmcnt(1)")
    a.e("s_mov_b64 exec, 1")
    a.e(f"buffer_store_dword v{E+1}, v{E}, s[{SW}:{SW+3}], s{sT} offen{SC}")
    a.e("s_mov_b64 exec, -1")
    a.e(f"s_branch {lh}_done")
    a.label(f"{lh}_no")
    signal(a, ph, E, E + 1)
    a.label(f"{lh}_done")
    ts(a, opt, ph, 5)
    a.e(f"s_branch {lo}_end")
    a.label(f"{lo}_out")
    make_srd(a, sIO, pOUT, 4 * MB)
    rowmajor(sJ4)
    a.e(f"v_and_b32 v{vT0}, 1, v{vG}"); a.e(f"v_lshl_add_u32 v{vRM}, v{vT0}, 5, v{vRM}")
    a.e(f"v_lshrrev_b32 v{vT0}, 1, v{vG}"); a.e(f"v_lshl_add_u32 v{vRM}, v{vT0}, 4, v{vRM}")
    for rt in range(4):
        fin_rt.younger = rt
        fin_rt(rt)
        a.e(f"s_mov_b32 s{sT}, {rt * 32768}")
        a.e("s_nop 0")
        a.e(f"v_permlane16_swap_b32 v{O+4*rt}, v{O+4*rt+2}")
        a.e(f"v_permlane16_swap_b32 v{O+4*rt+1}, v{O+4*rt+3}")
        a.e(f"buffer_store_dwordx4 {v(O+4*rt,4)}, v{vRM}, s[{sIO}:{sIO+3}], s{sT} offen")
    ts(a, opt, ph, 5)
    a.label(f"{lo}_end")
```

```python
from common import *
import res, g1, g3

def gen(name, opt):
    t = gen_(name, opt)
    if opt.get("onlysc1"): t = t.replace(" sc0 sc1", " sc1")
    return t

def gen_(name, opt):
    a = Asm(); kernel_header(a, name)
    nph = opt.get("nph", 8)
    a.e("s_cmp_ge_u32 s2, 256"); a.e("s_cbranch_scc1 L_end")
    a.e(f"s_load_dwordx4 s[{pAX}:{pAX+3}], s[0:1], 0")
    a.e(f"s_load_dwordx2 s[{sWS}:{sWS+1}], s[0:1], 72")
    a.e(f"s_load_dwordx2 s[{pWO}:{pWO+1}], s[0:1], 16")
    a.e(f"s_load_dwordx4 s[{pW1}:{pW1+3}], s[0:1], 32")
    a.e(f"s_load_dwordx4 s[{pW2}:{pW2+3}], s[0:1], 48")
    a.e(f"s_load_dwordx2 s[{pDBG}:{pDBG+1}], s[0:1], 64")
    a.e("v_lshrrev_b32 v1, 6, v0")
    a.e(f"v_and_b32 v{vL}, 63, v0")
    a.e(f"v_readfirstlane_b32 s{sWAVE}, v1")
    a.e(f"v_lshrrev_b32 v{vG}, 4, v{vL}"); a.e(f"v_and_b32 v{vI}, 15, v{vL}"); a.e(f"v_lshlrev_b32 v{vL16}, 4, v{vL}")
    if opt.get("ts"): a.e("v_mov_b32 v255, 0")
    a.e(f"s_and_b32 s{sX}, s2, 7"); a.e(f"s_lshr_b32 s{sCI}, s2, 4"); a.e(f"s_lshr_b32 s{sQ}, s2, 3"); a.e(f"s_and_b32 s{sQ}, s{sQ}, 1")
    a.e(f"s_lshl_b32 s{sMT}, s{sX}, 1"); a.e(f"s_sub_u32 s{sNT}, s{sCI}, s{sMT}"); a.e(f"s_and_b32 s{sNT}, s{sNT}, 15")
    a.e(f"s_add_u32 s{sMT}, s{sMT}, s{sQ}")
    a.e(f"s_sub_u32 s{sN8}, s{sNT}, s{sX}"); a.e(f"s_add_u32 s{sN8}, s{sN8}, 3"); a.e(f"s_and_b32 s{sN8}, s{sN8}, 7")
    a.e(f"s_and_b32 s{sT}, s{sNT}, 8"); a.e(f"s_add_u32 s{sJ4}, s{sN8}, s{sT}")
    a.e(f"s_lshl_b32 s{sHP}, s{sX}, 1"); a.e(f"s_add_u32 s{sHP}, s{sHP}, s{sCI}"); a.e(f"s_and_b32 s{sHP}, s{sHP}, 15")
    a.e(f"s_mov_b32 s{sLB}, 0"); a.e(f"s_mov_b32 s{sXM}, 1")
    if opt.get("rot3", "ci") == "x": a.e(f"s_lshl_b32 s{sK3}, s{sX}, 1")
    else: a.e(f"s_mov_b32 s{sK3}, s{sCI}")
    a.e(f"s_mov_b32 s{sK4}, s{sX}")
    a.e(f"s_and_b32 s{sW4}, s{sWAVE}, 3")
    a.e(f"s_mov_b32 s{sLAY}, 0"); a.e(f"s_mov_b32 s{sSLOW}, 1"); a.e(f"s_mov_b32 s{sSPIN}, {opt.get('spin', SPIN)}")
    a.e("s_waitcnt lgkmcnt(0)")
    make_srd(a, SW, sWS, WS_SIZE)
    a.e(f"s_cmp_ge_u32 s{sWAVE}, 4"); a.e("s_cbranch_scc1 L_load")
    def stop_check(p):
        if nph < 8 and (nph - 1) % 4 == p:
            a.e(f"s_cmp_eq_u32 s{sLAY}, {(nph - 1) // 4}"); a.e("s_cbranch_scc1 L_fin")
    a.e(f"s_mul_i32 s{sT}, s{sWAVE}, {g1.AS}"); a.e(f"v_add_u32 v8, s{sT}, v{vL16}")
    for i in range(4): a.e(f"v_mov_b32 v{4+i}, 0x{ONES:08x}")
    a.e("s_mov_b64 exec, 0xff")
    a.e("ds_write_b128 v8, v[4:7]")
    a.e("s_mov_b64 exec, -1")
    a.e("v_mov_b32 v0, 0")
    a.e(f"s_cmp_lg_u32 s{sWAVE}, 3"); a.e("s_cbranch_scc1 L_noinit")
    for i in range(1, 4): a.e(f"v_mov_b32 v{i}, 0")
    a.e(f"v_lshrrev_b32 v8, 1, v{vL}"); a.e("v_lshlrev_b32 v8, 13, v8"); a.e(f"v_and_b32 v9, 1, v{vL}"); a.e("v_lshl_add_u32 v8, v9, 4, v8")
    a.e(f"s_lshl_b32 s{sT}, s{sMT}, 4"); a.e(f"s_add_u32 s{sT}, s{sT}, s{sCI}"); a.e(f"s_lshl_b32 s{sT}, s{sT}, 5")
    a.e(f"s_add_u32 s{sT2}, s{sT}, {M_FL}")
    a.e("s_mov_b64 exec, 0xffff")
    a.e(f"buffer_store_dwordx4 v[0:3], v8, s[{SW}:{SW+3}], s{sT2} offen{SC}")
    a.e("s_mov_b64 exec, 3")
    a.e(f"s_add_u32 s{sT2}, s{sT}, {M_HF}")
    a.e(f"buffer_store_dwordx4 v[0:3], v{vL16}, s[{SW}:{SW+3}], s{sT2} offen{SC}")
    a.e(f"s_lshl_b32 s{sT}, s{sNT}, 4"); a.e(f"s_add_u32 s{sT}, s{sT}, s{sMT}"); a.e(f"s_lshl_b32 s{sT}, s{sT}, 5"); a.e(f"s_add_u32 s{sT2}, s{sT}, {M_CF}")
    a.e(f"buffer_store_dwordx4 v[0:3], v{vL16}, s[{SW}:{SW+3}], s{sT2} offen{SC}")
    a.e(f"s_lshl_b32 s{sT}, s{sMT}, 4"); a.e(f"s_add_u32 s{sT}, s{sT}, s{sNT}"); a.e(f"s_lshl_b32 s{sT}, s{sT}, 4"); a.e(f"s_add_u32 s{sT2}, s{sT}, {M_XF}")
    a.e(f"v_lshlrev_b32 v8, 12, v{vL}")
    a.e(f"buffer_store_dwordx4 v[0:3], v8, s[{SW}:{SW+3}], s{sT2} offen{SC}")
    a.e("s_mov_b64 exec, -1")
    a.label("L_noinit")
    g1.x0_stats(a, opt)
    a.e("s_waitcnt lgkmcnt(0)")
    a.label("C_layer")
    g1.g1_cons(a, opt); stop_check(0)
    res.res_cons(a, opt, 1); stop_check(1)
    G0 = g3.G3(a, opt, 0); G0.w_setup(); G0.run(0, lambda p: signal(a, 1, 236, 237, p)); stop_check(2)
    res.res_cons(a, opt, 3, lambda p: signal(a, 2, 236, 237, p)); stop_check(3)
    a.e(f"s_add_u32 s{sLAY}, s{sLAY}, 1"); set_mode(a, opt)
    a.e(f"s_cmp_lt_u32 s{sLAY}, 2"); a.e("s_cbranch_scc1 C_layer")
    a.e("s_branch L_fin")
    a.flush_tail()
    a.label("L_load")
    if opt.get("lprio", 3): a.e(f"s_setprio {opt.get('lprio', 3)}")
    n2 = g1.g1_load0(a, opt)
    a.label("L_g2")
    stop_check(0)
    G3 = g3.G3(a, opt, 1)
    n3 = res.res_load(a, opt, 1, n2, G3.w_setup, lambda vm: G3.nxt(vm, opt.get("g3pre", 2)), lambda idx, n: 0 if n else opt.get("g3pc", 3),
                      warm=lambda: G3.warm([int(c) for c in str(opt.get("w3o", "x")).strip("x")]), vtouch=G3.vtouch); stop_check(1)
    if opt.get("lprio", 3): a.e(f"s_setprio {opt.get('g3prio', 0)}")
    G3.run(n3); stop_check(2)
    if opt.get("lprio", 3): a.e(f"s_setprio {opt.get('lprio', 3)}")
    n1 = res.res_load(a, opt, 3, res.CFG[3]['RW'], lambda: g1.g1_w_setup(a, opt, 1), lambda vm: g1.g1_nxt(a, vm, opt.get("g1pre", 3)), lambda idx, n: 0); stop_check(3)
    a.e(f"s_cmp_eq_u32 s{sLAY}, 1"); a.e("s_cbranch_scc1 L_fin")
    a.e(f"s_mov_b32 s{sLAY}, 1"); set_mode(a, opt)
    n2b = g1.g1_load1(a, opt, n1)
    assert n2b == n2
    a.e("s_branch L_g2")
    a.flush_tail()
    a.label("L_fin")
    if opt.get("ts"):
        a.e(f"s_lshl_b32 s{sT}, s2, 3"); a.e(f"s_add_u32 s{sT}, s{sT}, s{sWAVE}"); a.e(f"s_lshl_b32 s{sT}, s{sT}, 8"); a.e(f"s_add_u32 s{sT}, s{sT}, {M_TS}")
        a.e(f"v_lshlrev_b32 v{vT0}, 2, v{vL}")
        a.e(f"buffer_store_dword v255, v{vT0}, s[{SW}:{SW+3}], s{sT} offen")
    a.label("L_abort")
    a.label("L_end")
    a.e("s_endpgm")
    return a.text()

if __name__ == "__main__":
    opt = parse_opts(sys.argv[2:])
    if opt.get("list"):
        t = build([("mega_kernel", 256, 512, 163840)], [gen("mega_kernel", opt)])
    else:
        KN = NAME + "_kernel"
        t = build([(KN, 256, 512, 163840)], [gen(KN, opt)], single=True)
    open(sys.argv[1], "w").write(t)
```

```python
from mblib import *
def mk(name, nw=7, mf=56, ncyc=12, gs=7, mf_on=False, nwg=0, ramp=0, foot=14):
    a = Asm(); prologue(a, name)
    a.e("s_and_b32 s20, s2, 7"); a.e("s_lshr_b32 s21, s2, 4")
    a.e("v_mov_b32 v255, 0")
    a.e(f"s_cmp_ge_u32 s3, 4"); a.e(f"s_cbranch_scc1 {name}_burn")
    stepb = 16 * 4 * nw * 1024; nst = (foot << 20) // stepb
    a.e("v_lshlrev_b32 v16, 4, v1")
    a.e("s_lshl_b32 s22, s21, 2"); a.e("s_add_u32 s22, s22, s3"); a.e(f"s_mul_i32 s22, s22, {nw * 1024}")
    a.e(f"s_add_u32 s27, s22, {nst * stepb}")
    a.e(f"s_mul_i32 s23, s20, {(nst // 8) * stepb}"); a.e("s_add_u32 s28, s22, s23")
    a.e(f"s_mul_i32 s29, s3, {nw * 1024}")
    a.e("s_mov_b32 s26, 0")
    def stamp():
        a.e("s_memrealtime s[60:61]"); a.e("s_waitcnt lgkmcnt(0)"); a.e("s_mov_b32 m0, s26"); a.e("s_add_u32 s26, s26, 1"); a.e("v_writelane_b32 v255, s60, m0")
    def st(s, n):
        a.e("s_barrier")
        for j in range(n):
            a.e(f"s_add_u32 m0, s29, {(s % 4) * 4 * nw * 1024 + (j // 4) * 4096}"); a.e(f"s_add_u32 s30, s28, {(j // 4) * 4096}")
            a.e(f"buffer_load_dwordx4 v16, s[8:11], s30 offen offset:{(j % 4) * 1024} lds")
        a.e(f"s_add_u32 s28, s28, {stepb}"); a.e("s_cmp_eq_u32 s28, s27"); a.e("s_cselect_b32 s28, s22, s28")
        a.e(f"s_waitcnt vmcnt({2 * nw})")
    a.label(f"{name}_loop")
    for b in range(4):
        stamp()
        for s in range(8):
            k = b * 8 + s
            st(s, nw if k >= ramp else nwg + (nw - nwg) * (k + 1) // (ramp + 1))
    stamp()
    for s in range(gs): st(s, nwg)
    a.e(f"s_cmp_lt_u32 s26, {ncyc * 5}"); a.e(f"s_cbranch_scc1 {name}_loop")
    a.e("s_lshl_b32 s69, s2, 3"); a.e("s_add_u32 s69, s69, s3"); a.e("s_lshl_b32 s69, s69, 8")
    a.e("v_lshlrev_b32 v8, 2, v1")
    a.e("buffer_store_dword v255, v8, s[12:15], s69 offen"); a.e("s_waitcnt vmcnt(0)")
    a.e(f"s_branch {name}_end")
    a.label(f"{name}_burn")
    a.e("v_lshlrev_b32 v2, 4, v1"); a.e("s_lshl_b32 s20, s3, 10"); a.e("v_add_u32 v2, s20, v2")
    for i in range(16, 255): a.e(f"v_mov_b32 v{i}, 0x3c003c00")
    a.e(f"s_mov_b32 s25, {ncyc}")
    a.label(f"{name}_cyc")
    a.e(f"s_mov_b32 s26, {32 + (gs if mf_on else 0)}")
    a.label(f"{name}_cl")
    a.e("s_barrier")
    rd = [[f"ds_read_b128 v[{128 + (i%30)*4}:{128 + (i%30)*4+3}], v2 offset:{(i*2048)%65536}"] for i in range(22)]
    m = [f"v_mfma_f32_16x16x32_bf16 v[{16+(i%28)*4}:{16+(i%28)*4+3}], v[{128+(i%8)*4}:{128+(i%8)*4+3}], v[{160+(i//8%7)*4}:{160+(i//8%7)*4+3}], v[{16+(i%28)*4}:{16+(i%28)*4+3}]" for i in range(mf)]
    for x in interleave(m, rd, 0, mf - 6): a.e(x)
    a.e("s_waitcnt lgkmcnt(0)")
    a.e("s_sub_u32 s26, s26, 1"); a.e("s_cmp_lg_u32 s26, 0"); a.e(f"s_cbranch_scc1 {name}_cl")
    if not mf_on:
        for s in range(gs):
            a.e("s_barrier"); a.e("s_sleep 20")
    a.e("s_sub_u32 s25, s25, 1"); a.e("s_cmp_lg_u32 s25, 0"); a.e(f"s_cbranch_scc1 {name}_cyc")
    a.label(f"{name}_end")
    a.e("s_endpgm")
    return a.text()
import json
B = dict(nw=8, foot=16, gs=9, ncyc=5)
V = dict(a=dict(), b=dict(nwg=8), c=dict(mf_on=True), d=dict(nwg=2), e=dict(nwg=4), f=dict(gs=4), g=dict(ramp=6), h=dict(ramp=16), i=dict(gs=2), j=dict(nw=6, foot=15), k=dict(nwg=2, ramp=6), l=dict(mf=20))
V = {k: dict(B, **c) for k, c in V.items()}
if __name__ == "__main__":
    for k, c in V.items():
        kernels.clear(); kernels.append(("k0_kernel", 256, 102))
        open(f"th_{k}.s", "w").write(build([("k0_kernel", 256, 512, 163840)], [mk("k0_kernel", **c)]))
    json.dump(V, open("th.json", "w"))
```

```python
from lib import *

WS_X = 0
WS_O = 12 * MB
WS_H = 20 * MB
WS_P = 52 * MB
WS_M = 68 * MB
M_ST = WS_M
M_HALO = WS_M + 2 * MB
M_HST = WS_M + 2 * MB + 512 * 1024
M_CS = WS_M + 3 * MB
M_FL = WS_M + 4 * MB
M_XF = M_FL + 262144
M_CF = M_FL + 131072
M_RF = M_FL + 65536
M_SF = M_FL + 90112
M_S0 = WS_M + 2 * MB + 768 * 1024
M_TS = WS_M + 5 * MB
WS_SIZE = 76 * MB

CTL = 159744
L_ST = CTL
L_CS3 = CTL + 1152
L_CS1 = CTL + 2944
L_MODE = CTL + 3712
L_XFL = CTL + 3728

sWAVE = 3
sWS = 4
sX, sQ, sCI, sMT, sNT, sLAY = 70, 71, 72, 73, 74, 75
sTS = 76
sSLOW, sSPIN = 78, 79
SW = 80
pAX, pWQKV, pWO, pDBG, pW1, pW3, pW2, pOUT = 84, 86, 88, 90, 92, 94, 96, 98
sW4 = 69
sHF = 68
sMB = 67
sHP = 74
sN8 = 61
sK3, sK4 = 57, 58
sXM = 59
sLB = 60
sT, sT2, sT3 = 64, 65, 66
sEXS = 62
vL, vG, vI, vT0, vT1 = 250, 251, 252, 253, 254
vL16 = 249
SPIN = 0x400000
EPS_BITS = 0x3727c5ac
ONES = 0x3f803f80
SC = " sc0 sc1"


class VM:
    def __init__(self, a): self.a = a; self.ops = []
    def op(self, tag=None): self.ops.append(tag)
    def after(self, tag):
        idx = [i for i, t in enumerate(self.ops) if t == tag]
        if not idx: return None
        return len(self.ops) - 1 - idx[-1]
    def wait(self, tags, extra=""):
        if not isinstance(tags, list): tags = [tags]
        ns = [self.after(t) for t in tags]
        ns = [n for n in ns if n is not None]
        if not ns:
            if extra: self.a.e(f"s_waitcnt {extra}")
            return
        n = min(min(ns), 63)
        self.a.e(f"s_waitcnt vmcnt({n}) {extra}".rstrip())
        self.ops = self.ops[len(self.ops) - n:] if n else []
    def drain(self): self.ops = []


def ts(a, opt, ph, k):
    if not opt.get("ts"): return
    a.e(f"s_memrealtime s[{sTS}:{sTS+1}]")
    a.e("s_waitcnt lgkmcnt(0)")
    a.e(f"s_lshl_b32 s{sTS+1}, s{sLAY}, 5")
    a.e(f"s_add_u32 s{sTS+1}, s{sTS+1}, {ph * 8 + k}")
    a.e(f"s_mov_b32 m0, s{sTS+1}")
    a.e("s_nop 0")
    a.e(f"v_writelane_b32 v255, s{sTS}, m0")


def tsc(a, opt, ph, k):
    if not opt.get("ts"): return
    a.e(f"s_memtime s[{sTS}:{sTS+1}]")
    a.e("s_waitcnt lgkmcnt(0)")
    a.e(f"s_lshl_b32 s{sTS+1}, s{sLAY}, 5")
    a.e(f"s_add_u32 s{sTS+1}, s{sTS+1}, {ph * 8 + k}")
    a.e(f"s_mov_b32 m0, s{sTS+1}")
    a.e("s_nop 0")
    a.e(f"v_writelane_b32 v255, s{sTS}, m0")


def round_bf16(a, r):
    a.e(f"v_cvt_pk_bf16_f32 v{r}, v{r}, v{r}")
    a.e(f"v_lshlrev_b32 v{r}, 16, v{r}")


def finish_stats(a, vsum, vsq):
    a.e(f"v_mul_f32 v{vsum}, 0x3a800000, v{vsum}")
    a.e(f"v_mul_f32 v{vsq}, 0x3a800000, v{vsq}")
    a.e(f"v_fma_f32 v{vsq}, -v{vsum}, v{vsum}, v{vsq}")
    a.e(f"v_max_f32 v{vsq}, 0, v{vsq}")
    round_bf16(a, vsum)
    round_bf16(a, vsq)
    a.e(f"v_add_f32 v{vsq}, 0x{EPS_BITS:08x}, v{vsq}")
    round_bf16(a, vsq)
    a.e(f"v_sqrt_f32 v{vsq}, v{vsq}")
    a.e("s_nop 0")
    round_bf16(a, vsq)
    a.e(f"v_rcp_f32 v{vsq}, v{vsq}")
    a.e("s_nop 0")


def xreduce(a, regs, tmps, op="v_add_f32"):
    for sw in ("v_permlane16_swap_b32", "v_permlane32_swap_b32"):
        for r, t in zip(regs, tmps): a.e(f"v_mov_b32 v{t}, v{r}")
        a.e("s_nop 1")
        for r, t in zip(regs, tmps): a.e(f"{sw} v{r}, v{t}")
        for r, t in zip(regs, tmps): a.e(f"{op} v{r}, v{r}, v{t}")


def stats_lane(a, vX):
    a.e(f"v_lshlrev_b32 v{vX}, 4, v{vI}"); a.e(f"v_lshl_add_u32 v{vX}, v{vG}, 13, v{vX}")


def stats_reduce(a, B, n, vX, s_tab, sub=False):
    w = n // 2
    while w:
        for i in range(w):
            for r in (0, 2): a.e(f"v_pk_add_f32 {v(B+4*i+r,2)}, {v(B+4*i+r,2)}, {v(B+4*(i+w)+r,2)}")
        w //= 2
    a.e(f"v_and_b32 v{vX}, {7 if sub else 15}, v{vI}"); a.e(f"v_and_b32 v{B+4}, 1, v{vG}")
    if sub:
        for i in range(4): a.e(f"v_add_f32_dpp v{B+i}, v{B+i}, v{B+i} row_ror:8 row_mask:0xf bank_mask:0xf")
        a.e("s_nop 0")
    a.e(f"v_permlane16_swap_b32 v{B}, v{B+2}"); a.e(f"v_permlane16_swap_b32 v{B+1}, v{B+3}")
    a.e(f"v_add_f32 v{B}, v{B}, v{B+2}"); a.e(f"v_add_f32 v{B+1}, v{B+1}, v{B+3}")
    a.e(f"v_mov_b32 v{B+2}, v{B}"); a.e(f"v_mov_b32 v{B+3}, v{B+1}")
    a.e(f"v_lshl_add_u32 v{vX}, v{vX}, 1, v{B+4}"); a.e(f"v_lshlrev_b32 v{vX}, 3, v{vX}")
    a.e(f"v_permlane32_swap_b32 v{B}, v{B+2}"); a.e(f"v_permlane32_swap_b32 v{B+1}, v{B+3}")
    a.e(f"v_add_f32 v{B}, v{B}, v{B+2}"); a.e(f"v_add_f32 v{B+1}, v{B+1}, v{B+3}")
    finish_stats(a, B, B + 1)
    a.e(f"v_add_u32 v{vX}, {s_tab}, v{vX}")
    a.e(f"ds_write_b64 v{vX}, {v(B,2)}")


def set_mode(a, opt):
    if opt.get("distinct"): a.e(f"s_mov_b32 s{sXM}, 1")
    else: a.e(f"s_mov_b32 s{sXM}, s{sSLOW}")
    a.e(f"s_mul_i32 s{sLB}, s{sXM}, s{sLAY}")


def spin_guard(a):
    a.e(f"s_sub_u32 s{sSPIN}, s{sSPIN}, 1")
    a.e(f"s_cbranch_scc1 L_abort")


def flag_off(a, dst, ph):
    a.e(f"s_lshl_b32 s{dst}, s{sLAY}, 15")
    a.e(f"s_lshl_b32 s{sT3}, s{sMT}, 9")
    a.e(f"s_add_u32 s{dst}, s{dst}, s{sT3}")
    a.e(f"s_add_u32 s{dst}, s{dst}, {(M_FL + ph * 8192) & 0xffffffff}")


def store_flag(a, soff, v0, v1, pending=0):
    l = a.new("sg")
    a.e(f"v_mov_b32 v{v0}, 0")
    a.e(f"v_mov_b32 v{v1}, 1")
    a.e(f"s_cmp_lg_u32 s{sSLOW}, 0")
    a.e(f"s_cbranch_scc1 {l}_slow")
    a.e(f"s_waitcnt vmcnt({pending})")
    a.e("s_mov_b64 exec, 1")
    a.e(f"buffer_store_dword v{v1}, v{v0}, s[{SW}:{SW+3}], s{soff} offen")
    a.e("s_mov_b64 exec, -1")
    a.label(f"{l}_done")
    a.ool([f"{l}_slow:", "s_waitcnt vmcnt(0)", "buffer_wbl2 sc1", "s_waitcnt vmcnt(0)", "s_mov_b64 exec, 1",
           f"buffer_store_dword v{v1}, v{v0}, s[{SW}:{SW+3}], s{soff} offen{SC}", "s_mov_b64 exec, -1", f"s_branch {l}_done"])


def store_flag_remote(a, soff, v0, v1, release=False):
    a.e(f"v_mov_b32 v{v0}, 0")
    a.e(f"v_mov_b32 v{v1}, 1")
    a.e("s_waitcnt vmcnt(0)")
    if release:
        l = a.new("sr")
        a.e(f"s_cmp_lg_u32 s{sSLOW}, 0"); a.e(f"s_cbranch_scc1 {l}"); a.label(f"{l}_b")
        a.ool([f"{l}:", "buffer_wbl2 sc1", "s_waitcnt vmcnt(0)", f"s_branch {l}_b"])
    a.e("s_mov_b64 exec, 1")
    a.e(f"buffer_store_dword v{v1}, v{v0}, s[{SW}:{SW+3}], s{soff} offen{SC}")
    a.e("s_mov_b64 exec, -1")


def relay(a, s_kind_off, v0, v1):
    l = a.new("rl")
    a.e(f"s_lshr_b32 s{sT}, s{sCI}, 1"); a.e(f"s_or_b32 s{sT}, s{sT}, s{sW4}"); a.e(f"s_cbranch_scc1 {l}")
    a.e(f"s_lshl_b32 s{sT}, s{sMT}, 1"); a.e(f"s_add_u32 s{sT}, s{sT}, s{sHF}"); a.e(f"s_lshl_b32 s{sT}, s{sT}, 7")
    a.e(f"s_add_u32 s{sT}, s{sT}, {s_kind_off}")
    a.e(f"v_mov_b32 v{v0}, 0"); a.e(f"v_mov_b32 v{v1}, 1")
    a.e("s_mov_b64 exec, 1")
    a.e(f"buffer_store_dword v{v1}, v{v0}, s[{SW}:{SW+3}], s{sT} offen{SC}")
    a.e("s_mov_b64 exec, -1")
    a.label(l)


def signal(a, ph, v0, v1, pending=0, remote=False):
    flag_off(a, sT, ph)
    a.e(f"s_lshl_b32 s{sT2}, s{sCI}, 5")
    a.e(f"s_add_u32 s{sT}, s{sT}, s{sT2}")
    a.e(f"s_lshl_b32 s{sT2}, s{sWAVE}, 2")
    a.e(f"s_add_u32 s{sT}, s{sT}, s{sT2}")
    if remote: store_flag_remote(a, sT, v0, v1, release=True)
    else: store_flag(a, sT, v0, v1, pending)


def poll(a, soff, voff, vd, nd, smask, acquire=True, fl=" sc1"):
    l = a.new("pl")
    a.e(f"s_mov_b64 exec, {smask}")
    a.label(l)
    op = {1: "dword", 2: "dwordx2", 4: "dwordx4"}[nd]
    a.e(f"buffer_load_{op} {v(vd, nd)}, v{voff}, s[{SW}:{SW+3}], s{soff} offen{fl}")
    spin_guard(a)
    a.e("s_waitcnt vmcnt(0)")
    if nd == 4:
        a.e(f"v_and_b32 v{vd}, v{vd}, v{vd+1}")
        a.e(f"v_and_b32 v{vd+2}, v{vd+2}, v{vd+3}")
        a.e(f"v_and_b32 v{vd}, v{vd}, v{vd+2}")
    elif nd == 2:
        a.e(f"v_and_b32 v{vd}, v{vd}, v{vd+1}")
    a.e(f"v_cmp_ne_u32 vcc, 1, v{vd}")
    a.e(f"s_cbranch_vccnz {l}")
    a.e("s_mov_b64 exec, -1")
    if acquire:
        a.e(f"s_cmp_lg_u32 s{sSLOW}, 0")
        a.e(f"s_cbranch_scc1 {l}_acq")
        a.label(f"{l}_ok")
        a.ool([f"{l}_acq:", "buffer_inv sc1", "s_waitcnt vmcnt(0)", f"s_branch {l}_ok"])


def barrier_events(NS, deep=False):
    d = 1 if deep else 0
    ev = [("Bm1", d, -1)]
    for p in range(NS // 2):
        ev.append((f"B{p}", min(2 * p + 2 + d, NS - 1), 2 * p + d))
    return ev


class Stream:
    def __init__(self, name, NS, R, issue, addr, unit=1, issued=0):
        self.name = name; self.N = NS // unit; self.R = R; self.issue = issue; self.unit = unit; self.issued = issued; self.addr = addr
    def need_unit(self, need): return min(need // self.unit, self.N - 1)
    def freed_units(self, freed): return (freed + 1) // self.unit
    def can(self, freed): return self.issued < self.N and self.issued - self.R < self.freed_units(freed)
    def go(self):
        self.issue(self.issued); self.issued += 1
    def live(self, freed): return [self.addr(u) for u in range(self.freed_units(freed), self.N)]


def run_loader(a, vm, ev, streams, pre, la, cap, hooks=None, tail=None, nxt=None, nxtcap=None, log=None, tl=False, lgk=None, pre_hooks=None):
    S = {s_.name: s_ for s_ in streams}
    for n in pre:
        assert S[n].can(-1)
        S[n].go()
    ni = 0; tail_done = False
    for idx, (name, need, freed) in enumerate(ev):
        tags = []
        for s_ in streams:
            u = s_.need_unit(need)
            assert u < s_.issued, (name, s_.name, u, s_.issued)
            tags.append((s_.name, u))
        def stamp(reg):
            if tl:
                a.e(f"s_memtime s[{sTS}:{sTS+1}]"); a.e("s_waitcnt lgkmcnt(0)"); a.e(f"v_writelane_b32 v{reg}, s{sTS}, {idx}")
        stamp(247)
        vm.wait(tags, "lgkmcnt(0)" if (lgk is None or name in lgk) else "")
        stamp(248)
        a.e("s_barrier")
        stamp(239)
        if pre_hooks and name in pre_hooks: pre_hooks[name]()
        n = 0
        if idx + 1 < len(ev):
            nneed = ev[idx + 1][1]
            raw = need + 2 if idx else nneed
            while True:
                best = None
                for s_ in streams:
                    if not s_.can(freed): continue
                    tgt = s_.need_unit(nneed + la(s_.name, idx)) + 1
                    must = s_.need_unit(nneed) >= s_.issued
                    if s_.issued < tgt and (n < cap(idx) or must):
                        key = s_.issued * s_.unit
                        if best is None or key < best[0]: best = (key, s_)
                if best is None: break
                best[1].go(); n += 1
            for s_ in streams: assert s_.need_unit(nneed) < s_.issued, (name, s_.name)
        done = all(s_.issued == s_.N for s_ in streams)
        if done and not tail_done:
            tail_done = True
            if tail: tail()
        if hooks and name in hooks: hooks[name]()
        k = 0
        if done and nxt:
            live = [r for s_ in streams for r in s_.live(freed)]
            while ni < len(nxt) and (idx + 1 == len(ev) or k < nxtcap(idx, n)):
                lo, hi, fn = nxt[ni]
                if any(lo < h and l < hi for l, h in live): break
                fn(); ni += 1; k += 1
        if log is not None: log.append((name, need, {s_.name: s_.issued for s_ in streams}, ni))
    for s_ in streams: assert s_.issued == s_.N, (s_.name, s_.issued)
    if tl:
        a.e(f"s_lshl_b32 s{sT}, s2, 3"); a.e(f"s_add_u32 s{sT}, s{sT}, s{sWAVE}"); a.e(f"s_mul_i32 s{sT}, s{sT}, 768"); a.e(f"s_add_u32 s{sT}, s{sT}, {M_TS + MB}")
        a.e(f"v_lshlrev_b32 v{vT0}, 2, v{vL}")
        for i, r in enumerate((247, 248, 239)): a.e(f"buffer_store_dword v{r}, v{vT0}, s[{SW}:{SW+3}], s{sT} offen offset:{256*i}")
    return ni
```

```python
from common import *
import res

AS = 18432; RA = 4; LW = 73984; WSL = 12416; WG = 3104; RW = 6; PW = 6144
XSCR = 18432
def wslot(st): return LW + ((st + 1) % RW) * WSL
def aslot(u): return ((u + 1) % RA) * AS
def events(): return barrier_events(32) + [("BE", 31, 31)]
PH = 0
sW = 8; sXR = 12
sWo, sWlo, sWhi, sWm = 16, 17, 18, 19
sAo, sAlo, sAhi, sAm, sHo, sHm = 20, 21, 22, 23, 24, 25
vWp = 10
vAp = 13


def k0_units(a, opt, dst):
    a.e(f"s_mov_b32 s{dst}, s{sK3}")


def g1_w_setup(a, opt, lay_next):
    make_srd(a, sW, pWQKV, 1024 * PW)
    a.e(f"v_lshrrev_b32 v{vT0}, 3, v{vL}")
    if lay_next == 0:
        a.e(f"v_and_b32 v{vT1}, 3, v{vT0}"); a.e(f"v_lshlrev_b32 v{vT1}, 3, v{vT1}")
        a.e(f"v_and_b32 v{vT0}, 4, v{vT0}"); a.e(f"v_add_u32 v{vT0}, v{vT0}, v{vT1}")
    else:
        a.e(f"v_lshlrev_b32 v{vT0}, 2, v{vT0}")
    a.e(f"v_add_u32 v{vT0}, s{sW4}, v{vT0}")
    a.e(f"v_mul_u32_u24 v{vT0}, {PW}, v{vT0}")
    a.e(f"v_and_b32 v{vT1}, 7, v{vL}")
    a.e(f"v_lshl_add_u32 v{vWp}, v{vT1}, 4, v{vT0}")
    a.e(f"v_add_u32 v{vWp+1}, 2048, v{vWp}")
    a.e(f"v_add_u32 v{vWp+2}, 4096, v{vWp}")
    a.e(f"s_mul_i32 s{sWm}, s{sW4}, {WG}")
    a.e(f"s_lshl_b32 s{sWlo}, s{sHP}, 7")
    a.e(f"s_add_u32 s{sWhi}, s{sWlo}, {1024 * PW}")
    k0_units(a, opt, sT)
    a.e(f"s_mul_i32 s{sT}, s{sT}, {64 * PW}")
    a.e(f"s_add_u32 s{sWo}, s{sWlo}, s{sT}")


def g1_nxt(a, vm, n):
    return [(wslot(st), wslot(st) + WSL, (lambda st=st: g1_w_issue(a, st, vm, None))) for st in range(n)]


def g1_w_issue(a, st, vm, tag):
    for i in range(3):
        a.e(f"s_add_u32 m0, s{sWm}, {wslot(st) + i * 1024}"); a.e("s_nop 0")
        a.e(f"buffer_load_dwordx4 v{vWp+i}, s[{sW}:{sW+3}], s{sWo} offen lds")
        vm.op(tag)
    a.e(f"s_add_u32 s{sWo}, s{sWo}, {32 * PW}"); a.e(f"s_cmp_eq_u32 s{sWo}, s{sWhi}"); a.e(f"s_cselect_b32 s{sWo}, s{sWlo}, s{sWo}")


def pretouch_o(a, vm, always=False):
    a.e(f"s_lshl_b32 s{sT}, s{sMB}, 4"); a.e(f"s_add_u32 s{sT}, s{sT}, s{sHP}"); a.e(f"s_lshl_b32 s{sT}, s{sT}, 2")
    a.e(f"s_add_u32 s{sT}, s{sT}, s{sW4}"); a.e(f"s_lshl_b32 s{sT}, s{sT}, 12")
    a.e(f"s_lshl_b32 s{sT2}, s{sLAY}, 22"); a.e(f"s_add_u32 s{sT}, s{sT}, s{sT2}"); a.e(f"s_add_u32 s{sT}, s{sT}, {WS_O}")
    if not always: a.e(f"s_cmp_eq_u32 s{sHF}, 0"); a.e(f"s_cselect_b32 s{sT}, s{sT}, 0x7f000000")
    a.e(f"v_lshlrev_b32 v{vT0}, 7, v{vL}")
    a.e("s_mov_b64 exec, 0xffffffff")
    a.e(f"buffer_load_dword v9, v{vT0}, s[{SW}:{SW+3}], s{sT} offen sc1"); vm.op()
    a.e("s_mov_b64 exec, -1")


def assist(a, opt, hooks):
    ah = opt.get("g1as", 4)
    if not ah: return
    a.e("s_lshr_b32 s40, s2, 3"); a.e("s_lshl_b32 s40, s40, 2"); a.e(f"s_add_u32 s40, s40, s{sW4}")
    a.e("s_and_b32 s41, s40, 63"); a.e(f"s_mul_i32 s41, s41, {PW}")
    a.e("s_and_b32 s40, s40, 64"); a.e("s_add_u32 s40, s40, s41"); a.e("s_add_u32 s40, s40, 384")
    a.e(f"s_and_b32 s41, s{sX}, 1"); a.e("s_lshl_b32 s41, s41, 10"); a.e("s_add_u32 s40, s40, s41")
    a.e(f"s_add_u32 s40, s{pWQKV}, s40"); a.e(f"s_addc_u32 s41, s{pWQKV+1}, 0")
    def go(u):
        a.e(f"s_add_u32 s42, s{sK3}, {u}"); a.e("s_and_b32 s42, s42, 15"); a.e(f"s_mul_i32 s42, s42, {64 * PW}")
        a.e("s_add_u32 s44, s40, s42"); a.e("s_addc_u32 s45, s41, 0")
        for seg in range(3): a.e(f"s_load_dword s43, s[44:45], {seg * 2048}")
    for p in range(-1, 16):
        us = [p + ah] if p >= 0 else list(range(2, ah))
        us = [u for u in us if u < 16]
        if not us: continue
        nm = f"B{p}" if p >= 0 else "Bm1"
        h0 = hooks.get(nm)
        hooks[nm] = (lambda us=us, h0=h0: ([go(u) for u in us], h0() if h0 else None))


def g1_sched(opt):
    la = lambda n, idx: 3
    cap = lambda idx: 2 if idx < 1 else 4
    nxtcap = lambda idx, n: opt.get("g2pc", 8)
    return la, cap, nxtcap


def g1_load0(a, opt):
    vm = VM(a)
    g1_w_setup(a, opt, 0)
    g1_w_issue(a, 0, vm, ("W", 0))
    make_srd(a, sXR, pAX, 4 * MB)
    a.e(f"v_lshrrev_b32 v{vT0}, 3, v{vL}")
    a.e(f"v_and_b32 v{vT1}, 6, v{vT0}")
    a.e(f"v_and_b32 v{vAp}, 7, v{vL}")
    a.e(f"v_xor_b32 v{vT1}, v{vT1}, v{vAp}")
    a.e(f"v_lshlrev_b32 v{vT1}, 4, v{vT1}")
    a.e(f"v_lshl_add_u32 v{vAp}, v{vT0}, 11, v{vT1}")
    for i in range(1, 4): a.e(f"v_add_u32 v{vAp+i}, {i * 16384}, v{vAp}")
    a.e(f"s_lshl_b32 s{sAlo}, s{sMB}, 18"); a.e(f"s_lshl_b32 s{sT}, s{sW4}, 16"); a.e(f"s_add_u32 s{sAlo}, s{sAlo}, s{sT}")
    a.e(f"s_add_u32 s{sAhi}, s{sAlo}, 2048")
    k0_units(a, opt, sT); a.e(f"s_lshl_b32 s{sT}, s{sT}, 7"); a.e(f"s_add_u32 s{sAo}, s{sAlo}, s{sT}")
    a.e(f"s_mul_i32 s{sHo}, s{sW4}, {(-24 * 2048) & 0xffffffff}"); a.e(f"s_sub_u32 s{sHo}, s{sHo}, 32768")
    a.e(f"s_cmp_eq_u32 s{sMB}, 0"); a.e(f"s_cselect_b32 s{sHo}, 0x7f000000, s{sHo}")
    a.e(f"s_lshl_b32 s{sAm}, s{sW4}, 12"); a.e(f"s_add_u32 s{sAm}, s{sAm}, 2048")
    a.e(f"s_lshl_b32 s{sHm}, s{sW4}, 10")
    a.e(f"s_cmp_eq_u32 s{sW4}, 0"); a.e(f"s_cselect_b32 s26, 0xffffff00, -1"); a.e("s_mov_b32 s27, -1")
    def issW(st): g1_w_issue(a, st, vm, ("W", st))
    def issA(u):
        l = a.new("nh")
        a.e(f"s_cmp_ge_u32 s{sW4}, 2"); a.e(f"s_cbranch_scc1 {l}")
        a.e(f"s_add_u32 m0, s{sHm}, {aslot(u)}"); a.e(f"s_add_u32 s{sT}, s{sAo}, s{sHo}")
        a.e("s_mov_b64 exec, s[26:27]")
        a.e(f"buffer_load_dwordx4 v{vAp}, s[{sXR}:{sXR+3}], s{sT} offen lds")
        a.e("s_mov_b64 exec, -1")
        a.label(l)
        for i in range(4):
            a.e(f"s_add_u32 m0, s{sAm}, {aslot(u) + i * 1024}"); a.e("s_nop 0")
            a.e(f"buffer_load_dwordx4 v{vAp+i}, s[{sXR}:{sXR+3}], s{sAo} offen lds"); vm.op(("A", u))
        a.e(f"s_add_u32 s{sAo}, s{sAo}, 128"); a.e(f"s_cmp_eq_u32 s{sAo}, s{sAhi}"); a.e(f"s_cselect_b32 s{sAo}, s{sAlo}, s{sAo}")
    W = Stream("W", 32, RW, issW, lambda u: (wslot(u), wslot(u) + WSL), issued=1)
    A = Stream("A", 32, RA, issA, lambda u: (aslot(u), aslot(u) + AS), unit=2)
    sXC = 32
    make_srd(a, 28, pDBG, 256)
    a.e(f"s_getreg_b32 s{sXC}, hwreg(HW_REG_XCC_ID)")
    a.e(f"s_and_b32 s{sXC}, s{sXC}, 15"); a.e(f"s_or_b32 s{sXC}, s{sXC}, 0x80")
    a.e(f"s_lshr_b32 s33, s{sCI}, 2"); a.e(f"s_cmp_eq_u32 s{sW4}, 3"); a.e("s_cselect_b32 s33, s33, 64")
    def arrive(k):
        l = a.new("ar")
        a.e(f"s_cmp_eq_u32 s33, {k}"); a.e(f"s_cbranch_scc1 {l}"); a.label(f"{l}_b")
        a.ool([f"{l}:", f"v_mov_b32 v72, s{sXC}", "v_mov_b32 v73, 0", "s_mov_b64 exec, 1",
               f"buffer_store_byte v72, v73, s[28:31], s2 offen{SC}", "s_mov_b64 exec, -1", f"s_branch {l}_b"])
    def hs1():
        a.e(f"v_lshlrev_b32 v71, 2, v{vL}")
        a.e(f"buffer_load_dword v72, v71, s[28:31], 0 offen sc1"); vm.op("HS")
    def hs2():
        l = a.new("hs")
        vm.wait("HS")
        a.e("v_and_b32 v73, 0x80808080, v72")
        a.e("v_cmp_ne_u32 vcc, 0x80808080, v73")
        a.e(f"s_cbranch_vccnz {l}")
        a.label(f"{l}_b")
        h = Asm()
        h.label(l)
        h.e(f"buffer_load_dword v72, v71, s[28:31], 0 offen sc1")
        spin_guard(h)
        h.e("s_waitcnt vmcnt(0)")
        h.e("v_and_b32 v73, 0x80808080, v72")
        h.e("v_cmp_ne_u32 vcc, 0x80808080, v73")
        h.e(f"s_cbranch_vccnz {l}")
        h.e(f"s_branch {l}_b")
        a.ool([x.strip() for x in h.L])
        a.e(f"s_lshl_b32 s{sT}, s{sMB}, 11"); a.e(f"s_mul_i32 s{sT2}, s{sW4}, 288"); a.e(f"s_add_u32 s{sT}, s{sT}, s{sT2}")
        a.e(f"s_add_u32 s{sT}, s{sT}, {M_S0}")
        a.e("s_mov_b64 exec, 0x3ffff")
        a.e(f"buffer_load_dwordx4 {v(76,4)}, v{vL16}, s[{SW}:{SW+3}], s{sT} offen{SC}"); vm.op("S0")
        a.e("s_mov_b64 exec, -1")
        a.e(f"s_add_u32 s{sT2}, s{sT2}, {L_ST}"); a.e(f"v_add_u32 v75, s{sT2}, v{vL16}")
        a.e(f"s_and_b32 s{sT}, s{sX}, 3"); a.e(f"s_lshl_b32 s{sT}, s{sT}, 3")
        a.e(f"v_bfe_u32 v72, v72, s{sT}, 8")
        a.e(f"v_cmp_ne_u32 vcc, s{sXC}, v72")
        a.e(f"s_lshr_b32 s{sT}, s{sX}, 2")
        a.e(f"s_lshl_b32 s{sT2}, 0x55555555, s{sT}")
        a.e(f"s_or_b32 s{sT}, vcc_lo, vcc_hi"); a.e(f"s_and_b32 s{sT}, s{sT}, s{sT2}")
        a.e(f"s_cselect_b32 s{sSLOW}, 1, 0")
        if opt.get("forceslow"): a.e(f"s_mov_b32 s{sSLOW}, 1")
        set_mode(a, opt)
    def hs3():
        vm.wait("S0")
        a.e(f"v_mov_b32 v72, s{sSLOW}"); a.e(f"v_mov_b32 v73, {L_MODE}")
        a.e("s_mov_b64 exec, 0x3ffff")
        a.e(f"ds_write_b128 v75, {v(76,4)}")
        a.e("ds_write_b32 v73, v72")
        a.e("s_mov_b64 exec, -1")
    wstride = opt.get("warm", 0)
    warm = []
    if wstride:
        a.e("s_and_b32 s34, s2, 127"); a.e(f"s_lshl_b32 s34, s34, 2"); a.e(f"s_add_u32 s34, s34, s{sW4}"); a.e("s_mul_i32 s34, s34, 14336")
        a.e("s_cmp_lt_u32 s2, 128")
        a.e(f"s_cselect_b32 s36, s{pW1}, s{pW3}"); a.e(f"s_cselect_b32 s37, s{pW1+1}, s{pW3+1}")
        a.e("s_add_u32 s36, s36, s34"); a.e("s_addc_u32 s37, s37, 0")
        warm += [f"s_load_dword s35, s[36:37], {o}" for o in range(0, 14336, wstride)]
        if opt.get("warm2", 1):
            a.e(f"s_lshl_b32 s34, s2, 2"); a.e(f"s_add_u32 s34, s34, s{sW4}"); a.e("s_mul_i32 s34, s34, 7168")
            a.e(f"s_add_u32 s38, s{pW2}, s34"); a.e(f"s_addc_u32 s39, s{pW2+1}, 0")
            warm += [f"s_load_dword s35, s[38:39], {o}" for o in range(0, 7168, wstride)]
    def tail():
        pretouch_o(a, vm, always=opt.get("tx1", 0))
        if opt.get("tx1", 0):
            a.e(f"s_lshl_b32 s{sT}, s{sMT}, 4"); a.e(f"s_add_u32 s{sT}, s{sT}, s{sCI}"); a.e(f"s_lshl_b32 s{sT}, s{sT}, 2"); a.e(f"s_add_u32 s{sT}, s{sT}, s{sW4}")
            a.e(f"s_lshl_b32 s{sT}, s{sT}, 12")
            a.e("s_mov_b64 exec, 0xffffffff")
            a.e(f"buffer_load_dword v9, v{vT0}, s[{SW}:{SW+3}], s{sT} offen sc1"); vm.op()
            a.e("s_mov_b64 exec, -1")
        res.res_w_setup(a, 1)
    hooks = {f"B{k+1}": (lambda k=k: arrive(k)) for k in range(4)}
    hooks["B11"] = hs1; hooks["B13"] = hs2; hooks["B15"] = hs3
    wper = -(-len(warm) // 14)
    for p in range(14):
        h0 = hooks.get(f"B{p}")
        hooks[f"B{p}"] = (lambda p=p, h0=h0: (h0() if h0 else None, a.es(warm[p * wper:(p + 1) * wper])))
    if opt.get("vw", 1):
        a.e("s_cmp_lt_u32 s2, 128")
        a.e(f"s_cselect_b32 s36, s{pW1}, s{pW3}"); a.e(f"s_cselect_b32 s37, s{pW1+1}, s{pW3+1}")
        a.e(f"s_mov_b32 s38, {1024 * 7168}"); a.e("s_mov_b32 s39, 0x00020000")
        a.e("s_and_b32 s34, s2, 127"); a.e("s_mul_i32 s34, s34, 57344")
        a.e(f"v_lshlrev_b32 v70, 7, v{vL}")
        at = [int(x) for x in str(opt.get("vwat", "1x5x9x13")).split("x")]
        nl = 112 // len(at)
        a.e(f"s_mul_i32 s35, s{sW4}, 14336"); a.e("s_add_u32 s34, s34, s35")
        def vwarm(i):
            if nl < 64:
                mk = (1 << nl) - 1
                a.e(f"s_mov_b32 exec_lo, {mk & 0xffffffff}"); a.e(f"s_mov_b32 exec_hi, {mk >> 32}")
            a.e("buffer_load_dword v69, v70, s[36:39], s34 offen"); vm.op()
            a.e("s_mov_b64 exec, -1")
            a.e(f"s_add_u32 s34, s34, {nl * 128}")
        for i, p in enumerate(at):
            nm = f"B{p}" if p < 16 else "BE"
            h0 = hooks.get(nm)
            hooks[nm] = (lambda i=i, h0=h0: (h0() if h0 else None, vwarm(i)))
    assist(a, opt, hooks)
    ts(a, opt, PH, 0)
    pre = ["A", "W", "W", "A", "W", "W"]
    la, cap, nxtcap = g1_sched(opt)
    log = []
    n = run_loader(a, vm, events(), [A, W], pre, la, cap, hooks, tail, res.res_nxt(a, 1, vm, 22), nxtcap, log, tl=opt.get("tl") == "g1a", lgk={"BE"})
    if opt.get("log"): print("g1a", log)
    ts(a, opt, PH, 2)
    return n


def g1_load1(a, opt, prefetched):
    vm = VM(a)
    a.e(f"s_lshl_b32 s{sAlo}, s{sMB}, 18"); a.e(f"s_add_u32 s{sAlo}, s{sAlo}, {WS_X + 4 * MB}")
    a.e(f"s_lshl_b32 s{sT}, s{sW4}, 11"); a.e(f"s_add_u32 s{sAlo}, s{sAlo}, s{sT}")
    a.e(f"s_lshl_b32 s{sAm}, s{sW4}, 12"); a.e(f"s_add_u32 s{sAm}, s{sAm}, 2048")
    a.e(f"s_add_u32 s{sAhi}, s{sAlo}, {32 * 8192}")
    k0_units(a, opt, sT)
    a.e(f"s_lshl_b32 s{sT2}, s{sT}, 14"); a.e(f"s_add_u32 s{sAo}, s{sAlo}, s{sT2}")
    sHlo, sHk, sMP = 26, 27, 28
    a.e(f"s_sub_u32 s{sMP}, s{sMB}, 1"); a.e(f"s_and_b32 s{sMP}, s{sMP}, 15")
    a.e(f"s_lshl_b32 s{sHlo}, s{sMP}, 15"); a.e(f"s_add_u32 s{sHlo}, s{sHlo}, {M_HALO}")
    a.e(f"s_lshl_b32 s{sHk}, s{sT}, 11")
    a.e(f"v_lshlrev_b32 v{res.vPO}, 5, v{vL}")
    a.e(f"s_lshl_b32 s35, s{sX}, 10"); a.e(f"s_add_u32 s35, s35, {M_FL + 3 * 8192}")
    a.e(f"s_xor_b32 s36, s{sX}, 1"); a.e("s_lshl_b32 s36, s36, 9")
    a.e(f"s_sub_u32 s37, s{sK4}, 1"); a.e("s_and_b32 s37, s37, 7"); a.e("s_lshl_b32 s37, s37, 9")
    a.e("v_mov_b32 v8, s36"); a.e("v_writelane_b32 v8, s37, 1")
    a.e(f"s_mov_b32 s37, {M_RF + 8192 + 384}")
    ts(a, opt, PH, 0)
    poll(a, 35, res.vPO, res.vPL, 4, "0xffffffff")
    ts(a, opt, PH, 3)
    relay(a, M_RF + 8192, res.vPL + 2, res.vPL + 3)
    poll(a, 37, 8, res.vPL, 1, "3")
    ts(a, opt, PH, 1)
    def issW(st): g1_w_issue(a, st, vm, ("W", st))
    def issA(st):
        base = aslot(st >> 1) + (st & 1) * 1024
        l = a.new("nh")
        a.e(f"s_cmp_lg_u32 s{sW4}, {9 if opt.get('dbgnohalo') else st & 3}"); a.e(f"s_cbranch_scc1 {l}")
        a.e(f"s_add_u32 s{sT}, s{sHk}, {st * 1024}"); a.e(f"s_and_b32 s{sT}, s{sT}, 0x7fff")
        a.e(f"s_mov_b32 m0, {base}"); a.e(f"s_add_u32 s{sT}, s{sT}, s{sHlo}")
        a.e(f"buffer_load_dwordx4 v{vL16}, s[{SW}:{SW+3}], s{sT} offen sc1 lds")
        a.label(l)
        for i in range(2):
            a.e(f"s_add_u32 m0, s{sAm}, {base + i * 1024}"); a.e("s_nop 0")
            a.e(f"buffer_load_dwordx4 v{vL16}, s[{SW}:{SW+3}], s{sAo} offen offset:{i*1024} sc1 lds"); vm.op(("A", st))
        if not opt.get("dbgsameA"):
            a.e(f"s_add_u32 s{sAo}, s{sAo}, 8192"); a.e(f"s_cmp_eq_u32 s{sAo}, s{sAhi}"); a.e(f"s_cselect_b32 s{sAo}, s{sAlo}, s{sAo}")
    W = Stream("W", 32, RW, issW, lambda u: (wslot(u), wslot(u) + WSL), issued=prefetched)
    A = Stream("A", 32, 2 * RA, issA, lambda u: (aslot(u >> 1), aslot(u >> 1) + AS))
    SB = 32; HB = 64; vX = 80
    sSO = 29
    def hst_load():
        a.e(f"s_lshl_b32 s{sT}, s{sMP}, 15"); a.e(f"s_add_u32 s{sT}, s{sT}, {M_ST + 524288 + 112 * 8}")
        a.e(f"v_and_b32 v{vX+1}, 7, v{vI}"); a.e(f"v_lshlrev_b32 v{vX+1}, 4, v{vX+1}")
        a.e(f"v_lshrrev_b32 v{vT0}, 3, v{vL}"); a.e(f"v_lshl_add_u32 v{vX+1}, v{vT0}, 12, v{vX+1}")
        l = a.new("hs")
        a.e(f"s_cmp_lg_u32 s{sW4}, 3"); a.e(f"s_cbranch_scc1 {l}")
        for i in range(4):
            a.e(f"buffer_load_dwordx4 {v(HB+4*i,4)}, v{vX+1}, s[{SW}:{SW+3}], s{sT} offen offset:{i*1024} sc1")
        a.label(l)
        a.e(f"s_lshl_b32 s{sSO}, s{sMB}, 15"); a.e(f"s_lshl_b32 s{sT2}, s{sW4}, 8"); a.e(f"s_add_u32 s{sSO}, s{sSO}, s{sT2}")
        a.e(f"s_add_u32 s{sSO}, s{sSO}, {M_ST + 524288}")
        stats_lane(a, vX)
    def st_load(k):
        for i in (2 * k, 2 * k + 1):
            a.e(f"buffer_load_dwordx4 {v(SB+4*i,4)}, v{vX}, s[{SW}:{SW+3}], s{sSO} offen offset:{(i&1)*1024} sc1"); vm.op("S")
        a.e(f"s_add_u32 s{sSO}, s{sSO}, 2048")
    def st_fin():
        a.e(f"s_lshl_b32 s{sSO}, s{sW4}, 8"); a.e(f"s_add_u32 s{sSO}, s{sSO}, {L_ST + 128}")
        stats_reduce(a, SB, 8, vX, f"s{sSO}")
    def hst_fin():
        l = a.new("hf")
        a.e(f"s_cmp_lg_u32 s{sW4}, 3"); a.e(f"s_cbranch_scc1 {l}")
        stats_reduce(a, HB, 4, vX + 1, L_ST, sub=True)
        a.label(l)
    def tail():
        pretouch_o(a, vm); res.res_w_setup(a, 1)
    def capture(fn):
        n0 = len(a.L); fn(); o = a.L[n0:]; del a.L[n0:]; return [x.strip() for x in o]
    hooks = {"B4": hst_load}
    for k in range(4): hooks[f"B{5+k}"] = (lambda k=k: st_load(k))
    hooks["B9"] = hst_fin
    def piece(i, cuts=(0, 10, 20, 36, 99)):
        if i == 0:
            vm.wait("S"); piece.L = capture(st_fin)
        a.es(piece.L[cuts[i]:cuts[i + 1]])
    for i in range(4): hooks[f"B{11+i}"] = (lambda i=i: piece(i))
    assist(a, opt, hooks)
    pre = ["A", "A"] + ["W"] * max(0, 3 - prefetched) + ["A"]
    la, cap, nxtcap = g1_sched(opt)
    cap = lambda idx: 2 if idx < 1 else opt.get("g1cap", 5)
    log = []
    n = run_loader(a, vm, events(), [A, W], pre, la, cap, hooks, tail, res.res_nxt(a, 1, vm, 22), nxtcap, log, tl=opt.get("tl") == "g1b", lgk={"BE"})
    if opt.get("log"): print("g1b", log)
    ts(a, opt, PH, 2)
    return n


def x0_stats(a, opt):
    make_srd(a, 8, pAX, 4 * MB)
    D = 16; S = 48; vOne = 56
    a.e(f"s_lshl_b32 s16, s{sCI}, 2"); a.e(f"s_add_u32 s16, s16, s{sWAVE}"); a.e("s_lshl_b32 s16, s16, 1")
    a.e(f"s_lshl_b32 s17, s{sMT}, 7"); a.e("s_add_u32 s18, s17, s16"); a.e("s_lshl_b32 s18, s18, 11")
    a.e(f"s_add_u32 s19, s17, s{sCI}"); a.e("s_sub_u32 s19, s19, 16"); a.e("s_lshl_b32 s19, s19, 11")
    a.e(f"s_cmp_eq_u32 s{sMT}, 0"); a.e("s_cselect_b32 s19, 0x7f000000, s19")
    a.e(f"s_cmp_lg_u32 s{sWAVE}, 0"); a.e("s_cselect_b32 s19, 0x7f000000, s19")
    for i in range(4): a.e(f"buffer_load_dwordx4 {v(D+4*i,4)}, v{vL16}, s[8:11], s18 offen offset:{i*1024}")
    l = a.new("xs")
    for i in range(8): a.e(f"v_mov_b32 v{D+16+i}, 0")
    a.e(f"s_cbranch_scc1 {l}")
    for i in range(2): a.e(f"buffer_load_dwordx4 {v(D+16+4*i,4)}, v{vL16}, s[8:11], s19 offen offset:{i*1024}")
    a.label(l)
    a.e(f"v_mov_b32 v{vOne}, 0x{ONES:08x}")
    a.e("s_waitcnt vmcnt(0)")
    for k in range(3):
        for i in range(8):
            a.e(f"v_dot2_f32_bf16 v{S+2*k}, v{D+8*k+i}, v{vOne}, " + ("0" if i == 0 else f"v{S+2*k}"))
            a.e(f"v_dot2_f32_bf16 v{S+2*k+1}, v{D+8*k+i}, v{D+8*k+i}, " + ("0" if i == 0 else f"v{S+2*k+1}"))
    a.e("s_nop 2")
    for pat in ("quad_perm:[1,0,3,2]", "quad_perm:[2,3,0,1]", "row_half_mirror", "row_mirror"):
        for i in range(6): a.e(f"v_add_f32_dpp v{S+i}, v{S+i}, v{S+i} {pat} row_mask:0xf bank_mask:0xf")
    xreduce(a, list(range(S, S + 6)), list(range(D, D + 6)))
    for k in (1, 2):
        a.e(f"v_cmp_eq_u32 vcc, {k}, v{vL}"); a.e("s_nop 1")
        a.e(f"v_cndmask_b32 v{S}, v{S}, v{S+2*k}, vcc"); a.e(f"v_cndmask_b32 v{S+1}, v{S+1}, v{S+2*k+1}, vcc")
    finish_stats(a, S, S + 1)
    a.e("s_add_u32 s16, s16, 16")
    a.e(f"v_add_u32 v{D}, s16, v{vL}"); a.e(f"v_mov_b32 v{D+1}, s{sCI}")
    a.e(f"v_cndmask_b32 v{D}, v{D}, v{D+1}, vcc"); a.e(f"v_lshlrev_b32 v{D}, 3, v{D}")
    a.e(f"s_lshl_b32 s17, s{sMT}, 11"); a.e(f"s_add_u32 s17, s17, {M_S0}")
    a.e(f"s_cmp_eq_u32 s{sWAVE}, 0"); a.e("s_cselect_b64 exec, 7, 3")
    a.e(f"buffer_store_dwordx2 {v(S,2)}, v{D}, s[{SW}:{SW+3}], s17 offen{SC}")
    a.e("s_mov_b64 exec, -1")


def g1_cons(a, opt):
    ACCQ = 0; ACCK = 32; ACCV = 72; AQH = 112
    XF = 116; WF = 156
    vXa = 204; vXc = 206; vW0 = 208; vWc = 209; vOA = 210
    sSl, sAs, sCnt, s_h, sRH, sO, sZ, sSC = 16, 17, 18, 19, 20, 21, 22, 23
    sM = 28; sPM = 44
    def aq(j, ab): return ACCQ + ((j - 1) * 2 + ab) * 4
    def ak(j, ab): return ACCK + (j * 2 + ab) * 4
    def av(j, ab): return ACCV + (j * 2 + ab) * 4
    def xf(b, j): return XF + b * 20 + j * 4
    def wf(b, seg, ab): return WF + b * 24 + (seg * 2 + ab) * 4
    a.e(f"s_and_b32 s{s_h}, s{sWAVE}, 1"); a.e(f"s_lshr_b32 s{sRH}, s{sWAVE}, 1")
    l = a.new("ad")
    a.e(f"s_cmp_lg_u32 s{sLAY}, 0"); a.e(f"s_cbranch_scc1 {l}_f")
    a.e(f"v_lshlrev_b32 v{vT0}, 7, v{vI}")
    a.e(f"v_and_b32 v{vT1}, 6, v{vL}"); a.e(f"v_xor_b32 v{vT1}, v{vT1}, v{vG}")
    a.e(f"v_lshl_add_u32 v{vXa}, v{vT1}, 4, v{vT0}")
    a.e(f"v_xor_b32 v{vXa+1}, 64, v{vXa}")
    a.e(f"s_branch {l}_d")
    a.label(f"{l}_f")
    a.e(f"v_mov_b32 v{vXa}, v{vL16}"); a.e(f"v_add_u32 v{vXa+1}, 1024, v{vL16}")
    a.label(f"{l}_d")
    a.e(f"v_lshrrev_b32 v{vT0}, 2, v{vI}"); a.e(f"v_mul_u32_u24 v{vT0}, {WG}, v{vT0}")
    a.e(f"v_lshl_add_u32 v{vT0}, v{vG}, 7, v{vT0}")
    a.e(f"v_and_b32 v{vT1}, 3, v{vI}"); a.e(f"v_lshl_add_u32 v{vT0}, v{vT1}, 3, v{vT0}")
    a.e(f"s_lshl_b32 s{sT}, s{s_h}, 6"); a.e(f"s_add_u32 s{sT}, s{sT}, {LW}")
    a.e(f"v_add_u32 v{vW0}, s{sT}, v{vT0}")
    a.e(f"v_mov_b32 v{vWc}, v{vW0}")
    a.e(f"s_mov_b32 s{sSl}, 0"); a.e(f"s_mov_b32 s{sAs}, {aslot(0)}")
    a.e(f"v_add_u32 v{vXc}, s{sAs}, v{vXa}"); a.e(f"v_add_u32 v{vXc+1}, s{sAs}, v{vXa+1}")
    a.e(f"s_lshl_b32 s{sO}, s{sMB}, 4"); a.e(f"s_add_u32 s{sO}, s{sO}, s{sHP}"); a.e(f"s_lshl_b32 s{sO}, s{sO}, 1")
    a.e(f"s_add_u32 s{sO}, s{sO}, s{s_h}"); a.e(f"s_lshl_b32 s{sO}, s{sO}, 1"); a.e(f"s_add_u32 s{sO}, s{sO}, s{sRH}"); a.e(f"s_lshl_b32 s{sO}, s{sO}, 12")
    a.e(f"s_lshl_b32 s{sT}, s{sLAY}, 22"); a.e(f"s_add_u32 s{sO}, s{sO}, s{sT}"); a.e(f"s_add_u32 s{sO}, s{sO}, {WS_O}")
    sPAR, sCUR, sFM = 28, 30, 34
    vMK = 232
    vE, vC, vC2, vS1, vS2 = 236, 237, 238, 239, 240
    a.e(f"v_and_b32 v{vT1}, 1, v{vI}")
    a.e(f"v_cmp_eq_u32 s[{sPAR}:{sPAR+1}], 1, v{vT1}")
    a.e(f"v_lshlrev_b32 v{vT0}, 2, v{vG}"); a.e(f"v_sub_u32 v{vT0}, v{vI}, v{vT0}"); a.e(f"v_sub_u32 v{vT0}, v{vT0}, v{vT1}")
    a.e(f"v_lshlrev_b32 v{vT1}, 4, v{vT1}"); a.e(f"v_mov_b32 v{vOA}, 0xffff"); a.e(f"v_lshlrev_b32 v{vOA}, v{vT1}, v{vOA}")
    for k in range(2): a.e(f"v_cmp_le_i32 s[{sCUR+2*k}:{sCUR+2*k+1}], {2*k}, v{vT0}")
    a.e(f"s_or_b32 s{sZ}, s{sMB}, s{sRH}")
    a.e(f"s_cmp_eq_u32 s{sZ}, 0")
    for k in range(2): a.e(f"s_cselect_b64 s[{sFM+2*k}:{sFM+2*k+1}], s[{sCUR+2*k}:{sCUR+2*k+1}], -1")
    for k in range(2):
        a.e(f"v_cndmask_b32 v{vMK+k}, v{vOA}, 0, s[{sCUR+2*k}:{sCUR+2*k+1}]")
        a.e(f"v_cndmask_b32 v{vMK+2+k}, 0, v{vOA}, s[{sCUR+2*k}:{sCUR+2*k+1}]")
    a.e(f"s_mov_b32 s{sSC}, 0x{fbits((32 ** -0.5) * 1.4426950408889634):08x}")
    a.e(f"s_mul_i32 s{sT}, s{s_h}, 6144"); a.e(f"s_add_u32 s{sT}, s{sT}, {XSCR}"); a.e(f"v_add_u32 v{vE}, s{sT}, v{vL16}")
    a.e(f"s_mul_i32 s{sT}, s{s_h}, 384"); a.e(f"s_add_u32 s{sT}, s{sT}, {L_CS1}")
    a.e(f"v_lshlrev_b32 v{vC}, 4, v{vG}"); a.e(f"v_add_u32 v{vC}, s{sT}, v{vC}")
    a.e(f"v_lshlrev_b32 v{vC2}, 2, v{vI}"); a.e(f"v_add_u32 v{vC2}, s{sT}, v{vC2}")
    a.e(f"s_lshl_b32 s{sT}, s{sRH}, 9"); a.e(f"s_add_u32 s{sT}, s{sT}, {L_ST}")
    a.e(f"v_lshlrev_b32 v{vS1}, 3, v{vI}"); a.e(f"v_add_u32 v{vS1}, s{sT}, v{vS1}")
    a.e(f"v_lshlrev_b32 v{vS2}, 5, v{vG}"); a.e(f"v_add_u32 v{vS2}, s{sT}, v{vS2}")
    a.e(f"v_mov_b32 v241, {L_MODE}")
    for i in range(4): a.e(f"v_mov_b32 v{212+i}, 0")
    a.e(f"s_mov_b32 s{sCnt}, 16")
    a.e("s_nop 0")
    for i in range(0, 128, 16): a.e(f"v_mfma_f32_32x32x16_bf16 {v(i,16)}, {v(212,4)}, {v(212,4)}, 0")
    a.e("s_nop 7"); a.e("s_nop 3")
    a.e(f"s_cmp_eq_u32 s{sRH}, 1"); a.e("s_cbranch_scc1 g1c_r1")
    for rh in range(2):
        if rh: a.label("g1c_r1")
        def reads(b):
            g = []
            ws = [(1, 0), (1, 1), (2, 0), (2, 1), (0, 0), (0, 1)]
            xs = [0, 1, 2, 3, 4]
            wo = WSL if b == 0 else 0
            for i in range(6):
                if i < 5:
                    j = xs[i]
                    g.append(f"ds_read_b128 {v(xf(b,j),4)}, v{vXc+b} offset:{(4*rh + j) * 2048 if j else 0}")
                seg, ab = ws[i]
                g.append(f"ds_read_b64_tr_b16 {v(wf(b,seg,ab),2)}, v{vWc} offset:{wo + seg*1024 + ab*32}")
                g.append(f"ds_read_b64_tr_b16 {v(wf(b,seg,ab)+2,2)}, v{vWc} offset:{wo + seg*1024 + ab*32 + 512}")
            return g
        def mfs(b):
            Q = [mfma(aq(j, ab), wf(b, 0, ab), xf(b, j)) for ab in range(2) for j in range(1, 5)]
            K = [mfma(ak(j, ab), wf(b, 1, ab), xf(b, j)) for ab in range(2) for j in range(1, 5)]
            V = [mfma(av(j, ab), xf(b, j), wf(b, 2, ab)) for ab in range(2) for j in range(1, 5)]
            Hh = [mfma(AQH, wf(b, 0, rh), xf(b, 0))]
            if rh == 0: Hh += [mfma(ak(0, ab), wf(b, 1, ab), xf(b, 0)) for ab in range(2)]
            else: Hh += [mfma(av(0, ab), xf(b, 0), wf(b, 2, ab)) for ab in range(2)]
            return Hh + K + V + Q
        advW = [[f"s_add_u32 s{sSl}, s{sSl}, {2*WSL}", f"s_cmp_eq_u32 s{sSl}, {RW * WSL}"], [f"s_cselect_b32 s{sSl}, 0, s{sSl}"],
                [f"v_add_u32 v{vWc}, s{sSl}, v{vW0}"]]
        advA = [[f"s_add_u32 s{sAs}, s{sAs}, {AS}", f"s_cmp_eq_u32 s{sAs}, {RA * AS}"], [f"s_cselect_b32 s{sAs}, 0, s{sAs}"],
                [f"v_add_u32 v{vXc}, s{sAs}, v{vXa}"], [f"v_add_u32 v{vXc+1}, s{sAs}, v{vXa+1}"]]
        rdend = opt.get("g1rd", 17)
        def step(b, post):
            m = mfs(b); sl = {}
            spread(reads(1 - b), 0, rdend, sl)
            spread(post, rdend + 1, 25, sl)
            sl.setdefault(26, []).append("s_waitcnt vmcnt(0) lgkmcnt(0)" if b else "s_waitcnt lgkmcnt(0)")
            a.es(place(m, sl))
        ts(a, opt, PH, 0)
        a.e("s_barrier")
        ts(a, opt, PH, 1)
        a.es(reads(0))
        for gq in advW: a.es(gq)
        a.e("s_waitcnt lgkmcnt(0)")
        tsc(a, opt, PH, 6)
        a.label(f"g1c_loop{rh}")
        a.e("s_barrier")
        step(0, advA)
        step(1, advW + [[f"s_sub_u32 s{sCnt}, s{sCnt}, 1", f"s_cmp_lg_u32 s{sCnt}, 0"]])
        a.e(f"s_cbranch_scc1 g1c_loop{rh}")
        tsc(a, opt, PH, 7)
        ts(a, opt, PH, 2)
        CSQ = 116; MQ = 132; SV = 156; CSV = 196; CQ = 200; VP = 212
        if rh == 0:
            for i, r in enumerate((ak(4, 0), ak(4, 1), av(4, 0), av(4, 1))): a.e(f"ds_write_b128 v{vE}, {v(r,4)} offset:{i*1024}")
            a.e("s_mov_b32 exec_lo, 0x00010001"); a.e("s_mov_b32 exec_hi, 0x00010001")
            a.e(f"ds_write_b128 v{vC}, {v(AQH,4)}")
            for ab in range(2): a.e(f"ds_write_b128 v{vC}, {v(ak(0,ab),4)} offset:{128 + 64*ab}")
        else:
            for ab in range(2): a.e(f"ds_write_b128 v{vE}, {v(av(0,ab),4)} offset:{(4+ab)*1024}")
            a.e("s_mov_b32 exec_lo, 0x00010001"); a.e("s_mov_b32 exec_hi, 0x00010001")
            a.e(f"ds_write_b128 v{vC}, {v(AQH,4)} offset:64")
            a.e("s_mov_b64 exec, 0xffff")
            for ab in range(2): a.e(f"ds_write_b32 v{vC2}, v{av(0,ab)} offset:{256 + 64*ab}")
        a.e("s_mov_b64 exec, -1")
        a.e("s_waitcnt lgkmcnt(0)")
        a.e("s_barrier")
        for seg in range(2):
            for ab in range(2):
                a.e(f"ds_read_b128 {v(CSQ+(seg*2+ab)*4,4)}, v{vC} offset:{128*seg + 64*ab}")
        for j in (1, 2, 3, 4, 0):
            a.e(f"ds_read2_b32 {v(MQ+4*j,2)}, v{vS1} offset0:{32*j} offset1:{32*j}")
            a.e(f"ds_read2_b32 {v(MQ+4*j+2,2)}, v{vS1} offset0:{32*j+1} offset1:{32*j+1}")
        a.e("s_waitcnt lgkmcnt(2)")
        if rh == 0:
            for ab in range(2): a.e(f"ds_read_b128 {v(av(0,ab),4)}, v{vE} offset:{(4+ab)*1024}")
        else:
            for i, r in enumerate((ak(0, 0), ak(0, 1), av(0, 0), av(0, 1))): a.e(f"ds_read_b128 {v(r,4)}, v{vE} offset:{i*1024}")
        if rh == 0: a.e("s_branch g1c_epi")
    a.label("g1c_epi")
    a.e("ds_read_b32 v241, v241")
    for ab in range(2): a.e(f"ds_read2_b32 {v(CSV+2*ab,2)}, v{vC2} offset0:{64 + 16*ab} offset1:{64 + 16*ab}")
    ts(a, opt, PH, 3)
    NEGM = " neg_lo:[1,0,0] neg_hi:[1,0,0]"
    def svread(j):
        return [f"ds_read2_b32 {v(SV+8*j+2*k,2)}, v{vS2} offset0:{32*j + o} offset1:{32*j + o + 2}" for k, o in enumerate((0, 4, 1, 5))]
    def pack4(c): return [f"v_cvt_pk_bf16_f32 v{c+k}, v{c+2*k}, v{c+2*k+1}" for k in range(4)]
    def normq(j):
        c = aq(j, 0)
        return [f"v_pk_fma_f32 {v(c+r,2)}, {v(MQ+4*j,2)}, {v(CSQ+r,2)}, {v(c+r,2)}{NEGM}" for r in (0, 2, 4, 6)] + pack4(c) + \
               [f"v_mul_f32 v{CQ+j-1}, s{sSC}, v{MQ+4*j+2}"]
    def normk(j):
        c = ak(j, 0)
        return [f"v_pk_fma_f32 {v(c+r,2)}, {v(MQ+4*j,2)}, {v(CSQ+8+r,2)}, {v(c+r,2)}{NEGM}" for r in (0, 2, 4, 6)] + \
               [f"v_pk_mul_f32 {v(c+r,2)}, {v(MQ+4*j+2,2)}, {v(c+r,2)}" for r in (0, 2, 4, 6)] + pack4(c)
    for j in range(1, 5):
        a.es(normq(j)); a.es(svread(j))
        a.es(normk(j))
        if j == 2: a.e("s_waitcnt lgkmcnt(4)")
    a.es(svread(0))
    a.e("s_waitcnt lgkmcnt(4)")
    a.es(normk(0))
    a.e(f"v_readfirstlane_b32 s{sSLOW}, v241")
    S = [116, 124, 132, 140]
    J = range(4)
    set_mode(a, opt)
    for i in J:
        j = i + 1
        a.e(mfma(S[i], ak(j, 0), aq(j, 0), "0"))
        a.e(mfma(S[i] + 4, ak(j - 1, 0), aq(j, 0), "0"))
    for j in (1, 2, 3, 4, 0):
        if j == 0: a.e("s_waitcnt lgkmcnt(0)")
        for ab in range(2):
            c = av(j, ab)
            for k in range(2): a.e(f"v_pk_fma_f32 {v(c+2*k,2)}, {v(SV+8*j+2*k,2)}, {v(CSV+2*ab,2)}, {v(c+2*k,2)}{NEGM}")
            for k in range(2): a.e(f"v_pk_mul_f32 {v(c+2*k,2)}, {v(SV+8*j+4+2*k,2)}, {v(c+2*k,2)}")
            P = VP + ab * 10 + 2 * j
            a.e(f"v_cvt_pk_bf16_f32 v{P}, v{c}, v{c+1}")
            a.e(f"v_cvt_pk_bf16_f32 v{P+1}, v{c+2}, v{c+3}")
    X = [148, 150, 152, 154]; MX = [0, 1, 2, 3]; PP = [8, 12, 16, 20]; OO = [24, 32, 40, 48]; OP = [56, 60, 64, 68]; NEG = 4
    a.e(f"s_mov_b64 vcc, s[{sPAR}:{sPAR+1}]")
    a.e(f"v_mov_b32 v{NEG}, 0xf149f2ca")
    for i in J:
        for k in range(2):
            a.e(f"v_cndmask_b32 v{S[i]+2*k}, v{S[i]+2*k}, v{S[i]+2*k+1}, vcc")
            a.e(f"v_cndmask_b32 v{S[i]+4+2*k}, v{S[i]+4+2*k}, v{S[i]+4+2*k+1}, vcc")
        for k in range(2):
            a.e(f"v_cndmask_b32 v{X[i]+k}, v{S[i]+4+2*k}, v{S[i]+2*k}, s[{sCUR+2*k}:{sCUR+2*k+1}]")
    for k in range(2): a.e(f"v_cndmask_b32 v{X[0]+k}, v{NEG}, v{X[0]+k}, s[{sFM+2*k}:{sFM+2*k+1}]")
    def tred(op, mid=None):
        m = MX
        a.e("s_nop 0")
        a.e(f"v_permlane16_swap_b32 v{m[0]}, v{m[1]}"); a.e(f"v_permlane16_swap_b32 v{m[2]}, v{m[3]}")
        a.e(f"{op} v{m[0]}, v{m[0]}, v{m[1]}"); a.e(f"{op} v{m[2]}, v{m[2]}, v{m[3]}")
        a.e("s_nop 1")
        a.e(f"v_permlane32_swap_b32 v{m[0]}, v{m[2]}")
        a.e(f"{op} v{m[0]}, v{m[0]}, v{m[2]}")
        if mid: a.e(f"{mid} v{m[0]}, v{m[0]}"); a.e("s_nop 0")
        a.e(f"v_mov_b32 v{m[2]}, v{m[0]}")
        a.e("s_nop 1")
        a.e(f"v_permlane32_swap_b32 v{m[0]}, v{m[2]}")
        a.e(f"v_mov_b32 v{m[1]}, v{m[0]}"); a.e(f"v_mov_b32 v{m[3]}, v{m[2]}")
        a.e("s_nop 0")
        a.e(f"v_permlane16_swap_b32 v{m[0]}, v{m[1]}"); a.e(f"v_permlane16_swap_b32 v{m[2]}, v{m[3]}")
    for i in J: a.e(f"v_max_f32 v{MX[i]}, v{X[i]}, v{X[i]+1}")
    tred("v_max_f32")
    for i in J:
        for k in range(2): a.e(f"v_sub_f32 v{X[i]+k}, v{X[i]+k}, v{MX[i]}")
    for i in J:
        for k in range(2): a.e(f"v_mul_f32 v{X[i]+k}, v{CQ+i}, v{X[i]+k}")
    for i in J:
        for k in range(2): a.e(f"v_exp_f32 v{X[i]+k}, v{X[i]+k}")
    for i in J: a.e(f"v_add_f32 v{MX[i]}, v{X[i]}, v{X[i]+1}")
    tred("v_add_f32", "v_rcp_f32")
    for i in J:
        for k in range(2): a.e(f"v_mul_f32 v{X[i]+k}, v{X[i]+k}, v{MX[i]}")
        for k in range(2): a.e(f"v_cvt_pk_bf16_f32 v{X[i]+k}, v{X[i]+k}, v{X[i]+k}")
        for k in range(4): a.e(f"v_and_b32 v{PP[i]+k}, v{X[i]+(k&1)}, v{vMK+k}")
        if i:
            for ab in range(2): a.e(mfma(OO[i-1] + 4 * ab, VP + ab * 10 + 2 * (i-1), PP[i-1], "0"))
    for ab in range(2): a.e(mfma(OO[3] + 4 * ab, VP + ab * 10 + 6, PP[3], "0"))
    a.e(f"s_cmp_lg_u32 s{sHF}, 0"); a.e("s_cbranch_scc1 g1c_rem")
    def outs(fl):
        o = []
        for i in J:
            o += [f"v_cvt_pk_bf16_f32 v{OP[i]+k}, v{OO[i]+2*k}, v{OO[i]+2*k+1}" for k in range(4)]
            o.append(f"buffer_store_dwordx4 {v(OP[i],4)}, v{vL16}, s[{SW}:{SW+3}], s{sO} offen offset:{i*1024}{fl}")
        return o
    a.es(outs(""))
    a.label("g1c_remb")
    a.ool(["g1c_rem:"] + outs(SC) + ["s_branch g1c_remb"])
    ts(a, opt, PH, 4)
    signal(a, PH, 108, 109)
    ts(a, opt, PH, 5)
```

```python
from common import *
import res

AS = 8192; LW = 36736; WSL = 28800; WM = 14400; WR = 7200; PW = 7168
PH = 2
def wph(st): return (st + 1) % 4


def sharer(a, dst):
    a.e(f"s_add_u32 s{dst}, s{sK4}, s{sQ}"); a.e(f"s_lshl_b32 s{dst}, s{dst}, 1"); a.e(f"s_add_u32 s{dst}, s{dst}, s{sHF}")


class G3:
    def __init__(self, a, opt, cls):
        self.gen = g3(a, opt, cls, self)
    def w_setup(self): next(self.gen)
    def nxt(self, vm, n):
        def mk(st, k):
            def f():
                self.a.es(self.dmaW(st, range(7))[k]); vm.op()
            return f
        return [(LW + wph(st) * WSL, LW + (wph(st) + 1) * WSL, mk(st, k)) for st in range(n) for k in range(7)]
    def run(self, npre, prev_signal=None):
        self.prev_signal = prev_signal
        assert npre % 7 == 0
        self.npre = npre // 7
        for _ in self.gen: pass


def g3(a, opt, cls, self):
    self.a = a
    NP = 4 - cls
    nW0 = opt.get("g3nw0", 4)
    ks_ = list(range(7 - nW0, 7)) if cls == 0 else list(range(0, 7 - nW0))
    n = len(ks_) + 2 * cls
    sW = 8
    sWo, sWlo, sWhi, sWm = 16, 17, 18, 19
    sAo, sAlo, sAhi, sAm = 20, 21, 22, 23
    sCnt, sH, sH2, sHK, sC0 = 24, 25, 26, 27, 28
    sMS, sRS, sSH = 32, 33, 34
    if cls == 0:
        WF = 128; WFS = 32; XF = 192; AD = 224
    else:
        WF = 96; WFS = 24; XF = 144; TMP = 176; AD = 228
    vWp = AD
    vXa = AD + 7; vWa = AD + 8
    vWb = AD + 10
    tag = f"g3c{cls}"
    def acc(mat, t, rt): return ((mat * NP + t) * 4 + rt) * 4
    def wf(b, mat, t): return WF + b * WFS + (mat * NP + t) * 4
    def xf(b, rt): return XF + b * 16 + rt * 4
    def wreg(k): return vWp + (k if cls else k - (7 - nW0))
    a.e(f"s_and_b32 s{sT}, s{sWAVE}, 1")
    a.e(f"s_cmp_eq_u32 s{sT}, 0")
    a.e(f"s_cselect_b32 s{sW}, s{pW1}, s{pW3}")
    a.e(f"s_cselect_b32 s{sW+1}, s{pW1+1}, s{pW3+1}")
    a.e(f"s_mov_b32 s{sW+2}, {1024 * PW}")
    a.e(f"s_mov_b32 s{sW+3}, 0x00020000")
    a.e(f"s_mul_i32 s{sWm}, s{sT}, {WM}")
    a.e(f"s_lshr_b32 s{sT}, s{sW4}, 1")
    a.e(f"s_mul_i32 s{sT2}, s{sT}, {WR}")
    a.e(f"s_add_u32 s{sWm}, s{sWm}, s{sT2}")
    a.e(f"s_add_u32 s{sWm}, s{sWm}, {LW}")
    a.e(f"s_mul_i32 s{sWlo}, s{sT}, {4 * PW}")
    a.e(f"s_mul_i32 s{sT2}, s{sNT}, 448")
    a.e(f"s_add_u32 s{sWlo}, s{sWlo}, s{sT2}")
    a.e(f"s_add_u32 s{sWhi}, s{sWlo}, {1024 * PW}")
    LA = opt.get("g3la", 3)
    first = 0 if cls else LA
    a.e(f"s_lshl_b32 s{sT}, s{sK3}, 1")
    if first: a.e(f"s_add_u32 s{sT}, s{sT}, {first}"); a.e(f"s_and_b32 s{sT}, s{sT}, 31")
    a.e(f"s_mul_i32 s{sT2}, s{sT}, {32 * PW}")
    a.e(f"s_add_u32 s{sWo}, s{sWlo}, s{sT2}")
    a.e(f"s_mov_b32 s{sT3}, 2341")
    for k in (range(7) if cls else ks_):
        a.e(f"v_add_u32 v{vT0}, {64 * k}, v{vL}")
        a.e(f"v_mul_lo_u32 v{vT1}, v{vT0}, s{sT3}")
        a.e(f"v_lshrrev_b32 v{vT1}, 16, v{vT1}")
        a.e(f"v_mul_u32_u24 v{wreg(k)}, 28, v{vT1}")
        a.e(f"v_sub_u32 v{vT0}, v{vT0}, v{wreg(k)}")
        a.e(f"v_and_b32 v{wreg(k)}, 12, v{vT1}")
        a.e(f"v_add_u32 v{vT1}, v{vT1}, v{wreg(k)}")
        a.e(f"v_mul_u32_u24 v{vT1}, {PW}, v{vT1}")
        a.e(f"v_lshl_add_u32 v{wreg(k)}, v{vT0}, 4, v{vT1}")
    def dmaW(st, ks):
        g = []
        for k in ks:
            g.append([f"s_add_u32 m0, s{sWm}, {wph(st) * WSL + 1024 * k}", "s_nop 0",
                      f"buffer_load_dwordx4 v{wreg(k)}, s[{sW}:{sW+3}], s{sWo} offen lds"])
        adv = [f"s_add_u32 s{sWo}, s{sWo}, {32 * PW}", f"s_cmp_eq_u32 s{sWo}, s{sWhi}", f"s_cselect_b32 s{sWo}, s{sWlo}, s{sWo}"]
        if g: g[-1] = g[-1] + adv
        return g
    advA = [f"s_add_u32 s{sAo}, s{sAo}, 8192", f"s_cmp_eq_u32 s{sAo}, s{sAhi}", f"s_cselect_b32 s{sAo}, s{sAlo}, s{sAo}"]
    def dmaA(st):
        if cls == 0: return []
        return [[f"s_add_u32 m0, s{sAm}, {(st % 4) * AS}", "s_nop 0",
                 f"buffer_load_dwordx4 v{vL16}, s[{SW}:{SW+3}], s{sAo} offen sc1 lds"],
                [f"s_add_u32 m0, s{sAm}, {(st % 4) * AS}", "s_nop 0",
                 f"buffer_load_dwordx4 v{vL16}, s[{SW}:{SW+3}], s{sAo} offen offset:1024 sc1 lds"] + advA]
    self.dmaW = dmaW
    yield
    vm = VM(a)
    nPre = self.npre
    if cls:
        a.e(f"s_and_b32 s{sT}, s{sW4}, 2"); a.e(f"s_xor_b32 s{sMS}, s{sMT}, s{sT}")
        a.e(f"s_lshl_b32 s{sAlo}, s{sLAY}, 23")
        a.e(f"s_lshl_b32 s{sT}, s{sMS}, 18"); a.e(f"s_add_u32 s{sAlo}, s{sAlo}, s{sT}")
        a.e(f"s_lshl_b32 s{sT}, s{sHF}, 1"); a.e(f"s_and_b32 s{sT2}, s{sW4}, 1"); a.e(f"s_add_u32 s{sRS}, s{sT}, s{sT2}")
        a.e(f"s_lshl_b32 s{sT}, s{sRS}, 11"); a.e(f"s_add_u32 s{sAlo}, s{sAlo}, s{sT}")
        a.e(f"s_lshl_b32 s{sAm}, s{sW4}, 11")
        a.e(f"s_add_u32 s{sAhi}, s{sAlo}, {32 * 8192}")
        a.e(f"s_lshl_b32 s{sT}, s{sK3}, 14"); a.e(f"s_add_u32 s{sAo}, s{sAlo}, s{sT}")
        sharer(a, sSH)
    a.e(f"s_and_b32 s{sT}, s{sWAVE}, 1"); a.e(f"s_lshl_b32 s{sT}, s{sT}, 12")
    a.e(f"v_add_u32 v{vXa}, s{sT}, v{vL16}")
    a.e(f"v_lshrrev_b32 v{vT0}, 1, v{vG}")
    a.e(f"v_lshrrev_b32 v{vT1}, 2, v{vI}")
    a.e(f"v_lshl_add_u32 v{vT0}, v{vT0}, 2, v{vT1}")
    a.e(f"v_mul_u32_u24 v{vT0}, 448, v{vT0}")
    a.e(f"v_and_b32 v{vT1}, 1, v{vG}")
    a.e(f"v_mul_u32_u24 v{vT1}, {WR}, v{vT1}")
    a.e(f"v_add_u32 v{vT0}, v{vT0}, v{vT1}")
    a.e(f"v_and_b32 v{vT1}, 3, v{vI}")
    a.e(f"v_lshl_add_u32 v{vT0}, v{vT1}, 3, v{vT0}")
    a.e(f"v_add_u32 v{vT0}, {LW}, v{vT0}")
    a.e(f"s_lshr_b32 s{sT}, s{sW4}, 1")
    a.e(f"s_lshl_b32 s{sC0}, s{sT}, 2")
    if cls: a.e(f"s_add_u32 s{sC0}, s{sC0}, 8")
    a.e(f"s_lshl_b32 s{sT2}, s{sC0}, 5")
    a.e(f"v_add_u32 v{vWa}, s{sT2}, v{vT0}")
    a.e(f"v_add_u32 v{vWa+1}, {2 * WSL}, v{vWa}")
    if cls:
        a.e(f"s_add_u32 s{sT2}, s{sT}, 10"); a.e(f"s_lshl_b32 s{sT2}, s{sT2}, 5")
        a.e(f"v_add_u32 v{vWb}, s{sT2}, v{vT0}")
        a.e(f"v_add_u32 v{vWb+1}, {2 * WSL}, v{vWb}")
        vCa = TMP + 48
        a.e(f"s_mul_i32 s{sT2}, s{sT}, 224")
        a.e(f"s_and_b32 s{sT}, s{sWAVE}, 1"); a.e(f"s_mul_i32 s{sT}, s{sT}, {WM}"); a.e(f"s_add_u32 s{sT2}, s{sT2}, s{sT}")
        a.e(f"v_add_u32 v{vCa}, s{sT2}, v{vT0}")
        for i in range(4): a.e(f"v_mov_b32 v{TMP+44+i}, 0x{ONES:08x}")
    res.h_base(a, sH)
    a.e(f"s_and_b32 s{sT}, s{sNT}, 7"); a.e(f"s_mul_i32 s{sT}, s{sT}, {7 * 8192}"); a.e(f"s_add_u32 s{sH}, s{sH}, s{sT}")

    def reads(st):
        b = st & 1; sl = st % 4; g = []
        for rt in range(4):
            g.append(f"ds_read_b128 {v(xf(b,rt),4)}, v{vXa} offset:{sl * AS + rt * 1024}")
        for t in range(NP):
            for mat in range(2):
                third = cls and t == 2
                reg = (vWb if third else vWa) + (wph(st) >> 1)
                off = (wph(st) & 1) * WSL + mat * WM + (0 if third else 32 * t)
                g.append(f"ds_read_b64_tr_b16 {v(wf(b,mat,t),2)}, v{reg} offset:{off}")
                g.append(f"ds_read_b64_tr_b16 {v(wf(b,mat,t)+2,2)}, v{reg} offset:{off + 3584}")
        return g
    def mfmas(st, zero=False):
        b = st & 1
        return [mfma(acc(mat, t, rt), wf(b, mat, t), xf(b, rt), "0" if zero else None)
                for t in range(NP) for mat in range(2) for rt in range(4)]
    def merge(A, B):
        if not B: return list(A)
        out = []; j = 0
        for i, g in enumerate(A):
            out.append(g)
            want = ((i + 1) * len(B)) // len(A)
            while j < want: out.append(B[j]); j += 1
        return out + B[j:]
    def step(st, dma=True, rd=True, zero=False, extra=None, track=False, fill=None, fill0=0, nvm=0, pre=None):
        m = mfmas(st, zero); sl = {}
        r = [[x] for x in reads(st + 1)] if rd else []
        d = (dmaW(st + LA, ks_) + dmaA(st + LA)) if dma else []
        if track:
            for _ in d: vm.op(("D", st + LA))
            for _ in range(nvm): vm.op("X")
        spread(merge(r, d) if r else d, 0, int(len(m) * opt.get("g3rd", 0.8)), sl)
        if pre: sl[-1] = list(pre)
        if fill: spread(fill, fill0, len(m) - 1, sl)
        for frac, grp in (extra or []): sl.setdefault(int(frac * (len(m) - 1)), []).extend(grp)
        a.es(place(m, sl))

    def colsum_hook(tgt):
        l = a.new("cs")
        a.e(f"s_cmp_eq_u32 s{sHK}, {tgt >> 1}")
        a.e(f"s_cbranch_scc1 {l}")
        a.label(f"{l}_b")
        CA = TMP; CFR = TMP + 28; ON = TMP + 44; vCa = TMP + 48; vX = TMP + 49
        o = [f"{l}:", f"v_add_u32 v{vX}, {wph(tgt) * WSL}, v{vCa}"]
        for t0, t1 in ((0, 4), (4, 7)):
            for t in range(t0, t1):
                o.append(f"ds_read_b64_tr_b16 {v(CFR+4*(t-t0),2)}, v{vX} offset:{32*t}")
                o.append(f"ds_read_b64_tr_b16 {v(CFR+4*(t-t0)+2,2)}, v{vX} offset:{32*t + 3584}")
            o.append("s_waitcnt lgkmcnt(0)")
            for t in range(t0, t1):
                o.append(mfma(CA + 4 * t, CFR + 4 * (t - t0), ON, "0" if tgt % 2 == 0 else None))
            o.append("s_nop 7")
        if tgt % 2 == 1:
            o += [f"s_lshl_b32 s{sT}, s{sSH}, 1", f"s_and_b32 s{sT2}, s{sWAVE}, 1", f"s_add_u32 s{sT}, s{sT}, s{sT2}",
                  f"s_mul_i32 s{sT}, s{sT}, {3584 * 4}", f"s_mul_i32 s{sT2}, s{sNT}, 896", f"s_add_u32 s{sT}, s{sT}, s{sT2}",
                  f"s_lshr_b32 s{sT2}, s{sW4}, 1", f"s_mul_i32 s{sT2}, s{sT2}, 448", f"s_add_u32 s{sT}, s{sT}, s{sT2}",
                  f"s_add_u32 s{sT}, s{sT}, {M_CS}", f"v_lshlrev_b32 v{vX}, 4, v{vG}",
                  "s_mov_b32 exec_lo, 0x00010001", "s_mov_b32 exec_hi, 0x00010001"]
            for t in range(7):
                o.append(f"buffer_store_dwordx4 {v(CA+4*t,4)}, v{vX}, s[{SW}:{SW+3}], s{sT} offen offset:{64*t}{SC}")
            o += ["s_mov_b64 exec, -1", "s_nop 3"]
        o.append(f"s_branch {l}_b")
        a.ool(o)

    ts(a, opt, PH, 0)
    if cls == 0:
        for i in range(4): a.e(f"v_mov_b32 v{XF+i}, 0")
        a.e("s_nop 1")
        for i in range(0, 128, 16):
            a.e(f"v_mfma_f32_32x32x16_bf16 {v(i,16)}, {v(XF,4)}, {v(XF,4)}, 0")
        TB = 36; sTI = 35; OOB = 0x7f000000
        tt = opt.get("tt", 0)
        if tt:
            for i in range(10): a.e(f"s_mov_b32 s{TB+i}, {OOB}")
            l = a.new("tt")
            a.e(f"s_cmp_lg_u32 s{sLAY}, 0"); a.e(f"s_cbranch_scc1 {l}")
            t0 = TB + opt.get("tt0", 4)
            a.e(f"s_lshl_b32 s{sT}, s2, 2"); a.e(f"s_add_u32 s{sT}, s{sT}, s{sWAVE}"); a.e(f"s_lshl_b32 s{sT}, s{sT}, 13")
            a.e(f"s_add_u32 s{t0}, s{sT}, {WS_P}"); a.e(f"s_add_u32 s{t0+4}, s{sT}, {WS_P + 8 * MB}")
            a.e(f"s_lshr_b32 s{sT2}, s{sWAVE}, 1"); res.x4_off(a, t0 + 1, sT2, 1)
            a.e(f"s_and_b32 s{sT2}, s{sWAVE}, 1"); a.e(f"s_lshl_b32 s{sT2}, s{sT2}, 13"); a.e(f"s_add_u32 s{t0+1}, s{t0+1}, s{sT2}")
            a.e(f"s_lshl_b32 s{sT}, s{sMB}, 4"); a.e(f"s_add_u32 s{sT}, s{sT}, s{sHP}"); a.e(f"s_lshl_b32 s{sT}, s{sT}, 2"); a.e(f"s_add_u32 s{sT}, s{sT}, s{sWAVE}")
            a.e(f"s_lshl_b32 s{sT}, s{sT}, 12"); a.e(f"s_add_u32 s{t0+2}, s{sT}, {WS_O + 4 * MB}")
            a.e(f"s_lshl_b32 s{sT}, s{sMT}, 4"); a.e(f"s_add_u32 s{sT}, s{sT}, s{sCI}"); a.e(f"s_lshl_b32 s{sT}, s{sT}, 2"); a.e(f"s_add_u32 s{sT}, s{sT}, s{sWAVE}")
            a.e(f"s_lshl_b32 s{sT}, s{sT}, 12"); a.e(f"s_add_u32 s{t0+3}, s{sT}, {WS_X + 8 * MB}")
            a.label(l)
            a.e(f"s_lshl_b32 s{sT}, s{sWAVE}, 12"); a.e(f"s_add_u32 s{TB+10}, s{sT}, s{sH}")
            for i in range(1, 4): a.e(f"s_add_u32 s{TB+10+i}, s{TB+10}, {i * 16384}")
            a.e(f"s_cmp_lt_u32 s{sWAVE}, 2"); a.e(f"s_cselect_b32 s{TB+13}, s{TB+13}, {OOB}")
            a.e(f"s_mov_b32 s{sTI}, 0")
            a.e(f"v_lshlrev_b32 v247, 7, v{vL}"); a.e(f"v_and_b32 v248, 32, v{vL}"); a.e("v_lshl_add_u32 v247, v248, 24, v247")
        tgrp = [f"s_mov_b32 m0, s{sTI}", f"s_add_u32 s{sTI}, s{sTI}, 1", f"s_movrels_b32 s34, s{TB}",
                f"buffer_load_dword v248, v247, s[{SW}:{SW+3}], s34 offen sc1"]
        a.e("s_barrier")
        ts(a, opt, PH, 1)
        a.es(reads(0))
        tsc(a, opt, PH, 6)
        a.e(f"s_mov_b32 s{sCnt}, 7")
        a.label(f"{tag}_loop")
        assert LA == 3
        for st in range(4):
            a.e(f"s_waitcnt vmcnt({n + tt}) lgkmcnt(0)"); a.e("s_barrier")
            if opt.get("tl") == "g3":
                a.e(f"s_memtime s[{sTS}:{sTS+1}]"); a.e("s_waitcnt lgkmcnt(0)")
                a.e(f"s_lshl_b32 s{sTS+1}, s{sCnt}, 2"); a.e(f"s_sub_u32 s{sTS+1}, {28 + st}, s{sTS+1}")
                a.e(f"s_lshl_b32 s{sT}, s{sLAY}, 5"); a.e(f"s_add_u32 m0, s{sT}, s{sTS+1}"); a.e("s_nop 0")
                a.e(f"v_writelane_b32 v246, s{sTS}, m0")
            step(st, extra=[(0.9, tgrp)] if (tt and st % 2 == 0) else None)
        a.e(f"s_sub_u32 s{sCnt}, s{sCnt}, 1"); a.e(f"s_cmp_lg_u32 s{sCnt}, 0"); a.e(f"s_cbranch_scc1 {tag}_loop")
        if opt.get("tl") == "g3":
            a.e(f"s_lshl_b32 s{sT}, s2, 3"); a.e(f"s_add_u32 s{sT}, s{sT}, s{sWAVE}"); a.e(f"s_mul_i32 s{sT}, s{sT}, 768"); a.e(f"s_add_u32 s{sT}, s{sT}, {M_TS + MB}")
            a.e(f"v_lshlrev_b32 v{vT0}, 2, v{vL}")
            a.e(f"buffer_store_dword v246, v{vT0}, s[{SW}:{SW+3}], s{sT} offen")
    else:
        a.e(f"s_cmp_eq_u32 s{sLAY}, {5 if opt.get('dbgnocs') else 0}"); a.e(f"s_cselect_b32 s{sHK}, 0, 8"); a.e(f"s_and_b32 s{sT}, s{sSH}, 3"); a.e(f"s_or_b32 s{sHK}, s{sHK}, s{sT}")
        flag_off(a, 35, PH - 1)
        a.e(f"s_lshl_b32 s{sT2}, s{sHF}, 3"); a.e(f"s_add_u32 s35, s35, s{sT2}")
        a.e(f"v_lshlrev_b32 v{res.vPO}, 5, v{vL}")
        a.e(f"s_lshl_b32 s36, s{sLAY}, 12"); a.e(f"s_add_u32 s36, s36, {M_RF}")
        a.e(f"s_xor_b32 s37, s{sMT}, 2"); a.e("s_lshl_b32 s37, s37, 1"); a.e(f"s_add_u32 s37, s37, s{sHF}"); a.e("s_lshl_b32 s37, s37, 7"); a.e("s_add_u32 s37, s37, s36")
        lr = a.new("lr")
        a.e(f"s_cmp_ge_u32 s{sW4}, 2"); a.e(f"s_cbranch_scc1 {lr}")
        poll(a, 35, res.vPO, res.vPL, 2, "0xffff")
        relay(a, "s36", res.vPL + 2, res.vPL + 3)
        a.e(f"s_branch {lr}_d")
        a.label(lr)
        poll(a, 37, res.vPO, res.vPL, 1, "1")
        a.label(f"{lr}_d")
        ts(a, opt, PH, 1)
        for st in range(2):
            for gq in dmaA(st): a.es(gq); vm.op(("D", st))
        late = []
        for st in range(2, LA):
            late += [(gq, st) for gq in (dmaW(st, range(7)) if st >= nPre else []) + dmaA(st)]
        ne = opt.get("g3e", 4)
        for gq, st in late[:ne]: a.es(gq); vm.op(("D", st))
        vm.wait(("D", 0)); a.e("s_barrier")
        a.es(reads(0))
        for gq, st in late[ne:]: a.es(gq); vm.op(("D", st))
        colsum_hook(0)
        tsc(a, opt, PH, 6)
        vX = TMP + 49
        def lines(fn):
            h = Asm(); h.uid = a.uid + 500; fn(h); a.uid = h.uid
            a.tail += h.tail
            return [x.strip() for x in h.L]
        def tree(h):
            for w in (4, 2, 1):
                for i in range(w):
                    for r in (0, 2): h.e(f"v_pk_add_f32 {v(TMP+4*i+r,2)}, {v(TMP+4*i+r,2)}, {v(TMP+4*(i+w)+r,2)}")
        def st_setup(h):
            h.e(f"s_lshl_b32 s{sH2}, s{sMS}, 15"); h.e(f"s_lshl_b32 s{sT2}, s{sLAY}, 20"); h.e(f"s_add_u32 s{sH2}, s{sH2}, s{sT2}")
            h.e(f"s_lshl_b32 s{sT2}, s{sRS}, 8"); h.e(f"s_add_u32 s{sH2}, s{sH2}, s{sT2}"); h.e(f"s_add_u32 s{sH2}, s{sH2}, {M_ST}")
            stats_lane(h, vX)
        def st_loads(lo):
            o = []
            for i in range(lo, lo + 4):
                o.append([f"buffer_load_dwordx4 {v(TMP+4*i,4)}, v{vX}, s[{SW}:{SW+3}], s{sH2} offen offset:{(i&3)*1024} sc1"] +
                         ([f"s_add_u32 s{sH2}, s{sH2}, 4096"] if i == 3 else []))
            return o
        def st_red(h):
            h.e(f"s_lshl_b32 s{sH2}, s{sW4}, 8"); h.e(f"s_add_u32 s{sH2}, s{sH2}, {L_ST}")
            stats_reduce(h, TMP, 8, vX, f"s{sH2}")
        def cf_flag():
            l = a.new("cf")
            a.e(f"s_cmp_eq_u32 s{sLAY}, {5 if opt.get('dbgnocs') else 0}"); a.e(f"s_cbranch_scc1 {l}"); a.label(f"{l}_b")
            a.ool([f"{l}:", f"s_lshl_b32 s{sT}, s{sNT}, 4", f"s_add_u32 s{sT}, s{sT}, s{sSH}", f"s_lshl_b32 s{sT}, s{sT}, 3",
                   f"s_add_u32 s{sT}, s{sT}, s{sW4}", f"s_lshl_b32 s{sT}, s{sT}, 2", f"s_add_u32 s{sT}, s{sT}, {M_CF}",
                   f"v_mov_b32 v{TMP+40}, 0", f"v_mov_b32 v{TMP+41}, 1", "s_mov_b64 exec, 1",
                   f"buffer_store_dword v{TMP+41}, v{TMP+40}, s[{SW}:{SW+3}], s{sT} offen{SC}", "s_mov_b64 exec, -1", f"s_branch {l}_b"])
        for st in range(12):
            tags = [("D", st + 1)] + (["X"] if st == 11 else [])
            vm.wait(tags, "lgkmcnt(0)"); a.e("s_barrier")
            if st < 7: colsum_hook(st + 1)
            if st == 10: cf_flag()
            kw = {}
            if st == 7: kw = dict(fill=[[x] for x in lines(st_setup)], fill0=12)
            if st == 8: kw = dict(fill=st_loads(0), fill0=20, nvm=4)
            if st == 9: kw = dict(fill=st_loads(4), fill0=20, nvm=4)
            if st == 11: kw = dict(fill=[[x] for x in lines(st_red)])
            step(st, zero=(st == 0), track=True, **kw)
        a.e(f"s_mov_b32 s{sCnt}, 4")
        a.e(f"s_cmp_eq_u32 s{sLAY}, {5 if opt.get('dbgnocs') else 0}"); a.e(f"s_cselect_b32 s{sHK}, 6, 0")
        if opt.get("vw2", 1):
            a.e(f"s_lshr_b32 s{sT}, s{sW4}, 1"); a.e(f"s_lshl_b32 s{sT}, 8, s{sT}")
            a.e(f"s_cmp_eq_u32 s{sLAY}, 0"); a.e(f"s_cselect_b32 s{sT}, s{sT}, 0"); a.e(f"s_or_b32 s{sHK}, s{sHK}, s{sT}")
        a.label(f"{tag}_loop")
        for st in range(4):
            a.e(f"s_waitcnt vmcnt({(LA - 2) * n}) lgkmcnt(0)"); a.e("s_barrier")
            if st == 0:
                a.e(f"s_bitcmp1_b32 s{sHK}, s{sCnt}"); a.e(f"s_cbranch_scc1 {tag}_hook"); a.label(f"{tag}_hb")
            step(st)
        a.e(f"s_sub_u32 s{sCnt}, s{sCnt}, 1"); a.e(f"s_cmp_lg_u32 s{sCnt}, 0"); a.e(f"s_cbranch_scc1 {tag}_loop")
        def hooks(h):
            F = TMP + 40
            h.label(f"{tag}_hook")
            if opt.get("vw2", 1):
                h.e(f"s_cmp_lt_u32 s{sCnt}, 3"); h.e(f"s_cbranch_scc1 {tag}_h2")
                make_srd(h, 12, pW2, 3584 * 2048)
                h.e(f"s_lshl_b32 s{sT}, s2, 2"); h.e(f"s_add_u32 s{sT}, s{sT}, s{sW4}"); h.e(f"s_mul_i32 s{sT}, s{sT}, 7168")
                h.e(f"v_lshlrev_b32 v247, 7, v{vL}")
                h.e("s_mov_b32 exec_hi, 0x00ffffff")
                h.e(f"buffer_load_dword v248, v247, s[12:15], s{sT} offen")
                h.e("s_mov_b64 exec, -1")
                h.e(f"s_branch {tag}_hb")
                h.label(f"{tag}_h2")
            h.e(f"s_lshl_b32 s{sT}, s{sNT}, 9"); h.e(f"s_add_u32 s{sT}, s{sT}, {M_CF}")
            h.e(f"v_lshlrev_b32 v{vX}, 5, v{vI}")
            h.e(f"s_cmp_eq_u32 s{sCnt}, 1"); h.e(f"s_cbranch_scc1 {tag}_h1")
            h.e(f"buffer_load_dwordx4 {v(F,4)}, v{vX}, s[{SW}:{SW+3}], s{sT} offen sc1")
            h.e(f"s_branch {tag}_hb")
            h.label(f"{tag}_h1")
            h.e(f"v_and_b32 v{F}, v{F}, v{F+1}"); h.e(f"v_and_b32 v{F+2}, v{F+2}, v{F+3}"); h.e(f"v_and_b32 v{F}, v{F}, v{F+2}")
            h.e(f"v_cmp_ne_u32 vcc, 1, v{F}")
            h.e(f"s_cbranch_vccz {tag}_h1b")
            poll(h, sT, vX, F, 4, "0xffff", acquire=False)
            h.label(f"{tag}_h1b")
            h.e(f"s_and_b32 s{sT}, s{sWAVE}, 1"); h.e(f"s_mul_i32 s{sT}, s{sT}, {3584 * 4}")
            h.e(f"s_mul_i32 s{sT2}, s{sNT}, 896"); h.e(f"s_add_u32 s{sT}, s{sT}, s{sT2}")
            h.e(f"s_lshr_b32 s{sT2}, s{sW4}, 1"); h.e(f"s_mul_i32 s{sT2}, s{sT2}, 448"); h.e(f"s_add_u32 s{sT}, s{sT}, s{sT2}")
            h.e(f"s_add_u32 s{sT}, s{sT}, {M_CS}")
            h.e(f"v_and_b32 v{vX}, 31, v{vL}"); h.e(f"v_lshlrev_b32 v{vX}, 4, v{vX}")
            h.e(f"v_lshrrev_b32 v{vT0}, 5, v{vL}"); h.e(f"v_mul_u32_u24 v{vT0}, {8 * 28672}, v{vT0}"); h.e(f"v_add_u32 v{vX}, v{vT0}, v{vX}")
            h.e("s_mov_b32 exec_lo, 0x0fffffff"); h.e("s_mov_b32 exec_hi, 0x0fffffff")
            for i in range(8):
                h.e(f"buffer_load_dwordx4 {v(TMP+4*i,4)}, v{vX}, s[{SW}:{SW+3}], s{sT} offen sc1")
                h.e(f"s_add_u32 s{sT}, s{sT}, 28672")
            h.e("s_mov_b64 exec, -1")
            h.e(f"s_branch {tag}_hb")
        a.ool(lines(hooks))
        def cs_red(h):
            tree(h)
            for i in range(4): h.e(f"v_mov_b32 v{TMP+4+i}, v{TMP+i}")
            h.e("s_nop 1")
            for i in range(4): h.e(f"v_permlane32_swap_b32 v{TMP+i}, v{TMP+4+i}")
            for i in range(4): h.e(f"v_add_f32 v{TMP+i}, v{TMP+i}, v{TMP+4+i}")
        csl = [[x] for x in lines(cs_red)]
        csl.append([f"s_and_b32 s{sT}, s{sWAVE}, 1", f"s_mul_i32 s{sT}, s{sT}, 896", f"s_lshr_b32 s{sT2}, s{sW4}, 1",
                    f"s_mul_i32 s{sT2}, s{sT2}, 448", f"s_add_u32 s{sT}, s{sT}, s{sT2}", f"s_add_u32 s{sT}, s{sT}, {L_CS3}",
                    f"v_add_u32 v{vX}, s{sT}, v{vL16}", f"s_cmp_lg_u32 s{sLAY}, 0", f"s_cbranch_scc1 {tag}_ncs",
                    "s_mov_b64 exec, 0x0fffffff", f"ds_write_b128 v{vX}, {v(TMP,4)}", "s_mov_b64 exec, -1", f"{tag}_ncs:"])
    vY = 247
    def touch(k):
        o = [f"v_lshlrev_b32 v{vY}, 7, v{vL}", f"s_add_u32 s29, s{sWAVE}, {8*k}", f"s_lshl_b32 s30, s29, 12", f"s_add_u32 s30, s30, s{sH}",
             f"s_cmp_lt_u32 s29, s{sHK}", f"s_cselect_b32 s30, s30, 0x7f000000", "s_mov_b64 exec, 0xffffffff",
             f"buffer_load_dword v248, v{vY}, s[{SW}:{SW+3}], s30 offen sc1", "s_mov_b64 exec, -1"]
        return o
    a.e(f"s_sub_u32 s{sHK}, s{sNT}, s{sK4}"); a.e(f"s_and_b32 s{sHK}, s{sHK}, 7")
    a.e(f"s_cmp_lt_u32 s{sHK}, {opt.get('htouch', 4)}"); a.e(f"s_cselect_b32 s{sHK}, 14, 0")
    pf = []
    if cls:
        for st in range(res.CFG[3]['RW']): pf += res.res_w_issue(3, st)
    n300 = opt.get("g3pf300", 8); n30 = opt.get("g3pf30", 6); n31 = opt.get("g3pf31", 6)
    d28 = (LA == 3)
    if opt.get("noptH") or opt.get("tt", 0): ex = [[], []]
    elif opt.get("hsc1"):
        a.e(f"s_and_b32 s{sT}, s{sWAVE}, 6"); a.e(f"s_cmp_eq_u32 s{sT}, 2"); a.e(f"s_cselect_b32 s{sHK}, 14, 0")
        ex = [[], [(0.05, touch(1))] if cls == 0 else []]
    elif d28: ex = [[], [(0.05, touch(0)), (0.55, touch(1))] if cls == 0 else [(0.3, touch(0)), (0.9, touch(1))]]
    else: ex = [[(0.05, touch(0))], [(0.05, touch(1))]] if cls == 0 else [[(0.6, touch(0))], [(0.6, touch(1))]]
    a.e(f"s_waitcnt vmcnt({(LA - 2) * n}) lgkmcnt(0)"); a.e("s_barrier")
    step(28, dma=d28, extra=ex[0], fill=csl if cls else None)
    a.e(f"s_waitcnt vmcnt({n + len(ex[0])}) lgkmcnt(0)"); a.e("s_barrier")
    step(29, dma=False, extra=ex[1], fill=[[x] for x in lines(lambda h: res.res_w_setup(h, 3))] if cls else None)
    a.e(f"s_waitcnt vmcnt({len(ex[1]) + (0 if d28 else len(ex[0]))}) lgkmcnt(0)"); a.e("s_barrier")
    if opt.get("g3tp", 1): a.e(f"s_setprio {2 if cls == 0 else 1}")
    m = mfmas(30); sl = {}
    if cls == 0:
        spread([[x] for x in reads(31)], 0, 13, sl)
        sl.setdefault(20, []).extend(["s_waitcnt lgkmcnt(0)", "s_barrier"])
    else:
        sl[-1] = reads(31) + ["s_waitcnt lgkmcnt(0)"] + [x for gq in pf[:2] for x in gq] + ["s_barrier"] + [x for gq in pf[2:n300] for x in gq]
        spread(pf[n300:n300 + n30], 0, len(m) - 1, sl)
    a.es(place(m, sl))
    pf = pf[n300 + n30:]
    CS = WF; MR = XF
    a.e(f"s_and_b32 s{sT}, s{sWAVE}, 1"); a.e(f"s_lshl_b32 s{sT}, s{sT}, 9"); a.e(f"s_add_u32 s{sT}, s{sT}, {L_ST}")
    a.e(f"v_lshlrev_b32 v{vT0}, 3, v{vI}"); a.e(f"v_add_u32 v{vT0}, s{sT}, v{vT0}")
    a.e(f"s_lshl_b32 s{sT}, s{sC0}, 6"); a.e(f"s_add_u32 s{sT}, s{sT}, {L_CS3}")
    a.e(f"v_lshlrev_b32 v{vT1}, 4, v{vG}"); a.e(f"v_add_u32 v{vXa}, s{sT}, v{vT1}")
    if cls:
        a.e(f"s_lshr_b32 s{sT}, s{sW4}, 1"); a.e(f"s_add_u32 s{sT}, s{sT}, 10"); a.e(f"s_lshl_b32 s{sT}, s{sT}, 6"); a.e(f"s_add_u32 s{sT}, s{sT}, {L_CS3}")
        a.e(f"v_add_u32 v{vWb}, s{sT}, v{vT1}")
    er = [f"ds_read_b64 {v(MR+2*rt,2)}, v{vT0} offset:{128*rt}" for rt in range(4)]
    for mat in range(2):
        for t in range(NP):
            third = cls and t == 2
            er.append(f"ds_read_b128 {v(CS+(mat*NP+t)*4,4)}, v{vWb if third else vXa} offset:{mat*896 + (0 if third else 64*t)}")
    m = mfmas(31); sl = {}
    spread([[x] for x in er], 0, len(m) // 2, sl)
    spread(pf[:n31], 0, len(m) - 2, sl)
    a.es(place(m, sl))
    pf = pf[n31:]
    if opt.get("g3tp", 1) and cls == 0: a.e("s_setprio 0")
    tsc(a, opt, PH, 7)
    ts(a, opt, PH, 2)
    a.e(f"s_and_b32 s{sT}, s{sWAVE}, 1"); a.e(f"s_lshl_b32 s{sT}, s{sT}, 12"); a.e(f"s_add_u32 s{sH}, s{sH}, s{sT}")
    a.e(f"s_lshr_b32 s{sT}, s{sW4}, 1")
    if cls == 0:
        a.e(f"s_lshl_b32 s{sT}, s{sT}, 14"); a.e(f"s_add_u32 s{sH}, s{sH}, s{sT}"); a.e(f"s_add_u32 s{sH2}, s{sH}, 8192")
    else:
        a.e(f"s_lshl_b32 s{sT2}, s{sT}, 3"); a.e(f"s_add_u32 s{sH2}, s{sH}, s{sT2}"); a.e(f"s_add_u32 s{sH2}, s{sH2}, {5 * 8192}")
        a.e(f"s_lshl_b32 s{sT}, s{sT}, 14"); a.e(f"s_add_u32 s{sH}, s{sH}, s{sT}"); a.e(f"s_add_u32 s{sH}, s{sH}, {4 * 8192}")
    vLo, vLo2 = vWa, vWa + 1
    assert res.aslot(3, 1) == 0 and res.aslot(3, 0) == 7 * AS
    a.e(f"s_and_b32 s{sT}, s{sWAVE}, 1"); a.e(f"s_lshl_b32 s{sT}, s{sT}, 12")
    a.e(f"s_lshr_b32 s{sT2}, s{sW4}, 1")
    if cls == 0:
        a.e(f"s_lshl_b32 s{sT2}, s{sT2}, 14"); a.e(f"s_add_u32 s{sT}, s{sT}, s{sT2}")
        a.e(f"v_add_u32 v{vLo2}, s{sT}, v{vL16}")
        a.e(f"v_add_u16 v{vLo}, 0xe000, v{vLo2}")
    else:
        a.e(f"s_lshl_b32 s{sT3}, s{sT2}, 3"); a.e(f"s_add_u32 s{sT3}, s{sT3}, s{sT}"); a.e(f"s_add_u32 s{sT3}, s{sT3}, {4 * AS}")
        a.e(f"v_add_u32 v{vLo2}, s{sT3}, v{vL16}")
        a.e(f"s_lshl_b32 s{sT2}, s{sT2}, 14"); a.e(f"s_add_u32 s{sT}, s{sT}, s{sT2}"); a.e(f"s_add_u32 s{sT}, s{sT}, {3 * AS}")
        a.e(f"v_add_u32 v{vLo}, s{sT}, v{vL16}")
    a.e("s_waitcnt lgkmcnt(0)")
    B1 = WF + WFS
    NM, RL, I2 = B1, B1 + 8, B1 + 16
    a.e(f"s_mov_b32 s{sT}, 0xbfb8aa3b")
    for rt in range(4):
        a.e(f"v_mul_f32 v{I2+2*rt}, v{MR+2*rt+1}, v{MR+2*rt+1}")
        for d in range(2):
            a.e(f"v_sub_f32 v{NM+2*rt+d}, 0, v{MR+2*rt}")
            a.e(f"v_mul_f32 v{RL+2*rt+d}, s{sT}, v{MR+2*rt+1}")
    for rt in range(4):
        a.e(f"v_rcp_f32 v{I2+2*rt+1}, v{I2+2*rt}")
        a.e(f"v_rcp_f32 v{I2+2*rt}, v{I2+2*rt}")
    E = XF + 20; OUTS = [XF + 24, XF + 28]
    ep = []
    def pk(op, d, srcs):
        ep.append(f"{op} {v(d,2)}, " + ", ".join(v(r, 2) for kind, r in srcs))
    oi = 0
    for rt in range(4):
        t = 0
        while t < NP:
            pair = (t + 1 < NP)
            O = OUTS[oi]; oi ^= 1
            for tt in range(2 if pair else 1):
                cg = acc(0, t + tt, rt); cu = acc(1, t + tt, rt)
                sg = CS + (0 * NP + t + tt) * 4; su = CS + (1 * NP + t + tt) * 4
                for r in (0, 2): pk("v_pk_fma_f32", cg + r, [('b', NM + 2*rt), ('p', sg + r), ('p', cg + r)])
                for r in (0, 2): pk("v_pk_mul_f32", E + r, [('b', RL + 2*rt), ('p', cg + r)])
                for r in range(4): ep.append(f"v_exp_f32 v{E+r}, v{E+r}")
                for r in (0, 2): pk("v_pk_fma_f32", cu + r, [('b', NM + 2*rt), ('p', su + r), ('p', cu + r)])
                for r in (0, 2): pk("v_pk_fma_f32", E + r, [('p', E + r), ('b', I2 + 2*rt), ('b', I2 + 2*rt)])
                for r in range(4): ep.append(f"v_rcp_f32 v{E+r}, v{E+r}")
                for r in (0, 2): pk("v_pk_mul_f32", cg + r, [('p', cg + r), ('p', cu + r)])
                for r in (0, 2): pk("v_pk_mul_f32", cg + r, [('p', cg + r), ('p', E + r)])
                ep.append(f"v_cvt_pk_bf16_f32 v{O+2*tt}, v{cg}, v{cg+1}")
                ep.append(f"v_cvt_pk_bf16_f32 v{O+2*tt+1}, v{cg+2}, v{cg+3}")
            so = sH if t == 0 else sH2
            if pair: ep.append(f"buffer_store_dwordx4 {v(O,4)}, v{vL16}, s[{SW}:{SW+3}], s{so} offen offset:{rt*1024}" + (SC if opt.get("hsc1") else ""))
            else: ep.append(f"buffer_store_dwordx2 {v(O,2)}, v{vL16}, s[{SW}:{SW+3}], s{so} offen offset:{rt*1024}")
            ep.append(f"ds_write_b{128 if pair else 64} v{vLo if t == 0 else vLo2}, {v(O, 4 if pair else 2)} offset:{rt*1024}")
            t += 2 if pair else 1
    sl = {}
    spread(pf, 0, int(len(ep) * opt.get("g3pff", 0.6)), sl)
    a.es(place(ep, sl))
    ts(a, opt, PH, 3)
    if cls: signal(a, PH, XF, XF + 1); ts(a, opt, PH, 4)
```

```python
from common import *

RA = 8; AS = 8192; LW = 65536
CFG = {1: dict(NS=32, WS=4224, RW=22, NT=2, WROT=12, AROT=0, SKIP=(14, 15)), 3: dict(NS=56, WS=8448, RW=10, NT=4, WROT=5, AROT=7, SKIP=(0, 2, 27))}
def wslot(ph, st):
    c = CFG[ph]; return LW + ((st + c['WROT']) % c['RW']) * c['WS']
def aslot(ph, st): return ((st + CFG[ph]['AROT']) % RA) * AS

sWR = 12
sWo, sWlo, sWhi, sWm = 48, 49, 50, 51
sAo, sAlo, sAhi, sAm = 52, 53, 54, 55
sD4 = 50
vWp = 244
vPL = 240
vPO = 246


def res_w_setup(a, ph):
    c = CFG[ph]
    if ph == 1:
        make_srd(a, sWR, pWO, 1024 * 2048)
        a.e(f"v_lshrrev_b32 v{vT0}, 3, v{vL}")
        a.e(f"v_lshlrev_b32 v{vT0}, 13, v{vT0}")
        a.e(f"v_and_b32 v{vT1}, 7, v{vL}")
        a.e(f"v_lshl_add_u32 v{vT0}, v{vT1}, 4, v{vT0}")
        a.e(f"s_lshl_b32 s{sT}, s{sW4}, 11")
        a.e(f"v_add_u32 v{vWp}, s{sT}, v{vT0}")
        a.e(f"s_mul_i32 s{sWm}, s{sW4}, 1056")
        a.e(f"s_lshl_b32 s{sWlo}, s{sCI}, 7")
    else:
        make_srd(a, sWR, pW2, 3584 * 2048)
        a.e(f"v_lshlrev_b32 v{vT0}, 14, v{vG}")
        a.e(f"v_and_b32 v{vT1}, 8, v{vI}")
        a.e(f"v_lshl_add_u32 v{vT0}, v{vT1}, 7, v{vT0}")
        a.e(f"v_and_b32 v{vT1}, 7, v{vI}")
        a.e(f"v_lshl_add_u32 v{vT0}, v{vT1}, 4, v{vT0}")
        a.e(f"s_lshl_b32 s{sT}, s{sW4}, 12")
        a.e(f"v_add_u32 v{vWp}, s{sT}, v{vT0}")
        a.e(f"v_add_u32 v{vWp+1}, 2048, v{vWp}")
        a.e(f"s_mul_i32 s{sWm}, s{sW4}, 2112")
        a.e(f"s_lshr_b32 s{sT}, s{sNT}, 3")
        a.e(f"s_mul_i32 s{sWlo}, s{sT}, {56 * 65536}")
        a.e(f"s_lshl_b32 s{sT2}, s{sN8}, 7")
        a.e(f"s_add_u32 s{sWlo}, s{sWlo}, s{sT2}")
        a.e(f"s_sub_u32 s{sD4}, s{sNT}, s{sK4}"); a.e(f"s_and_b32 s{sD4}, s{sD4}, 7")


def chunk_base(pos, dst, lo, mul):
    if pos == 0: o = [f"s_and_b32 s{dst}, s{sNT}, 7"]
    else: o = [f"s_cmp_le_u32 s{sD4}, {pos - 1}", f"s_addc_u32 s{dst}, s{sK4}, {pos - 1}", f"s_and_b32 s{dst}, s{dst}, 7"]
    return o + [f"s_mul_i32 s{dst}, s{dst}, {mul}", f"s_add_u32 s{dst}, s{dst}, s{lo}"]


def unit_base(i, dst, lo, sh):
    return [f"s_add_u32 s{dst}, s{sK4}, {i}", f"s_and_b32 s{dst}, s{dst}, 7", f"s_and_b32 s{sT3}, s{sNT}, 8"] + \
           ([f"s_xor_b32 s{sT3}, s{sT3}, 8"] if i >= 8 else []) + \
           [f"s_or_b32 s{dst}, s{dst}, s{sT3}", f"s_lshl_b32 s{dst}, s{dst}, {sh}", f"s_add_u32 s{dst}, s{dst}, s{lo}"]


def res_w_issue(ph, st):
    c = CFG[ph]; g = []
    for i in range(c['NT'] // 2):
        g.append([f"s_add_u32 m0, s{sWm}, {wslot(ph, st) + i * 1056}", "s_nop 0",
                  f"buffer_load_dwordx4 v{vWp+i}, s[{sWR}:{sWR+3}], s{sWo} offen lds"])
    g[-1] += [f"s_add_u32 s{sWo}, s{sWo}, 65536"]
    if ph == 1:
        if st % 2 == 0: g[0] = unit_base(st // 2, sWo, sWlo, 17) + g[0]
    elif st % 7 == 0: g[0] = chunk_base(st // 7, sWo, sWlo, 7 * 65536) + g[0]
    return g


def res_nxt(a, ph, vm, n):
    def mk(st):
        def f():
            for g in res_w_issue(ph, st):
                a.es(g); vm.op()
        return f
    return [(wslot(ph, st), wslot(ph, st) + CFG[ph]['WS'], mk(st)) for st in range(n)]


def h_base(a, dst):
    a.e(f"s_lshl_b32 s{dst}, s{sMT}, 1"); a.e(f"s_add_u32 s{dst}, s{dst}, s{sHF}"); a.e(f"s_mul_i32 s{dst}, s{dst}, {56 * 8192}")
    a.e(f"s_lshl_b32 s{sT3}, s{sLB}, 24"); a.e(f"s_add_u32 s{dst}, s{dst}, s{sT3}"); a.e(f"s_add_u32 s{dst}, s{dst}, {WS_H}")


def res_load(a, opt, ph, prefetched, nxt_setup, nxt_items, nxtcap):
    c = CFG[ph]; NS = c['NS']
    vm = VM(a)
    nxt_setup()
    if ph == 1:
        a.e(f"s_lshl_b32 s{sAlo}, s{sLAY}, 22")
        a.e(f"s_lshl_b32 s{sT}, s{sMT}, 18")
        a.e(f"s_add_u32 s{sAlo}, s{sAlo}, s{sT}")
        a.e(f"s_add_u32 s{sAlo}, s{sAlo}, {WS_O}")
    else:
        h_base(a, sAlo)
    a.e(f"s_lshl_b32 s{sAm}, s{sW4}, 11")
    a.e(f"s_add_u32 s{sAlo}, s{sAlo}, s{sAm}")
    sFo = 56
    flag_off(a, sFo, ph - 1)
    if ph == 1:
        a.e(f"v_lshlrev_b32 v{vPO}, 5, v{vL}")
        a.e(f"s_lshl_b32 s{sEXS}, 1, s{sCI}"); a.e(f"s_or_b32 s{sEXS}, s{sEXS}, 0x5555"); a.e(f"s_mov_b32 s{sEXS+1}, 0")
        a.e(f"s_xor_b32 s{sT}, s{sCI}, 1"); a.e(f"s_or_b32 s{sT}, s{sT}, s{sW4}"); a.e(f"s_cselect_b32 s{sEXS}, s{sEXS}, 0xffff")
        mask = f"s[{sEXS}:{sEXS+1}]"
        a.e(f"s_lshl_b32 s46, s{sLAY}, 12"); a.e(f"s_add_u32 s46, s46, {M_RF + 3 * 4096}")
        a.e(f"s_xor_b32 s47, s{sMT}, 2"); a.e("s_lshl_b32 s47, s47, 8"); a.e("s_add_u32 s47, s47, s46"); a.e("s_add_u32 s47, s47, 128")
    else:
        a.e(f"v_lshlrev_b32 v{vPO}, 4, v{vL}")
        a.e(f"s_lshl_b32 s{sT}, s{sHF}, 1"); a.e(f"s_lshl_b32 s{sEXS}, 0x33333333, s{sT}"); a.e(f"s_mov_b32 s{sEXS+1}, 0")
        mask = f"s[{sEXS}:{sEXS+1}]"
    def do_poll():
        ts(a, opt, ph, 0)
        poll(a, sFo, vPO, vPL, 4, mask); vm.drain()
        ts(a, opt, ph, 1)
    if ph == 1:
        do_poll()
        relay(a, "s46", vPL + 2, vPL + 3)

    def issW(st):
        for g in res_w_issue(ph, st):
            a.es(g); vm.op(("W", st))
    def issA(st):
        if ph == 3 and st % 7 == 0: a.es(chunk_base(st // 7, sAo, sAlo, 7 * 8192))
        if ph == 1 and st == 16: rcheck()
        if ph == 1 and st % 2 == 0: a.es(unit_base(st // 2, sAo, sAlo, 14))
        a.e(f"s_add_u32 m0, s{sAm}, {aslot(ph, st)}")
        a.e("s_nop 0")
        for i in range(2):
            a.e(f"buffer_load_dwordx4 v{vL16}, s[{SW}:{SW+3}], s{sAo} offen offset:{i*1024} sc1 lds"); vm.op(("A", st))
        a.e(f"s_add_u32 s{sAo}, s{sAo}, 8192")
        if ph == 1 and st == opt.get("g2rq", 12): rreq()
    def rreq():
        a.e(f"v_mov_b32 v{vPO}, 0")
        a.e(f"buffer_load_dword v{vPL}, v{vPO}, s[{SW}:{SW+3}], s47 offen sc1"); vm.op("R")
    def rcheck():
        l = a.new("rc")
        vm.wait("R")
        a.e(f"v_cmp_ne_u32 vcc, 1, v{vPL}")
        a.e(f"s_or_b32 s{sT}, vcc_lo, s{sSLOW}")
        a.e(f"s_cbranch_scc1 {l}"); a.label(f"{l}_b")
        h = Asm(); h.uid = a.uid + 100
        h.label(l); poll(h, 47, vPO, vPL, 1, "1"); h.e(f"s_branch {l}_b"); h.flush_tail(); a.uid = h.uid
        a.ool([x.strip() for x in h.L])
    W = Stream("W", NS, c['RW'], issW, lambda u: (wslot(ph, u), wslot(ph, u) + c['WS']), issued=prefetched)
    A = Stream("A", NS, RA, issA, lambda u: (aslot(ph, u), aslot(ph, u) + AS), issued=0 if ph == 1 else 7)
    def touchX():
        a.e(f"s_lshr_b32 s{sT2}, s{sW4}, 1")
        x4_off(a, sT, sT2, 1)
        a.e(f"s_and_b32 s{sT2}, s{sW4}, 1"); a.e(f"s_lshl_b32 s{sT2}, s{sT2}, 13"); a.e(f"s_add_u32 s{sT}, s{sT}, s{sT2}")
        a.e(f"v_lshlrev_b32 v{vT0}, 7, v{vL}")
        a.e("s_mov_b64 exec, 0xffffffff")
        a.e(f"buffer_load_dword v{vPL+1}, v{vT0}, s[{SW}:{SW+3}], s{sT} offen sc1"); vm.op()
        a.e("s_mov_b64 exec, -1")
    ev0 = barrier_events(NS, deep=(ph == 1)); ev = []
    for e in ev0:
        if e[0] != "Bm1" and int(e[0][1:]) in c['SKIP']: ev[-1] = (ev[-1][0], e[1], ev[-1][2])
        else: ev.append(e)
    ev.append(("BE", NS - 1, NS - 1))
    hooks = {}; pre_hooks = {}
    if ph == 1:
        pre = ["A"] * 4
        laA = opt.get("g2la", 4)
        la = lambda n, idx: laA if n == "A" else 14
        cap = lambda idx: 3
    else:
        pre = []
        l4 = opt.get("g4la", 3)
        la = lambda n, idx: (0 if idx == 0 else (opt.get("g4l1", 2) if idx == 1 else l4))
        cap = lambda idx: opt.get("g4c1", 4) if idx == 1 else opt.get("g4cap", 4) + (1 if idx < 8 else 0)
        pre_hooks["B1"] = do_poll
        ah = opt.get("g4as", 6)
        if ah:
            a.e("s_lshr_b32 s40, s2, 3"); a.e("s_lshl_b32 s40, s40, 2"); a.e(f"s_add_u32 s40, s40, s{sW4}")
            a.e("s_and_b32 s41, s40, 31"); a.e("s_lshl_b32 s41, s41, 11")
            a.e("s_lshr_b32 s46, s40, 5"); a.e("s_and_b32 s46, s46, 1")
            a.e("s_lshr_b32 s40, s40, 6"); a.e("s_lshl_b32 s40, s40, 10"); a.e("s_add_u32 s40, s40, s41")
            a.e(f"s_lshr_b32 s41, s{sNT}, 3"); a.e(f"s_mul_i32 s41, s41, {56 * 65536}"); a.e("s_add_u32 s40, s40, s41")
            a.e(f"s_add_u32 s40, s{pW2}, s40"); a.e(f"s_addc_u32 s41, s{pW2+1}, 0")
            a.e(f"s_mul_i32 s47, s{sK4}, 7"); a.e("s_add_u32 s46, s46, s47")
            def go(u):
                a.e(f"s_add_u32 s42, s46, {2 * u}"); a.e("s_cmp_ge_u32 s42, 56"); a.e("s_cselect_b32 s47, 56, 0"); a.e("s_sub_u32 s42, s42, s47")
                a.e("s_lshl_b32 s42, s42, 16")
                a.e("s_add_u32 s44, s40, s42"); a.e("s_addc_u32 s45, s41, 0")
                for o in (384, 448): a.e(f"s_load_dword s43, s[44:45], {o}")
            done = 5
            for e in ev[:-1]:
                p = -1 if e[0] == "Bm1" else int(e[0][1:])
                us = list(range(done, min(p + ah + 1, 28))); done = max(done, min(p + ah + 1, 28))
                if us:
                    h0 = pre_hooks.get(e[0])
                    pre_hooks[e[0]] = (lambda us=us, h0=h0: ([go(u) for u in us], h0() if h0 else None))
    log = []
    n = run_loader(a, vm, ev, [A, W], pre, la, cap, hooks, None, nxt_items(vm), nxtcap, log, tl=opt.get('tl') == f'g{ph+1}',
                   lgk={"Bm1"}, pre_hooks=pre_hooks)
    if opt.get("log"): print(ph, log)
    ts(a, opt, ph, 2)
    return n


def xbuf(a, dst, which):
    if which == 1: a.e(f"s_add_u32 s{dst}, s{dst}, {WS_X + 4 * MB}")
    else:
        a.e(f"s_lshl_b32 s{sT3}, s{sLAY}, 23"); a.e(f"s_add_u32 s{dst}, s{dst}, s{sT3}")
    assert WS_X == 0


def x4_off(a, dst, s_wc, which):
    a.e(f"s_lshl_b32 s{s_wc}, s{s_wc}, 3"); a.e(f"s_add_u32 s{s_wc}, s{s_wc}, s{sN8}")
    a.e(f"s_lshl_b32 s{dst}, s{sMT}, 4"); a.e(f"s_add_u32 s{dst}, s{dst}, s{s_wc}")
    a.e(f"s_lshl_b32 s{dst}, s{dst}, 2"); a.e(f"s_add_u32 s{dst}, s{dst}, s{sHF}"); a.e(f"s_lshl_b32 s{dst}, s{dst}, 12")
    if which is not None: xbuf(a, dst, which)


def res_cons(a, opt, ph, prev_signal=None):
    nxo = 4
    c = CFG[ph]; NS = c['NS']; NT = c['NT']; RW = c['RW']; WS_ = c['WS']
    FB = 32 if ph == 1 else 64; FS = 16 + 4 * NT
    XO = 128
    XU = 144
    RC = 176
    E = 208
    vA, vW0, vWc, vRM, vSO = 240, 241, 242, 243, 239
    sSl, sCnt, sXo, sXn, sP, sF, sSt, sJ = 16, 17, 18, 20, 22, 23, 24, 25
    sIO = 8
    def acc(t, r): return (r * NT + t) * 4
    def xf(b, rt, sub=0): return FB + (b * (2 if ph == 1 else 1) + sub) * FS + rt * 4
    def wf(b, t, sub=0): return FB + (b * (2 if ph == 1 else 1) + sub) * FS + 16 + t * 4
    def uoff(u, s0): return (s0, u * 1024) if ph == 1 else (s0 + (u & 1), (u >> 1) * 1024)
    tag = f"r{ph}"
    a.e(f"s_lshr_b32 s{sT}, s{sWAVE}, 1"); a.e(f"s_lshl_b32 s{sT}, s{sT}, {12 if ph == 1 else 11}")
    a0 = aslot(ph, 0) - (0 if ph == 1 else AS); w0 = wslot(ph, 0) - LW - (0 if ph == 1 else WS_)
    assert a0 % (2 * AS) == 0 and w0 % (2 * WS_) == 0 and a0 >= 0 and w0 >= 0
    if a0: a.e(f"s_add_u32 s{sT}, s{sT}, {a0}")
    a.e(f"v_add_u32 v{vA}, s{sT}, v{vL16}")
    a.e(f"v_lshrrev_b32 v{vT0}, 2, v{vI}")
    if ph == 1:
        a.e(f"v_mul_u32_u24 v{vT0}, 1056, v{vT0}")
        a.e(f"v_lshl_add_u32 v{vT0}, v{vG}, 7, v{vT0}")
        aoff = [0, 1024, 2048, 3072]
    else:
        a.e(f"v_and_b32 v{vT1}, 1, v{vG}")
        a.e(f"v_lshl_add_u32 v{vT0}, v{vT1}, 2, v{vT0}")
        a.e(f"v_mul_u32_u24 v{vT0}, 1056, v{vT0}")
        a.e(f"v_lshrrev_b32 v{vT1}, 1, v{vG}")
        a.e(f"v_lshl_add_u32 v{vT0}, v{vT1}, 8, v{vT0}")
        aoff = [0, 1024, 4096, 5120]
    a.e(f"v_and_b32 v{vT1}, 3, v{vI}")
    a.e(f"v_lshl_add_u32 v{vT0}, v{vT1}, 3, v{vT0}")
    a.e(f"s_and_b32 s{sT}, s{sWAVE}, 1"); a.e(f"s_lshl_b32 s{sT}, s{sT}, {6 if ph == 1 else 7}"); a.e(f"s_add_u32 s{sT}, s{sT}, {LW}")
    a.e(f"v_add_u32 v{vW0}, s{sT}, v{vT0}")
    a.e(f"s_mov_b32 s{sSl}, {w0}")
    a.e(f"v_add_u32 v{vWc}, s{sSl}, v{vW0}")
    if ph == 1:
        a.e(f"s_mov_b32 s{sJ}, s{sCI}")
        a.e(f"s_lshl_b32 s{sXo}, s{sMT}, 4"); a.e(f"s_add_u32 s{sXo}, s{sXo}, s{sCI}"); a.e(f"s_lshl_b32 s{sXo}, s{sXo}, 14")
        a.e(f"s_and_b32 s{sT}, s{sWAVE}, 1"); a.e(f"s_lshl_b32 s{sT}, s{sT}, 13"); a.e(f"s_add_u32 s{sXo}, s{sXo}, s{sT}")
        a.e(f"s_lshr_b32 s{sT}, s{sWAVE}, 1"); a.e(f"s_lshl_b32 s{sT}, s{sT}, 12"); a.e(f"s_add_u32 s{sXo}, s{sXo}, s{sT}")
        a.e(f"s_mov_b32 s{sXn}, s{sXo}"); xbuf(a, sXn, 'lay'); xbuf(a, sXo, 1)
    else:
        a.e(f"s_and_b32 s{sJ}, s{sWAVE}, 1")
        x4_off(a, sXo, sJ, None)
        a.e(f"s_lshr_b32 s{sT}, s{sWAVE}, 1"); a.e(f"s_lshl_b32 s{sT}, s{sT}, 11"); a.e(f"s_add_u32 s{sXo}, s{sXo}, s{sT}")
        a.e(f"s_mov_b32 s{sXn}, s{sXo}"); xbuf(a, sXn, 1); xbuf(a, sXo, 'lay')
        a.e(f"s_add_u32 s{sXo+1}, s{sXo}, 8192"); a.e(f"s_add_u32 s{sXn+1}, s{sXn}, 8192")
    def rowmajor():
        if ph == 1:
            a.e(f"s_lshl_b32 s{sT}, s{sMT}, 1"); a.e(f"s_lshr_b32 s{sT2}, s{sWAVE}, 1"); a.e(f"s_add_u32 s{sT}, s{sT}, s{sT2}"); a.e(f"s_lshl_b32 s{sT}, s{sT}, 17")
            a.e(f"s_and_b32 s{sT2}, s{sWAVE}, 1"); a.e(f"s_lshl_b32 s{sT2}, s{sT2}, 6"); a.e(f"s_add_u32 s{sT}, s{sT}, s{sT2}")
        else:
            a.e(f"s_lshl_b32 s{sT}, s{sMT}, 1"); a.e(f"s_add_u32 s{sT}, s{sT}, s{sHF}"); a.e(f"s_lshl_b32 s{sT}, s{sT}, 1")
            a.e(f"s_lshr_b32 s{sT2}, s{sWAVE}, 1"); a.e(f"s_add_u32 s{sT}, s{sT}, s{sT2}"); a.e(f"s_lshl_b32 s{sT}, s{sT}, 16")
        a.e(f"s_lshl_b32 s{sT2}, s{sJ}, 7"); a.e(f"s_add_u32 s{sT}, s{sT}, s{sT2}")
        a.e(f"v_lshlrev_b32 v{vRM}, 11, v{vI}")
        a.e(f"v_add_u32 v{vRM}, s{sT}, v{vRM}")
    if ph == 1:
        l = a.new("xo")
        a.e(f"s_cmp_lg_u32 s{sLAY}, 0"); a.e(f"s_cbranch_scc1 {l}_f")
        make_srd(a, sIO, pAX, 4 * MB)
        rowmajor()
        a.e(f"v_lshl_add_u32 v{vRM}, v{vG}, 3, v{vRM}")
        for rt in range(4):
            a.e(f"s_mov_b32 s{sT}, {rt * 32768}")
            a.e(f"buffer_load_dwordx2 {v(XO+4*rt,2)}, v{vRM}, s[{sIO}:{sIO+3}], s{sT} offen")
            a.e(f"buffer_load_dwordx2 {v(XO+4*rt+2,2)}, v{vRM}, s[{sIO}:{sIO+3}], s{sT} offen offset:32")
        a.e(f"s_branch {l}_d")
        a.label(f"{l}_f")
    for u in range(4):
        so, im = uoff(u, sXo)
        a.e(f"buffer_load_dwordx4 {v(XO+4*u,4)}, v{vL16}, s[{SW}:{SW+3}], s{so} offen offset:{im} sc1")
    if ph == 1: a.label(f"{l}_d")
    a.e(f"s_lshl_b32 s{sSt}, s{sMT}, 4"); a.e(f"s_add_u32 s{sSt}, s{sSt}, s{sJ}"); a.e(f"s_lshl_b32 s{sSt}, s{sSt}, 11")
    if ph == 1:
        a.e(f"s_lshl_b32 s{sT2}, s{sLAY}, 20"); a.e(f"s_add_u32 s{sSt}, s{sSt}, s{sT2}"); a.e(f"s_add_u32 s{sSt}, s{sSt}, {M_ST}")
        a.e(f"s_lshr_b32 s{sT2}, s{sWAVE}, 1"); a.e(f"s_lshl_b32 s{sT2}, s{sT2}, 9"); a.e(f"s_add_u32 s{sSt}, s{sSt}, s{sT2}")
        a.e(f"s_and_b32 s{sT2}, s{sWAVE}, 1"); a.e(f"s_lshl_b32 s{sT2}, s{sT2}, 10"); a.e(f"s_add_u32 s{sSt}, s{sSt}, s{sT2}")
        a.e(f"v_lshlrev_b32 v{vSO}, 3, v{vL}")
    else:
        a.e(f"s_add_u32 s{sSt}, s{sSt}, {M_ST + 524288}")
        a.e(f"s_lshl_b32 s{sT2}, s{sHF}, 9"); a.e(f"s_add_u32 s{sSt}, s{sSt}, s{sT2}")
        a.e(f"s_lshr_b32 s{sT2}, s{sWAVE}, 1"); a.e(f"s_lshl_b32 s{sT2}, s{sT2}, 8"); a.e(f"s_add_u32 s{sSt}, s{sSt}, s{sT2}")
        a.e(f"v_lshrrev_b32 v{vT0}, 1, v{vG}"); a.e(f"v_lshl_add_u32 v{vT0}, v{vT0}, 4, v{vI}"); a.e(f"v_lshlrev_b32 v{vT0}, 3, v{vT0}")
        a.e(f"v_and_b32 v{vT1}, 1, v{vG}"); a.e(f"v_lshl_add_u32 v{vSO}, v{vT1}, 10, v{vT0}")
        a.e(f"s_lshl_b32 s{sF}, s{sLAY}, 8"); a.e(f"s_add_u32 s{sF}, s{sF}, s2"); a.e(f"s_lshl_b32 s{sF}, s{sF}, 2"); a.e(f"s_add_u32 s{sF}, s{sF}, s{sWAVE}")
        a.e(f"s_lshl_b32 s{sP}, s{sF}, 13"); a.e(f"s_add_u32 s{sP}, s{sP}, {WS_P}")
        a.e(f"s_lshl_b32 s{sF}, s{sF}, 7"); a.e(f"s_add_u32 s{sF}, s{sF}, {M_XF}")

    def rd_list(b, sub, ao, wo):
        g = []
        for i in range(4):
            k = i if ph == 1 else (i + 2) % 4
            g.append(f"ds_read_b128 {v(xf(b,k,sub),4)}, v{vA} offset:{ao + aoff[k]}")
            if i < NT:
                g.append(f"ds_read_b64_tr_b16 {v(wf(b,i,sub),2)}, v{vWc} offset:{wo + 32*i}")
                g.append(f"ds_read_b64_tr_b16 {v(wf(b,i,sub)+2,2)}, v{vWc} offset:{wo + 32*i + 512}")
        return g
    adv = [[f"v_add_u16 v{vA}, 0x4000, v{vA}"], [f"s_add_u32 s{sSl}, s{sSl}, {2*WS_}", f"s_cmp_eq_u32 s{sSl}, {RW * WS_}"],
           [f"s_cselect_b32 s{sSl}, 0, s{sSl}"], [f"v_add_u32 v{vWc}, s{sSl}, v{vW0}"]]
    if ph == 1: order = [(t, r) for t in range(2) for r in range(4)]
    else: order = [(t, r) for r in (2, 3, 0, 1) for t in range(4)]
    def mf(b, sub): return [mfma(acc(t, r), wf(b, t, sub), xf(b, r, sub)) for t, r in order]
    rdend = opt.get(f"g{ph+1}rd", 9 if ph == 3 else 10)
    def seg(m, rd, post):
        sl = {}
        spread(rd, 0, rdend, sl)
        spread(post, rdend + 1, 14, sl)
        sl.setdefault(15, []).append("s_waitcnt lgkmcnt(0)")
        a.es(place(m, sl))
    for i in range(4): a.e(f"v_mov_b32 v{E+i}, 0")
    a.e("s_nop 1")
    for i in range(0, 16 * NT, 16): a.e(f"v_mfma_f32_32x32x16_bf16 {v(i,16)}, {v(E,4)}, {v(E,4)}, 0")
    a.e(f"s_mov_b32 s{sCnt}, {NS // 4}")
    if prev_signal: prev_signal(nxo)
    ts(a, opt, ph, 0)
    a.e("s_waitcnt lgkmcnt(0)")
    a.e("s_barrier")
    ts(a, opt, ph, 1)
    if ph == 1: a.es(rd_list(0, 0, 0, 0) + rd_list(0, 1, AS, WS_))
    else: a.es(rd_list(0, 0, AS, WS_))
    for g in adv: a.es(g)
    a.e("s_waitcnt lgkmcnt(0)")
    tsc(a, opt, ph, 6)
    a.label(f"{tag}_loop")
    for per in range(2):
        mk = sum(1 << (NS // 4 - p // 2) for p in c['SKIP'] if p % 2 == per)
        if mk:
            a.e(f"s_bitcmp1_b32 {mk}, s{sCnt}"); a.e(f"s_cbranch_scc1 {tag}_nb{per}")
        a.e("s_barrier")
        a.label(f"{tag}_nb{per}")
        cnt = [[f"s_sub_u32 s{sCnt}, s{sCnt}, 1", f"s_cmp_lg_u32 s{sCnt}, 0"]] if per == 1 else []
        if ph == 1:
            seg(mf(per, 0) + mf(per, 1), rd_list(1 - per, 0, 0, 0) + rd_list(1 - per, 1, AS, WS_), adv + cnt)
        else:
            seg(mf(0, 0), rd_list(1, 0, 0, 0), [])
            seg(mf(1, 0), rd_list(0, 0, AS, WS_), adv + cnt)
    a.e(f"s_cbranch_scc1 {tag}_loop")
    tsc(a, opt, ph, 7)
    ts(a, opt, ph, 2)
    def unpack_x():
        a.e("s_waitcnt vmcnt(0)" if ph == 1 else f"s_waitcnt vmcnt({4 if opt.get('xb16', 1) else 8})")
        for i in range(16):
            a.e(f"v_lshlrev_b32 v{XU+2*i}, 16, v{XO+i}")
            a.e(f"v_and_b32 v{XU+2*i+1}, 0xffff0000, v{XO+i}")
    if ph == 3:
        NX = 4 if opt.get("xb16", 1) else 8
        a.e(f"s_add_u32 s{sT2}, s{sP}, 4096")
        for i in range(NX):
            so = sP if i < 4 else sT2
            if NX == 4:
                for k in range(4): a.e(f"v_cvt_pk_bf16_f32 v{32+8*i+k}, v{32+8*i+2*k}, v{32+8*i+2*k+1}")
            a.e(f"buffer_store_dwordx4 {v(32+(32//NX)*i,4)}, v{vL16}, s[{SW}:{SW+3}], s{so} offen offset:{(i%4)*1024}{SC}")
        bepos = opt.get("g4be", 0)
        if bepos == 0: a.e("s_barrier")
        unpack_x()
        store_flag_remote(a, sF, E, E + 1)
        if bepos == 1: a.e("s_barrier")
        ts(a, opt, ph, 3)
        a.e(f"s_xor_b32 s{sF}, s{sF}, 512")
        a.e(f"s_xor_b32 s{sP}, s{sP}, {4 * 8192}")
        poll(a, sF, E, E + 2, 1, "1", acquire=False)
        a.e(f"s_add_u32 s{sT2}, s{sP}, 4096")
        for i in range(NX):
            so = sP if i < 4 else sT2
            a.e(f"buffer_load_dwordx4 {v(RC+4*i if NX == 8 else 32+4*i,4)}, v{vL16}, s[{SW}:{SW+3}], s{so} offen offset:{(i%4)*1024} sc1")
        if bepos == 2: a.e("s_barrier")
        ts(a, opt, ph, 4)
    else:
        a.e("s_barrier")
        a.e("s_nop 3")
        unpack_x()
    O = 64
    S = 80
    vOne = 88
    Y = E
    a.e(f"v_mov_b32 v{vOne}, 0x{ONES:08x}")
    def fin(u):
        cc = 8 * u
        if ph == 3:
            if NX == 8: a.e(f"s_waitcnt vmcnt({6 - u})")
            else:
                a.e("s_waitcnt vmcnt(3)")
                for k in range(4):
                    a.e(f"v_lshlrev_b32 v{RC+cc+2*k}, 16, v{32+4*u+k}"); a.e(f"v_and_b32 v{RC+cc+2*k+1}, 0xffff0000, v{32+4*u+k}")
            for r in (0, 2, 4, 6): a.e(f"v_pk_add_f32 {v(cc+r,2)}, {v(cc+r,2)}, {v(RC+cc+r,2)}")
        for i in range(4): a.e(f"v_cvt_pk_bf16_f32 v{Y+i}, v{cc+2*i}, v{cc+2*i+1}")
        for i in range(4):
            a.e(f"v_lshlrev_b32 v{Y+4+2*i}, 16, v{Y+i}")
            a.e(f"v_and_b32 v{Y+5+2*i}, 0xffff0000, v{Y+i}")
        for i in range(4): a.e(f"v_pk_add_f32 {v(Y+4+2*i,2)}, {v(Y+4+2*i,2)}, {v(XU+8*u+2*i,2)}")
        for i in range(4): a.e(f"v_cvt_pk_bf16_f32 v{O+4*u+i}, v{Y+4+2*i}, v{Y+5+2*i}")
    lo = a.new("fo")
    if ph == 3:
        a.e(f"s_cmp_lg_u32 s{sLAY}, 0"); a.e(f"s_cbranch_scc1 {lo}_out")
    for u in range(4):
        fin(u)
        so, im = uoff(u, sXn)
        a.e(f"buffer_store_dwordx4 {v(O+4*u,4)}, v{vL16}, s[{SW}:{SW+3}], s{so} offen offset:{im}{SC}")
    if ph == 3:
        lh = a.new("hl")
        a.e(f"s_lshr_b32 s{sT}, s{sWAVE}, 1"); a.e(f"s_and_b32 s{sT}, s{sT}, s{sHF}"); a.e(f"s_cbranch_scc0 {lh}")
        a.e(f"v_cmp_eq_u32 vcc, 0, v{vI}")
        a.e(f"s_lshl_b32 s{sT}, s{sMT}, 4"); a.e(f"s_add_u32 s{sT}, s{sT}, s{sJ}"); a.e(f"s_lshl_b32 s{sT}, s{sT}, 11")
        a.e(f"s_add_u32 s{sT}, s{sT}, {M_HALO}")
        for i in range(8): a.e(f"v_cndmask_b32 v{E+4+i}, v{O+8+i}, v{vOne}, vcc")
        for b in range(2): a.e(f"buffer_store_dwordx4 {v(E+4+4*b,4)}, v{vL16}, s[{SW}:{SW+3}], s{sT} offen offset:{b*1024}{SC}")
        a.label(lh)
    for u in range(4):
        for i in range(4):
            a.e(f"v_dot2_f32_bf16 v{S+u}, v{O+4*u+i}, v{vOne}, " + ("0" if i == 0 else f"v{S+u}"))
            a.e(f"v_dot2_f32_bf16 v{S+4+u}, v{O+4*u+i}, v{O+4*u+i}, " + ("0" if i == 0 else f"v{S+4+u}"))
    a.e("s_nop 2")
    for b in (S, S + 4):
        a.e(f"v_permlane16_swap_b32 v{b}, v{b+1}")
        a.e(f"v_permlane16_swap_b32 v{b+2}, v{b+3}")
    for b in (S, S + 4):
        a.e(f"v_add_f32 v{b}, v{b}, v{b+1}")
        a.e(f"v_add_f32 v{b+2}, v{b+2}, v{b+3}")
    a.e("s_nop 1")
    for b in (S, S + 4): a.e(f"v_permlane32_swap_b32 v{b}, v{b+2}")
    a.e(f"v_add_f32 v{S}, v{S}, v{S+2}")
    a.e(f"v_add_f32 v{S+1}, v{S+4}, v{S+6}")
    a.e(f"buffer_store_dwordx2 {v(S,2)}, v{vSO}, s[{SW}:{SW+3}], s{sSt} offen{SC}")
    signal(a, ph, E, E + 1)
    ts(a, opt, ph, 5)
    if ph == 1: return
    a.e(f"s_branch {lo}_end")
    a.label(f"{lo}_out")
    make_srd(a, sIO, pOUT, 4 * MB)
    rowmajor()
    a.e(f"v_and_b32 v{vT0}, 1, v{vG}"); a.e(f"v_lshl_add_u32 v{vRM}, v{vT0}, 5, v{vRM}")
    a.e(f"v_lshrrev_b32 v{vT0}, 1, v{vG}"); a.e(f"v_lshl_add_u32 v{vRM}, v{vT0}, 4, v{vRM}")
    for u in range(4):
        fin(u)
        a.e(f"s_mov_b32 s{sT}, {(u >> 1) * 32768}")
        a.e("s_nop 0")
        a.e(f"v_permlane16_swap_b32 v{O+4*u}, v{O+4*u+2}")
        a.e(f"v_permlane16_swap_b32 v{O+4*u+1}, v{O+4*u+3}")
        a.e(f"buffer_store_dwordx4 {v(O+4*u,4)}, v{vRM}, s[{sIO}:{sIO+3}], s{sT} offen offset:{(u & 1) * 64}")
    ts(a, opt, ph, 5)
    a.label(f"{lo}_end")
```

```python
from common import *
import res, g1, g3

def gen(name, opt):
    t = gen_(name, opt)
    if opt.get("onlysc1"): t = t.replace(" sc0 sc1", " sc1")
    return t

def gen_(name, opt):
    a = Asm(); kernel_header(a, name)
    nph = opt.get("nph", 8)
    a.e("s_cmp_ge_u32 s2, 256"); a.e("s_cbranch_scc1 L_end")
    a.e(f"s_load_dwordx4 s[{pAX}:{pAX+3}], s[0:1], 0")
    a.e(f"s_load_dwordx2 s[{sWS}:{sWS+1}], s[0:1], 72")
    a.e(f"s_load_dwordx2 s[{pWO}:{pWO+1}], s[0:1], 16")
    a.e(f"s_load_dwordx4 s[{pW1}:{pW1+3}], s[0:1], 32")
    a.e(f"s_load_dwordx4 s[{pW2}:{pW2+3}], s[0:1], 48")
    a.e(f"s_load_dwordx2 s[{pDBG}:{pDBG+1}], s[0:1], 64")
    a.e("v_lshrrev_b32 v1, 6, v0")
    a.e(f"v_and_b32 v{vL}, 63, v0")
    a.e(f"v_readfirstlane_b32 s{sWAVE}, v1")
    a.e(f"v_lshrrev_b32 v{vG}, 4, v{vL}"); a.e(f"v_and_b32 v{vI}, 15, v{vL}"); a.e(f"v_lshlrev_b32 v{vL16}, 4, v{vL}")
    if opt.get("ts"): a.e("v_mov_b32 v255, 0")
    a.e(f"s_and_b32 s{sX}, s2, 7"); a.e(f"s_lshr_b32 s{sCI}, s2, 4"); a.e(f"s_lshr_b32 s{sQ}, s2, 3"); a.e(f"s_and_b32 s{sQ}, s{sQ}, 1")
    a.e(f"s_lshl_b32 s{sMT}, s{sX}, 1")
    a.e(f"s_add_u32 s{sMT}, s{sMT}, s{sQ}")
    a.e(f"s_and_b32 s{sHF}, s{sCI}, 1")
    a.e(f"s_lshl_b32 s{sMB}, s{sHF}, 1"); a.e(f"s_xor_b32 s{sMB}, s{sMB}, s{sMT}")
    a.e(f"s_and_b32 s{sT}, s{sX}, 1"); a.e(f"s_lshl_b32 s{sT}, s{sT}, 3"); a.e(f"s_lshr_b32 s{sNT}, s{sCI}, 1"); a.e(f"s_add_u32 s{sNT}, s{sNT}, s{sT}")
    a.e(f"s_and_b32 s{sK4}, s{sX}, 6"); a.e(f"s_lshl_b32 s{sK3}, s{sK4}, 1")
    a.e(f"s_sub_u32 s{sN8}, s{sNT}, s{sK4}"); a.e(f"s_add_u32 s{sN8}, s{sN8}, 3"); a.e(f"s_and_b32 s{sN8}, s{sN8}, 7")
    a.e(f"s_mov_b32 s{sLB}, 0"); a.e(f"s_mov_b32 s{sXM}, 1")
    a.e(f"s_and_b32 s{sW4}, s{sWAVE}, 3")
    a.e(f"s_mov_b32 s{sLAY}, 0"); a.e(f"s_mov_b32 s{sSLOW}, 1"); a.e(f"s_mov_b32 s{sSPIN}, {opt.get('spin', SPIN)}")
    a.e("s_waitcnt lgkmcnt(0)")
    make_srd(a, SW, sWS, WS_SIZE)
    a.e(f"s_cmp_ge_u32 s{sWAVE}, 4"); a.e("s_cbranch_scc1 L_load")
    def stop_check(p):
        if nph < 8 and (nph - 1) % 4 == p:
            a.e(f"s_cmp_eq_u32 s{sLAY}, {(nph - 1) // 4}"); a.e("s_cbranch_scc1 L_fin")
    a.e(f"s_mul_i32 s{sT}, s{sWAVE}, {g1.AS}"); a.e(f"v_add_u32 v8, s{sT}, v{vL16}")
    for i in range(4): a.e(f"v_mov_b32 v{4+i}, 0x{ONES:08x}")
    a.e("s_mov_b64 exec, 0xff")
    a.e("ds_write_b128 v8, v[4:7]")
    a.e("s_mov_b64 exec, -1")
    a.e("v_mov_b32 v0, 0")
    a.e(f"s_cmp_lg_u32 s{sWAVE}, 3"); a.e("s_cbranch_scc1 L_noinit")
    for i in range(1, 4): a.e(f"v_mov_b32 v{i}, 0")
    a.e(f"v_lshrrev_b32 v8, 1, v{vL}"); a.e("v_lshlrev_b32 v8, 13, v8"); a.e(f"v_and_b32 v9, 1, v{vL}"); a.e("v_lshl_add_u32 v8, v9, 4, v8")
    a.e(f"s_lshl_b32 s{sT}, s{sMT}, 4"); a.e(f"s_add_u32 s{sT}, s{sT}, s{sCI}"); a.e(f"s_lshl_b32 s{sT}, s{sT}, 5")
    a.e(f"s_add_u32 s{sT2}, s{sT}, {M_FL}")
    a.e("s_mov_b64 exec, 0xffff")
    a.e(f"buffer_store_dwordx4 v[0:3], v8, s[{SW}:{SW+3}], s{sT2} offen{SC}")
    a.e(f"v_lshrrev_b32 v8, 2, v{vL}"); a.e("v_lshlrev_b32 v8, 17, v8"); a.e(f"v_and_b32 v9, 3, v{vL}"); a.e("v_lshl_add_u32 v8, v9, 7, v8")
    a.e(f"s_lshl_b32 s{sT}, s2, 9"); a.e(f"s_add_u32 s{sT2}, s{sT}, {M_XF}")
    a.e("s_mov_b64 exec, 0xff")
    a.e(f"buffer_store_dwordx4 v[0:3], v8, s[{SW}:{SW+3}], s{sT2} offen{SC}")
    a.e(f"v_lshlrev_b32 v8, 12, v{vL}")
    a.e(f"s_lshl_b32 s{sT}, s{sMT}, 1"); a.e(f"s_add_u32 s{sT}, s{sT}, s{sHF}"); a.e(f"s_lshl_b32 s{sT}, s{sT}, 7"); a.e(f"s_add_u32 s{sT}, s{sT}, {M_RF}")
    a.e(f"s_cmp_lt_u32 s{sCI}, 2"); a.e(f"s_cselect_b32 s{sT}, s{sT}, 0x7f000000")
    a.e("s_mov_b64 exec, 31")
    a.e(f"buffer_store_dwordx4 v[0:3], v8, s[{SW}:{SW+3}], s{sT} offen{SC}")
    a.e("s_mov_b64 exec, 3")
    g3.sharer(a, sT2)
    a.e(f"s_lshl_b32 s{sT}, s{sNT}, 4"); a.e(f"s_add_u32 s{sT}, s{sT}, s{sT2}"); a.e(f"s_lshl_b32 s{sT}, s{sT}, 5"); a.e(f"s_add_u32 s{sT2}, s{sT}, {M_CF}")
    a.e(f"buffer_store_dwordx4 v[0:3], v{vL16}, s[{SW}:{SW+3}], s{sT2} offen{SC}")
    a.e("s_mov_b64 exec, -1")
    a.label("L_noinit")
    tlb = opt.get("tlb", 0)
    if tlb:
        a.e("s_lshr_b32 s20, s2, 3"); a.e("s_lshl_b32 s20, s20, 2"); a.e(f"s_add_u32 s20, s20, s{sWAVE}"); a.e(f"s_mul_i32 s20, s20, {tlb}")
        for ptr, lo, hi in ((sWS, 0, 36 * MB), (sWS, 52 * MB, 73 * MB), (pWO, 0, 2 * MB), (pW1, 0, 7 * MB), (pW3, 0, 7 * MB), (pW2, 0, 7 * MB), (pOUT, 0, 4 * MB)):
            for off in range(lo, hi, 128 * tlb):
                l = a.new("tl")
                if off + 128 * tlb > hi:
                    a.e(f"s_cmp_ge_u32 s20, {hi - off}"); a.e(f"s_cbranch_scc1 {l}")
                a.e(f"s_add_u32 s21, s20, {off}")
                a.e(f"s_add_u32 s22, s{ptr}, s21"); a.e(f"s_addc_u32 s23, s{ptr+1}, 0")
                a.e("s_load_dword s24, s[22:23], 0")
                a.label(l)
    g1.x0_stats(a, opt)
    a.e("s_waitcnt lgkmcnt(0)")
    a.label("C_layer")
    g1.g1_cons(a, opt); stop_check(0)
    res.res_cons(a, opt, 1); stop_check(1)
    G0 = g3.G3(a, opt, 0); G0.w_setup(); G0.run(0); stop_check(2)
    res.res_cons(a, opt, 3, lambda p: signal(a, 2, 236, 237, p)); stop_check(3)
    a.e(f"s_add_u32 s{sLAY}, s{sLAY}, 1"); set_mode(a, opt)
    a.e(f"s_cmp_lt_u32 s{sLAY}, 2"); a.e("s_cbranch_scc1 C_layer")
    a.e("s_branch L_fin")
    a.flush_tail()
    a.label("L_load")
    if opt.get("lprio", 3): a.e(f"s_setprio {opt.get('lprio', 3)}")
    n2 = g1.g1_load0(a, opt)
    a.label("L_g2")
    stop_check(0)
    G3 = g3.G3(a, opt, 1)
    n3 = res.res_load(a, opt, 1, n2, G3.w_setup, lambda vm: G3.nxt(vm, opt.get("g3pre", 2)),
                      lambda idx, n: 0 if n else (opt.get("g3pc", 3) if idx < 14 else opt.get("g3pd", 11))); stop_check(1)
    if opt.get("lprio", 3): a.e(f"s_setprio {opt.get('g3prio', 0)}")
    G3.run(n3); stop_check(2)
    if opt.get("lprio", 3): a.e(f"s_setprio {opt.get('lprio', 3)}")
    n1 = res.res_load(a, opt, 3, res.CFG[3]['RW'], lambda: g1.g1_w_setup(a, opt, 1), lambda vm: g1.g1_nxt(a, vm, opt.get("g1pre", 3)), lambda idx, n: 0 if n else opt.get("g1pc", 2)); stop_check(3)
    a.e(f"s_cmp_eq_u32 s{sLAY}, 1"); a.e("s_cbranch_scc1 L_fin")
    a.e(f"s_mov_b32 s{sLAY}, 1"); set_mode(a, opt)
    n2b = g1.g1_load1(a, opt, n1)
    assert n2b == n2
    a.e("s_branch L_g2")
    a.flush_tail()
    a.label("L_fin")
    if opt.get("ts"):
        a.e(f"s_lshl_b32 s{sT}, s2, 3"); a.e(f"s_add_u32 s{sT}, s{sT}, s{sWAVE}"); a.e(f"s_lshl_b32 s{sT}, s{sT}, 8"); a.e(f"s_add_u32 s{sT}, s{sT}, {M_TS}")
        a.e(f"v_lshlrev_b32 v{vT0}, 2, v{vL}")
        a.e(f"buffer_store_dword v255, v{vT0}, s[{SW}:{SW+3}], s{sT} offen")
    a.label("L_abort")
    a.label("L_end")
    a.e("s_endpgm")
    return a.text()

if __name__ == "__main__":
    opt = parse_opts(sys.argv[2:])
    if opt.get("list"):
        t = build([("mega_kernel", 256, 512, 163840)], [gen("mega_kernel", opt)])
    else:
        KN = NAME + "_kernel"
        t = build([(KN, 256, 512, 163840)], [gen(KN, opt)], single=True)
    open(sys.argv[1], "w").write(t)
```

```python
from lib import *

WS_X = 0
WS_O = 12 * MB
WS_H = 20 * MB
WS_P = 52 * MB
WS_M = 68 * MB
M_ST = WS_M
M_HALO = WS_M + 2 * MB
M_HST = WS_M + 2 * MB + 512 * 1024
M_CS = WS_M + 3 * MB
M_FL = WS_M + 4 * MB
M_XF = M_FL + 131072
M_CF = M_FL + 90112
M_RF = M_FL + 65536
M_S0 = WS_M + 2 * MB + 768 * 1024
M_TS = WS_M + 5 * MB
WS_SIZE = 76 * MB

CTL = 159744
L_ST = CTL
L_CS3 = CTL + 1152
L_CS1 = CTL + 2944
L_MODE = CTL + 3712
L_XFL = CTL + 3728

sWAVE = 3
sWS = 4
sX, sQ, sCI, sMT, sNT, sLAY = 70, 71, 72, 73, 74, 75
sTS = 76
sSLOW, sSPIN = 78, 79
SW = 80
pAX, pWQKV, pWO, pDBG, pW1, pW3, pW2, pOUT = 84, 86, 88, 90, 92, 94, 96, 98
sW4 = 69
sHF = 68
sMB = 67
sHP = 74
sN8 = 61
sK3, sK4 = 57, 58
sXM = 59
sLB = 60
sT, sT2, sT3 = 64, 65, 66
sEXS = 62
vL, vG, vI, vT0, vT1 = 250, 251, 252, 253, 254
vL16 = 249
SPIN = 0x400000
EPS_BITS = 0x3727c5ac
ONES = 0x3f803f80
SC = " sc0 sc1"


class VM:
    def __init__(self, a): self.a = a; self.ops = []
    def op(self, tag=None): self.ops.append(tag)
    def after(self, tag):
        idx = [i for i, t in enumerate(self.ops) if t == tag]
        if not idx: return None
        return len(self.ops) - 1 - idx[-1]
    def wait(self, tags, extra=""):
        if not isinstance(tags, list): tags = [tags]
        ns = [self.after(t) for t in tags]
        ns = [n for n in ns if n is not None]
        if not ns:
            if extra: self.a.e(f"s_waitcnt {extra}")
            return
        n = min(min(ns), 63)
        self.a.e(f"s_waitcnt vmcnt({n}) {extra}".rstrip())
        self.ops = self.ops[len(self.ops) - n:] if n else []
    def drain(self): self.ops = []


def ts(a, opt, ph, k):
    if not opt.get("ts"): return
    a.e(f"s_memrealtime s[{sTS}:{sTS+1}]")
    a.e("s_waitcnt lgkmcnt(0)")
    a.e(f"s_lshl_b32 s{sTS+1}, s{sLAY}, 5")
    a.e(f"s_add_u32 s{sTS+1}, s{sTS+1}, {ph * 8 + k}")
    a.e(f"s_mov_b32 m0, s{sTS+1}")
    a.e("s_nop 0")
    a.e(f"v_writelane_b32 v255, s{sTS}, m0")


def tsc(a, opt, ph, k):
    if not opt.get("ts"): return
    a.e(f"s_memtime s[{sTS}:{sTS+1}]")
    a.e("s_waitcnt lgkmcnt(0)")
    a.e(f"s_lshl_b32 s{sTS+1}, s{sLAY}, 5")
    a.e(f"s_add_u32 s{sTS+1}, s{sTS+1}, {ph * 8 + k}")
    a.e(f"s_mov_b32 m0, s{sTS+1}")
    a.e("s_nop 0")
    a.e(f"v_writelane_b32 v255, s{sTS}, m0")


def round_bf16(a, r):
    a.e(f"v_cvt_pk_bf16_f32 v{r}, v{r}, v{r}")
    a.e(f"v_lshlrev_b32 v{r}, 16, v{r}")


def finish_stats(a, vsum, vsq):
    a.e(f"v_mul_f32 v{vsum}, 0x3a800000, v{vsum}")
    a.e(f"v_mul_f32 v{vsq}, 0x3a800000, v{vsq}")
    a.e(f"v_fma_f32 v{vsq}, -v{vsum}, v{vsum}, v{vsq}")
    a.e(f"v_max_f32 v{vsq}, 0, v{vsq}")
    round_bf16(a, vsum)
    round_bf16(a, vsq)
    a.e(f"v_add_f32 v{vsq}, 0x{EPS_BITS:08x}, v{vsq}")
    round_bf16(a, vsq)
    a.e(f"v_sqrt_f32 v{vsq}, v{vsq}")
    a.e("s_nop 0")
    round_bf16(a, vsq)
    a.e(f"v_rcp_f32 v{vsq}, v{vsq}")
    a.e("s_nop 0")


def xreduce(a, regs, tmps, op="v_add_f32"):
    for sw in ("v_permlane16_swap_b32", "v_permlane32_swap_b32"):
        for r, t in zip(regs, tmps): a.e(f"v_mov_b32 v{t}, v{r}")
        a.e("s_nop 1")
        for r, t in zip(regs, tmps): a.e(f"{sw} v{r}, v{t}")
        for r, t in zip(regs, tmps): a.e(f"{op} v{r}, v{r}, v{t}")


def stats_lane(a, vX):
    a.e(f"v_lshlrev_b32 v{vX}, 4, v{vI}"); a.e(f"v_lshl_add_u32 v{vX}, v{vG}, 13, v{vX}")


def stats_reduce(a, B, n, vX, s_tab, sub=False, pk=False):
    w = n // 2
    while w:
        for i in range(w):
            if pk:
                for r in (0, 2): a.e(f"v_pk_add_f32 {v(B+4*i+r,2)}, {v(B+4*i+r,2)}, {v(B+4*(i+w)+r,2)}")
            else:
                for r in range(4): a.e(f"v_add_f32 v{B+4*i+r}, v{B+4*i+r}, v{B+4*(i+w)+r}")
        w //= 2
    a.e(f"v_and_b32 v{vX}, {7 if sub else 15}, v{vI}"); a.e(f"v_and_b32 v{B+4}, 1, v{vG}")
    if sub:
        for i in range(4): a.e(f"v_add_f32_dpp v{B+i}, v{B+i}, v{B+i} row_ror:8 row_mask:0xf bank_mask:0xf")
        a.e("s_nop 0")
    a.e(f"v_permlane16_swap_b32 v{B}, v{B+2}"); a.e(f"v_permlane16_swap_b32 v{B+1}, v{B+3}")
    a.e(f"v_add_f32 v{B}, v{B}, v{B+2}"); a.e(f"v_add_f32 v{B+1}, v{B+1}, v{B+3}")
    a.e(f"v_mov_b32 v{B+2}, v{B}"); a.e(f"v_mov_b32 v{B+3}, v{B+1}")
    a.e(f"v_lshl_add_u32 v{vX}, v{vX}, 1, v{B+4}"); a.e(f"v_lshlrev_b32 v{vX}, 3, v{vX}")
    a.e(f"v_permlane32_swap_b32 v{B}, v{B+2}"); a.e(f"v_permlane32_swap_b32 v{B+1}, v{B+3}")
    a.e(f"v_add_f32 v{B}, v{B}, v{B+2}"); a.e(f"v_add_f32 v{B+1}, v{B+1}, v{B+3}")
    finish_stats(a, B, B + 1)
    a.e(f"v_add_u32 v{vX}, {s_tab}, v{vX}")
    a.e(f"ds_write_b64 v{vX}, {v(B,2)}")


def set_mode(a, opt):
    if opt.get("distinct"): a.e(f"s_mov_b32 s{sXM}, 1")
    else: a.e(f"s_mov_b32 s{sXM}, s{sSLOW}")
    a.e(f"s_mul_i32 s{sLB}, s{sXM}, s{sLAY}")


def spin_guard(a):
    a.e(f"s_sub_u32 s{sSPIN}, s{sSPIN}, 1")
    a.e(f"s_cbranch_scc1 L_abort")


def flag_off(a, dst, ph):
    a.e(f"s_lshl_b32 s{dst}, s{sLAY}, 15")
    a.e(f"s_lshl_b32 s{sT3}, s{sMT}, 9")
    a.e(f"s_add_u32 s{dst}, s{dst}, s{sT3}")
    a.e(f"s_add_u32 s{dst}, s{dst}, {(M_FL + ph * 8192) & 0xffffffff}")


def store_flag(a, soff, v0, v1, pending=0):
    l = a.new("sg")
    a.e(f"v_mov_b32 v{v0}, 0")
    a.e(f"v_mov_b32 v{v1}, 1")
    a.e(f"s_cmp_lg_u32 s{sSLOW}, 0")
    a.e(f"s_cbranch_scc1 {l}_slow")
    a.e(f"s_waitcnt vmcnt({pending})")
    a.e("s_mov_b64 exec, 1")
    a.e(f"buffer_store_dword v{v1}, v{v0}, s[{SW}:{SW+3}], s{soff} offen")
    a.e("s_mov_b64 exec, -1")
    a.label(f"{l}_done")
    a.ool([f"{l}_slow:", "s_waitcnt vmcnt(0)", "buffer_wbl2 sc1", "s_waitcnt vmcnt(0)", "s_mov_b64 exec, 1",
           f"buffer_store_dword v{v1}, v{v0}, s[{SW}:{SW+3}], s{soff} offen{SC}", "s_mov_b64 exec, -1", f"s_branch {l}_done"])


def store_flag_remote(a, soff, v0, v1, release=False):
    a.e(f"v_mov_b32 v{v0}, 0")
    a.e(f"v_mov_b32 v{v1}, 1")
    a.e("s_waitcnt vmcnt(0)")
    if release:
        l = a.new("sr")
        a.e(f"s_cmp_lg_u32 s{sSLOW}, 0"); a.e(f"s_cbranch_scc1 {l}"); a.label(f"{l}_b")
        a.ool([f"{l}:", "buffer_wbl2 sc1", "s_waitcnt vmcnt(0)", f"s_branch {l}_b"])
    a.e("s_mov_b64 exec, 1")
    a.e(f"buffer_store_dword v{v1}, v{v0}, s[{SW}:{SW+3}], s{soff} offen{SC}")
    a.e("s_mov_b64 exec, -1")


def relay(a, s_kind_off, v0, v1):
    l = a.new("rl")
    a.e(f"s_lshr_b32 s{sT}, s{sCI}, 1"); a.e(f"s_or_b32 s{sT}, s{sT}, s{sW4}"); a.e(f"s_cbranch_scc1 {l}")
    a.e(f"s_lshl_b32 s{sT}, s{sMT}, 1"); a.e(f"s_add_u32 s{sT}, s{sT}, s{sHF}"); a.e(f"s_lshl_b32 s{sT}, s{sT}, 7")
    a.e(f"s_add_u32 s{sT}, s{sT}, {s_kind_off}")
    a.e(f"v_mov_b32 v{v0}, 0"); a.e(f"v_mov_b32 v{v1}, 1")
    a.e("s_mov_b64 exec, 1")
    a.e(f"buffer_store_dword v{v1}, v{v0}, s[{SW}:{SW+3}], s{sT} offen{SC}")
    a.e("s_mov_b64 exec, -1")
    a.label(l)


def signal(a, ph, v0, v1, pending=0, remote=False):
    flag_off(a, sT, ph)
    a.e(f"s_lshl_b32 s{sT2}, s{sCI}, 5")
    a.e(f"s_add_u32 s{sT}, s{sT}, s{sT2}")
    a.e(f"s_lshl_b32 s{sT2}, s{sWAVE}, 2")
    a.e(f"s_add_u32 s{sT}, s{sT}, s{sT2}")
    if remote: store_flag_remote(a, sT, v0, v1, release=True)
    else: store_flag(a, sT, v0, v1, pending)


def poll(a, soff, voff, vd, nd, smask, acquire=True, fl=" sc1"):
    l = a.new("pl")
    a.e(f"s_mov_b64 exec, {smask}")
    a.label(l)
    op = {1: "dword", 2: "dwordx2", 4: "dwordx4"}[nd]
    a.e(f"buffer_load_{op} {v(vd, nd)}, v{voff}, s[{SW}:{SW+3}], s{soff} offen{fl}")
    spin_guard(a)
    a.e("s_waitcnt vmcnt(0)")
    if nd == 4:
        a.e(f"v_and_b32 v{vd}, v{vd}, v{vd+1}")
        a.e(f"v_and_b32 v{vd+2}, v{vd+2}, v{vd+3}")
        a.e(f"v_and_b32 v{vd}, v{vd}, v{vd+2}")
    elif nd == 2:
        a.e(f"v_and_b32 v{vd}, v{vd}, v{vd+1}")
    a.e(f"v_cmp_ne_u32 vcc, 1, v{vd}")
    a.e(f"s_cbranch_vccnz {l}")
    a.e("s_mov_b64 exec, -1")
    if acquire:
        a.e(f"s_cmp_lg_u32 s{sSLOW}, 0")
        a.e(f"s_cbranch_scc1 {l}_acq")
        a.label(f"{l}_ok")
        a.ool([f"{l}_acq:", "buffer_inv sc1", "s_waitcnt vmcnt(0)", f"s_branch {l}_ok"])


def barrier_events(NS, deep=False):
    d = 1 if deep else 0
    ev = [("Bm1", d, -1)]
    for p in range(NS // 2):
        ev.append((f"B{p}", min(2 * p + 2 + d, NS - 1), 2 * p + d))
    return ev


class Stream:
    def __init__(self, name, NS, R, issue, addr, unit=1, issued=0):
        self.name = name; self.N = NS // unit; self.R = R; self.issue = issue; self.unit = unit; self.issued = issued; self.addr = addr
    def need_unit(self, need): return min(need // self.unit, self.N - 1)
    def freed_units(self, freed): return (freed + 1) // self.unit
    def can(self, freed): return self.issued < self.N and self.issued - self.R < self.freed_units(freed)
    def go(self):
        self.issue(self.issued); self.issued += 1
    def live(self, freed): return [self.addr(u) for u in range(self.freed_units(freed), self.N)]


def run_loader(a, vm, ev, streams, pre, la, cap, hooks=None, tail=None, nxt=None, nxtcap=None, log=None, tl=False, lgk=None, pre_hooks=None, mid_hooks=None, mid_at=1):
    S = {s_.name: s_ for s_ in streams}
    for n in pre:
        assert S[n].can(-1)
        S[n].go()
    ni = 0; tail_done = False
    for idx, (name, need, freed) in enumerate(ev):
        tags = []
        for s_ in streams:
            u = s_.need_unit(need)
            assert u < s_.issued, (name, s_.name, u, s_.issued)
            tags.append((s_.name, u))
        def stamp(reg):
            if tl:
                a.e(f"s_memtime s[{sTS}:{sTS+1}]"); a.e("s_waitcnt lgkmcnt(0)"); a.e(f"v_writelane_b32 v{reg}, s{sTS}, {idx}")
        stamp(247)
        vm.wait(tags, "lgkmcnt(0)" if (lgk is None or name in lgk) else "")
        stamp(248)
        a.e("s_barrier")
        stamp(239)
        if pre_hooks and name in pre_hooks: pre_hooks[name]()
        n = 0
        if idx + 1 < len(ev):
            nneed = ev[idx + 1][1]
            raw = need + 2 if idx else nneed
            while True:
                best = None
                for s_ in streams:
                    if not s_.can(freed): continue
                    tgt = s_.need_unit(nneed + la(s_.name, idx)) + 1
                    must = s_.need_unit(nneed) >= s_.issued
                    if s_.issued < tgt and (n < cap(idx) or must):
                        key = s_.issued * s_.unit
                        if best is None or key < best[0]: best = (key, s_)
                if best is None: break
                best[1].go(); n += 1
                if n == mid_at and mid_hooks and name in mid_hooks: mid_hooks.pop(name)()
            for s_ in streams: assert s_.need_unit(nneed) < s_.issued, (name, s_.name)
        if mid_hooks and name in mid_hooks: mid_hooks.pop(name)()
        done = all(s_.issued == s_.N for s_ in streams)
        if done and not tail_done:
            tail_done = True
            if tail: tail()
        if hooks and name in hooks: hooks[name]()
        k = 0
        if done and nxt:
            live = [r for s_ in streams for r in s_.live(freed)]
            while ni < len(nxt) and (idx + 1 == len(ev) or k < nxtcap(idx, n)):
                lo, hi, fn = nxt[ni]
                if any(lo < h and l < hi for l, h in live): break
                fn(); ni += 1; k += 1
        if log is not None: log.append((name, need, {s_.name: s_.issued for s_ in streams}, ni))
    for s_ in streams: assert s_.issued == s_.N, (s_.name, s_.issued)
    if tl:
        a.e(f"s_lshl_b32 s{sT}, s2, 3"); a.e(f"s_add_u32 s{sT}, s{sT}, s{sWAVE}"); a.e(f"s_mul_i32 s{sT}, s{sT}, 768"); a.e(f"s_add_u32 s{sT}, s{sT}, {M_TS + MB}")
        a.e(f"v_lshlrev_b32 v{vT0}, 2, v{vL}")
        for i, r in enumerate((247, 248, 239)): a.e(f"buffer_store_dword v{r}, v{vT0}, s[{SW}:{SW+3}], s{sT} offen offset:{256*i}")
    return ni
```

```python
from common import *
import res

AS = 18432; RA = 4; LW = 73984; WSL = 12416; WG = 3104; RW = 6; PW = 6144
XSCR = 18432
def wslot(st): return LW + ((st + 1) % RW) * WSL
def aslot(u): return ((u + 1) % RA) * AS
def events(): return barrier_events(32) + [("BE", 31, 31)]
PH = 0
sW = 8; sXR = 12
sWo, sWlo, sWhi, sWm = 16, 17, 18, 19
sAo, sAlo, sAhi, sAm, sHo, sHm = 20, 21, 22, 23, 24, 25
vWp = 10
vAp = 13


def k0_units(a, opt, dst):
    a.e(f"s_mov_b32 s{dst}, s{sK3}")


def g1_w_setup(a, opt, lay_next):
    make_srd(a, sW, pWQKV, 1024 * PW)
    a.e(f"v_lshrrev_b32 v{vT0}, 3, v{vL}")
    if lay_next == 0:
        a.e(f"v_and_b32 v{vT1}, 3, v{vT0}"); a.e(f"v_lshlrev_b32 v{vT1}, 3, v{vT1}")
        a.e(f"v_and_b32 v{vT0}, 4, v{vT0}"); a.e(f"v_add_u32 v{vT0}, v{vT0}, v{vT1}")
    else:
        a.e(f"v_lshlrev_b32 v{vT0}, 2, v{vT0}")
    a.e(f"v_add_u32 v{vT0}, s{sW4}, v{vT0}")
    a.e(f"v_mul_u32_u24 v{vT0}, {PW}, v{vT0}")
    a.e(f"v_and_b32 v{vT1}, 7, v{vL}")
    a.e(f"v_lshl_add_u32 v{vWp}, v{vT1}, 4, v{vT0}")
    a.e(f"v_add_u32 v{vWp+1}, 2048, v{vWp}")
    a.e(f"v_add_u32 v{vWp+2}, 4096, v{vWp}")
    a.e(f"s_mul_i32 s{sWm}, s{sW4}, {WG}")
    a.e(f"s_lshl_b32 s{sWlo}, s{sHP}, 7")
    a.e(f"s_add_u32 s{sWhi}, s{sWlo}, {1024 * PW}")
    k0_units(a, opt, sT)
    a.e(f"s_mul_i32 s{sT}, s{sT}, {64 * PW}")
    a.e(f"s_add_u32 s{sWo}, s{sWlo}, s{sT}")


def g1_nxt(a, vm, n):
    return [(wslot(st), wslot(st) + WSL, (lambda st=st: g1_w_issue(a, st, vm, None))) for st in range(n)]


def g1_w_issue(a, st, vm, tag):
    for i in range(3):
        a.e(f"s_add_u32 m0, s{sWm}, {wslot(st) + i * 1024}"); a.e("s_nop 0")
        a.e(f"buffer_load_dwordx4 v{vWp+i}, s[{sW}:{sW+3}], s{sWo} offen lds")
        vm.op(tag)
    a.e(f"s_add_u32 s{sWo}, s{sWo}, {32 * PW}"); a.e(f"s_cmp_eq_u32 s{sWo}, s{sWhi}"); a.e(f"s_cselect_b32 s{sWo}, s{sWlo}, s{sWo}")


def pretouch_o(a, vm, always=False):
    a.e(f"s_lshl_b32 s{sT}, s{sMB}, 4"); a.e(f"s_add_u32 s{sT}, s{sT}, s{sHP}"); a.e(f"s_lshl_b32 s{sT}, s{sT}, 2")
    a.e(f"s_add_u32 s{sT}, s{sT}, s{sW4}"); a.e(f"s_lshl_b32 s{sT}, s{sT}, 12")
    a.e(f"s_lshl_b32 s{sT2}, s{sLAY}, 22"); a.e(f"s_add_u32 s{sT}, s{sT}, s{sT2}"); a.e(f"s_add_u32 s{sT}, s{sT}, {WS_O}")
    if not always: a.e(f"s_cmp_eq_u32 s{sHF}, 0"); a.e(f"s_cselect_b32 s{sT}, s{sT}, 0x7f000000")
    a.e(f"v_lshlrev_b32 v{vT0}, 7, v{vL}")
    a.e("s_mov_b64 exec, 0xffffffff")
    a.e(f"buffer_load_dword v9, v{vT0}, s[{SW}:{SW+3}], s{sT} offen sc1"); vm.op()
    a.e("s_mov_b64 exec, -1")


def assist(a, opt, hooks):
    ah = opt.get("g1as", 4)
    if not ah: return
    a.e("s_lshr_b32 s40, s2, 3"); a.e("s_lshl_b32 s40, s40, 2"); a.e(f"s_add_u32 s40, s40, s{sW4}")
    a.e("s_and_b32 s41, s40, 63"); a.e(f"s_mul_i32 s41, s41, {PW}")
    a.e("s_and_b32 s40, s40, 64"); a.e("s_add_u32 s40, s40, s41"); a.e("s_add_u32 s40, s40, 384")
    a.e(f"s_and_b32 s41, s{sX}, 1"); a.e("s_lshl_b32 s41, s41, 10"); a.e("s_add_u32 s40, s40, s41")
    a.e(f"s_add_u32 s40, s{pWQKV}, s40"); a.e(f"s_addc_u32 s41, s{pWQKV+1}, 0")
    def go(u):
        a.e(f"s_add_u32 s42, s{sK3}, {u}"); a.e("s_and_b32 s42, s42, 15"); a.e(f"s_mul_i32 s42, s42, {64 * PW}")
        a.e("s_add_u32 s44, s40, s42"); a.e("s_addc_u32 s45, s41, 0")
        for seg in range(3): a.e(f"s_load_dword s43, s[44:45], {seg * 2048}")
    for p in range(-1, 16):
        us = [p + ah] if p >= 0 else list(range(2, ah))
        us = [u for u in us if u < 16]
        if not us: continue
        nm = f"B{p}" if p >= 0 else "Bm1"
        h0 = hooks.get(nm)
        hooks[nm] = (lambda us=us, h0=h0: ([go(u) for u in us], h0() if h0 else None))


def g1_sched(opt):
    la = lambda n, idx: 3
    cap = lambda idx: 2 if idx < 1 else 4
    nxtcap = lambda idx, n: opt.get("g2pc", 8)
    return la, cap, nxtcap


def g1_load0(a, opt):
    vm = VM(a)
    make_srd(a, sXR, pAX, 4 * MB)
    if opt.get("coop", 0):
        make_srd(a, sW, pWQKV, 1024 * PW)
        l = a.new("co")
        a.e(f"s_cmp_eq_u32 s{sW4}, 3"); a.e(f"s_cbranch_scc1 {l}")
        a.e(f"s_lshl_b32 s{sT}, s{sQ}, 1"); a.e(f"s_add_u32 s{sT}, s{sT}, s{sHF}"); a.e(f"s_add_u32 s{sT}, s{sT}, s{sK3}"); a.e(f"s_mul_i32 s{sT}, s{sT}, {64 * PW}")
        a.e(f"s_lshl_b32 s{sT2}, s{sW4}, 4"); a.e(f"s_add_u32 s{sT2}, s{sT2}, s{sHP}"); a.e(f"s_lshl_b32 s{sT2}, s{sT2}, 7"); a.e(f"s_add_u32 s{sT}, s{sT}, s{sT2}")
        a.e(f"v_mul_u32_u24 v8, {PW}, v{vL}")
        a.e(f"buffer_load_dword v9, v8, s[{sW}:{sW+3}], s{sT} offen")
        a.e(f"s_branch {l}_d")
        a.label(l)
        a.e(f"s_lshl_b32 s{sT}, s{sMB}, 3"); a.e(f"s_and_b32 s{sT2}, s{sNT}, 7"); a.e(f"s_add_u32 s{sT}, s{sT}, s{sT2}"); a.e(f"s_lshl_b32 s{sT}, s{sT}, 15")
        a.e(f"s_lshl_b32 s{sT2}, s{sK3}, 7"); a.e(f"s_add_u32 s{sT}, s{sT}, s{sT2}")
        a.e(f"v_lshlrev_b32 v8, 11, v{vI}"); a.e(f"v_lshl_add_u32 v8, v{vG}, 7, v8")
        a.e(f"buffer_load_dword v9, v8, s[{sXR}:{sXR+3}], s{sT} offen")
        a.label(f"{l}_d")
    g1_w_setup(a, opt, 0)
    g1_w_issue(a, 0, vm, ("W", 0))
    a.e(f"v_lshrrev_b32 v{vT0}, 3, v{vL}")
    a.e(f"v_and_b32 v{vT1}, 6, v{vT0}")
    a.e(f"v_and_b32 v{vAp}, 7, v{vL}")
    a.e(f"v_xor_b32 v{vT1}, v{vT1}, v{vAp}")
    a.e(f"v_lshlrev_b32 v{vT1}, 4, v{vT1}")
    a.e(f"v_lshl_add_u32 v{vAp}, v{vT0}, 11, v{vT1}")
    for i in range(1, 4): a.e(f"v_add_u32 v{vAp+i}, {i * 16384}, v{vAp}")
    a.e(f"s_lshl_b32 s{sAlo}, s{sMB}, 18"); a.e(f"s_lshl_b32 s{sT}, s{sW4}, 16"); a.e(f"s_add_u32 s{sAlo}, s{sAlo}, s{sT}")
    a.e(f"s_add_u32 s{sAhi}, s{sAlo}, 2048")
    k0_units(a, opt, sT); a.e(f"s_lshl_b32 s{sT}, s{sT}, 7"); a.e(f"s_add_u32 s{sAo}, s{sAlo}, s{sT}")
    a.e(f"s_mul_i32 s{sHo}, s{sW4}, {(-24 * 2048) & 0xffffffff}"); a.e(f"s_sub_u32 s{sHo}, s{sHo}, 32768")
    a.e(f"s_cmp_eq_u32 s{sMB}, 0"); a.e(f"s_cselect_b32 s{sHo}, 0x7f000000, s{sHo}")
    a.e(f"s_lshl_b32 s{sAm}, s{sW4}, 12"); a.e(f"s_add_u32 s{sAm}, s{sAm}, 2048")
    a.e(f"s_lshl_b32 s{sHm}, s{sW4}, 10")
    a.e(f"s_cmp_eq_u32 s{sW4}, 0"); a.e(f"s_cselect_b32 s26, 0xffffff00, -1"); a.e("s_mov_b32 s27, -1")
    def issW(st): g1_w_issue(a, st, vm, ("W", st))
    def issA(u):
        l = a.new("nh")
        a.e(f"s_cmp_ge_u32 s{sW4}, 2"); a.e(f"s_cbranch_scc1 {l}")
        a.e(f"s_add_u32 m0, s{sHm}, {aslot(u)}"); a.e(f"s_add_u32 s{sT}, s{sAo}, s{sHo}")
        a.e("s_mov_b64 exec, s[26:27]")
        a.e(f"buffer_load_dwordx4 v{vAp}, s[{sXR}:{sXR+3}], s{sT} offen lds")
        a.e("s_mov_b64 exec, -1")
        a.label(l)
        for i in range(4):
            a.e(f"s_add_u32 m0, s{sAm}, {aslot(u) + i * 1024}"); a.e("s_nop 0")
            a.e(f"buffer_load_dwordx4 v{vAp+i}, s[{sXR}:{sXR+3}], s{sAo} offen lds"); vm.op(("A", u))
        a.e(f"s_add_u32 s{sAo}, s{sAo}, 128"); a.e(f"s_cmp_eq_u32 s{sAo}, s{sAhi}"); a.e(f"s_cselect_b32 s{sAo}, s{sAlo}, s{sAo}")
    W = Stream("W", 32, RW, issW, lambda u: (wslot(u), wslot(u) + WSL), issued=1)
    A = Stream("A", 32, RA, issA, lambda u: (aslot(u), aslot(u) + AS), unit=2)
    sXC = 32
    make_srd(a, 28, pDBG, 256)
    a.e(f"s_getreg_b32 s{sXC}, hwreg(HW_REG_XCC_ID)")
    a.e(f"s_and_b32 s{sXC}, s{sXC}, 15"); a.e(f"s_or_b32 s{sXC}, s{sXC}, 0x80")
    def arrive():
        l = a.new("ar")
        a.e(f"s_cmp_lg_u32 s{sW4}, 3"); a.e(f"s_cbranch_scc1 {l}")
        a.e("s_and_b32 s33, s2, 3"); a.e("s_lshl_b32 s33, s33, 3"); a.e(f"s_lshl_b32 s33, s{sXC}, s33")
        a.e("s_and_b32 s46, s2, 0xfc"); a.e(f"s_add_u32 s46, s{pDBG}, s46"); a.e(f"s_addc_u32 s47, s{pDBG+1}, 0")
        a.e("s_atomic_or s33, s[46:47], 0" + (" glc" if opt.get("aglc") else ""))
        a.label(l)
    def hs1():
        a.e(f"v_lshlrev_b32 v71, 2, v{vL}")
        a.e(f"buffer_load_dword v72, v71, s[28:31], 0 offen sc1"); vm.op("HS")
    def hs2():
        l = a.new("hs")
        vm.wait("HS")
        a.e("v_and_b32 v73, 0x80808080, v72")
        a.e("v_cmp_ne_u32 vcc, 0x80808080, v73")
        a.e(f"s_cbranch_vccnz {l}")
        a.label(f"{l}_b")
        h = Asm()
        h.label(l)
        h.e(f"buffer_load_dword v72, v71, s[28:31], 0 offen sc1")
        spin_guard(h)
        h.e("s_waitcnt vmcnt(0)")
        h.e("v_and_b32 v73, 0x80808080, v72")
        h.e("v_cmp_ne_u32 vcc, 0x80808080, v73")
        h.e(f"s_cbranch_vccnz {l}")
        h.e(f"s_branch {l}_b")
        a.ool([x.strip() for x in h.L])
        a.e(f"s_mul_i32 s{sT2}, s{sW4}, 36"); a.e(f"v_add_u32 v75, s{sT2}, v{vL}")
        a.e("v_subrev_u32 v76, 16, v75"); a.e("v_lshrrev_b32 v77, 1, v76"); a.e("v_and_b32 v76, 1, v76")
        a.e("v_lshlrev_b32 v77, 6, v77"); a.e("v_lshl_add_u32 v76, v76, 3, v77")
        a.e("v_cmp_gt_u32 vcc, 16, v75"); a.e("v_lshlrev_b32 v77, 8, v75"); a.e("v_add_u32 v77, 16, v77")
        a.e("v_cndmask_b32 v74, v76, v77, vcc")
        a.e(f"s_lshl_b32 s{sT}, s{sMB}, 12"); a.e(f"s_add_u32 s{sT}, s{sT}, {M_S0}")
        a.e("s_mov_b32 exec_hi, 15")
        a.e(f"buffer_load_dwordx2 {v(76,2)}, v74, s[{SW}:{SW+3}], s{sT} offen sc1"); vm.op("S0")
        a.e("s_mov_b64 exec, -1")
        a.e("v_lshlrev_b32 v75, 3, v75"); a.e(f"v_add_u32 v75, {L_ST}, v75")
        a.e(f"s_and_b32 s{sT}, s{sX}, 3"); a.e(f"s_lshl_b32 s{sT}, s{sT}, 3")
        a.e(f"v_bfe_u32 v72, v72, s{sT}, 8")
        a.e(f"v_cmp_ne_u32 vcc, s{sXC}, v72")
        a.e(f"s_lshr_b32 s{sT}, s{sX}, 2")
        a.e(f"s_lshl_b32 s{sT2}, 0x55555555, s{sT}")
        a.e(f"s_or_b32 s{sT}, vcc_lo, vcc_hi"); a.e(f"s_and_b32 s{sT}, s{sT}, s{sT2}")
        a.e(f"s_cselect_b32 s{sSLOW}, 1, 0")
        if opt.get("forceslow"): a.e(f"s_mov_b32 s{sSLOW}, 1")
        set_mode(a, opt)
    def hs3():
        vm.wait("S0")
        a.e(f"v_mov_b32 v72, s{sSLOW}"); a.e(f"v_mov_b32 v73, {L_MODE}")
        a.e("s_mov_b32 exec_hi, 15")
        a.e(f"ds_write_b64 v75, {v(76,2)}")
        a.e("ds_write_b32 v73, v72")
        a.e("s_mov_b64 exec, -1")
    def tail():
        pretouch_o(a, vm, always=opt.get("tx1", 0))
        if opt.get("tx1", 0):
            a.e(f"s_lshl_b32 s{sT}, s{sMT}, 4"); a.e(f"s_add_u32 s{sT}, s{sT}, s{sCI}"); a.e(f"s_lshl_b32 s{sT}, s{sT}, 2"); a.e(f"s_add_u32 s{sT}, s{sT}, s{sW4}")
            a.e(f"s_lshl_b32 s{sT}, s{sT}, 12")
            a.e("s_mov_b64 exec, 0xffffffff")
            a.e(f"buffer_load_dword v9, v{vT0}, s[{SW}:{SW+3}], s{sT} offen sc1"); vm.op()
            a.e("s_mov_b64 exec, -1")
        res.res_w_setup(a, 1)
    hooks = {"B1": arrive}
    hooks["B11"] = hs1; hooks["B13"] = hs2; hooks["B15"] = hs3
    if opt.get("vw", 1):
        a.e("s_cmp_lt_u32 s2, 128")
        a.e(f"s_cselect_b32 s36, s{pW1}, s{pW3}"); a.e(f"s_cselect_b32 s37, s{pW1+1}, s{pW3+1}")
        a.e(f"s_mov_b32 s38, {1024 * 7168}"); a.e("s_mov_b32 s39, 0x00020000")
        a.e("s_and_b32 s34, s2, 127"); a.e("s_mul_i32 s34, s34, 57344")
        a.e(f"v_lshlrev_b32 v70, 7, v{vL}")
        at = [int(x) for x in str(opt.get("vwat", "1x7")).split("x")]
        nl = 112 // len(at)
        a.e(f"s_mul_i32 s35, s{sW4}, 14336"); a.e("s_add_u32 s34, s34, s35")
        stag = opt.get("vws", 6)
        a.e("s_lshr_b32 s35, s2, 3"); a.e(f"s_mul_i32 s33, s35, {65536 // stag + 1}"); a.e("s_lshr_b32 s33, s33, 16")
        a.e(f"s_mul_i32 s33, s33, {stag}"); a.e("s_sub_u32 s35, s35, s33")
        def vwarm(ph_):
            l = a.new("vw")
            if stag > 1: a.e(f"s_cmp_lg_u32 s35, {ph_}"); a.e(f"s_cbranch_scc1 {l}")
            if nl < 64:
                mk = (1 << nl) - 1
                a.e(f"s_mov_b32 exec_lo, {mk & 0xffffffff}"); a.e(f"s_mov_b32 exec_hi, {mk >> 32}")
            a.e("buffer_load_dword v69, v70, s[36:39], s34 offen")
            if stag == 1: vm.op()
            a.e("s_mov_b64 exec, -1")
            a.e(f"s_add_u32 s34, s34, {nl * 128}")
            a.label(l)
        for p0 in at:
            for ph_ in range(stag):
                p = p0 + ph_
                nm = f"B{p}" if p < 16 else "BE"
                h0 = hooks.get(nm)
                hooks[nm] = (lambda ph_=ph_, h0=h0: (h0() if h0 else None, vwarm(ph_)))
    assist(a, opt, hooks)
    ts(a, opt, PH, 0)
    pre = list(str(opt.get("g1p0", "AWWAWW")))
    la, cap, nxtcap = g1_sched(opt)
    log = []
    n = run_loader(a, vm, events(), [A, W], pre, la, cap, hooks, tail, res.res_nxt(a, 1, vm, 22), nxtcap, log, tl=opt.get("tl") == "g1a", lgk={"BE"})
    if opt.get("log"): print("g1a", log)
    ts(a, opt, PH, 2)
    return n


def g1_load1(a, opt, prefetched):
    vm = VM(a)
    a.e(f"s_lshl_b32 s{sAlo}, s{sMB}, 18"); a.e(f"s_add_u32 s{sAlo}, s{sAlo}, {WS_X + 4 * MB}")
    a.e(f"s_lshl_b32 s{sT}, s{sW4}, 11"); a.e(f"s_add_u32 s{sAlo}, s{sAlo}, s{sT}")
    a.e(f"s_lshl_b32 s{sAm}, s{sW4}, 12"); a.e(f"s_add_u32 s{sAm}, s{sAm}, 2048")
    a.e(f"s_add_u32 s{sAhi}, s{sAlo}, {32 * 8192}")
    k0_units(a, opt, sT)
    a.e(f"s_lshl_b32 s{sT2}, s{sT}, 14"); a.e(f"s_add_u32 s{sAo}, s{sAlo}, s{sT2}")
    sHlo, sHk, sMP = 26, 27, 28
    a.e(f"s_sub_u32 s{sMP}, s{sMB}, 1"); a.e(f"s_and_b32 s{sMP}, s{sMP}, 15")
    a.e(f"s_lshl_b32 s{sHlo}, s{sMP}, 15"); a.e(f"s_add_u32 s{sHlo}, s{sHlo}, {M_HALO}")
    a.e(f"s_lshl_b32 s{sHk}, s{sT}, 11")
    a.e(f"v_lshlrev_b32 v{res.vPO}, 5, v{vL}")
    a.e(f"s_lshl_b32 s35, s{sX}, 10"); a.e(f"s_add_u32 s35, s35, {M_FL + 3 * 8192}")
    a.e(f"s_xor_b32 s36, s{sX}, 1"); a.e("s_lshl_b32 s36, s36, 9")
    a.e(f"s_sub_u32 s37, s{sK4}, 1"); a.e("s_and_b32 s37, s37, 7"); a.e("s_lshl_b32 s37, s37, 9")
    a.e("v_mov_b32 v8, s36"); a.e("v_writelane_b32 v8, s37, 1")
    a.e(f"s_mov_b32 s37, {M_RF + 8192 + 384}")
    ts(a, opt, PH, 0)
    poll(a, 35, res.vPO, res.vPL, 4, "0xffffffff")
    ts(a, opt, PH, 3)
    relay(a, M_RF + 8192, res.vPL + 2, res.vPL + 3)
    poll(a, 37, 8, res.vPL, 1, "3")
    ts(a, opt, PH, 1)
    def issW(st): g1_w_issue(a, st, vm, ("W", st))
    def issA(st):
        base = aslot(st >> 1) + (st & 1) * 1024
        l = a.new("nh")
        a.e(f"s_cmp_lg_u32 s{sW4}, {9 if opt.get('dbgnohalo') else st & 3}"); a.e(f"s_cbranch_scc1 {l}")
        a.e(f"s_add_u32 s{sT}, s{sHk}, {st * 1024}"); a.e(f"s_and_b32 s{sT}, s{sT}, 0x7fff")
        a.e(f"s_mov_b32 m0, {base}"); a.e(f"s_add_u32 s{sT}, s{sT}, s{sHlo}")
        a.e(f"buffer_load_dwordx4 v{vL16}, s[{SW}:{SW+3}], s{sT} offen sc1 lds")
        a.label(l)
        for i in range(2):
            a.e(f"s_add_u32 m0, s{sAm}, {base + i * 1024}"); a.e("s_nop 0")
            a.e(f"buffer_load_dwordx4 v{vL16}, s[{SW}:{SW+3}], s{sAo} offen offset:{i*1024} sc1 lds"); vm.op(("A", st))
        if not opt.get("dbgsameA"):
            a.e(f"s_add_u32 s{sAo}, s{sAo}, 8192"); a.e(f"s_cmp_eq_u32 s{sAo}, s{sAhi}"); a.e(f"s_cselect_b32 s{sAo}, s{sAlo}, s{sAo}")
    W = Stream("W", 32, RW, issW, lambda u: (wslot(u), wslot(u) + WSL), issued=prefetched)
    A = Stream("A", 32, 2 * RA, issA, lambda u: (aslot(u >> 1), aslot(u >> 1) + AS))
    SB = 32; HB = 64; vX = 80
    sSO = 29
    def hst_load():
        a.e(f"s_lshl_b32 s{sT}, s{sMP}, 15"); a.e(f"s_add_u32 s{sT}, s{sT}, {M_ST + 524288 + 112 * 8}")
        a.e(f"v_and_b32 v{vX+1}, 7, v{vI}"); a.e(f"v_lshlrev_b32 v{vX+1}, 4, v{vX+1}")
        a.e(f"v_lshrrev_b32 v{vT0}, 3, v{vL}"); a.e(f"v_lshl_add_u32 v{vX+1}, v{vT0}, 12, v{vX+1}")
        l = a.new("hs")
        a.e(f"s_cmp_lg_u32 s{sW4}, 3"); a.e(f"s_cbranch_scc1 {l}")
        for i in range(4):
            a.e(f"buffer_load_dwordx4 {v(HB+4*i,4)}, v{vX+1}, s[{SW}:{SW+3}], s{sT} offen offset:{i*1024} sc1")
        a.label(l)
        a.e(f"s_lshl_b32 s{sSO}, s{sMB}, 15"); a.e(f"s_lshl_b32 s{sT2}, s{sW4}, 8"); a.e(f"s_add_u32 s{sSO}, s{sSO}, s{sT2}")
        a.e(f"s_add_u32 s{sSO}, s{sSO}, {M_ST + 524288}")
        stats_lane(a, vX)
    def st_load(k):
        for i in (2 * k, 2 * k + 1):
            a.e(f"buffer_load_dwordx4 {v(SB+4*i,4)}, v{vX}, s[{SW}:{SW+3}], s{sSO} offen offset:{(i&1)*1024} sc1"); vm.op("S")
        a.e(f"s_add_u32 s{sSO}, s{sSO}, 2048")
    def st_fin():
        a.e(f"s_lshl_b32 s{sSO}, s{sW4}, 8"); a.e(f"s_add_u32 s{sSO}, s{sSO}, {L_ST + 128}")
        stats_reduce(a, SB, 8, vX, f"s{sSO}")
    def hst_fin():
        l = a.new("hf")
        a.e(f"s_cmp_lg_u32 s{sW4}, 3"); a.e(f"s_cbranch_scc1 {l}")
        stats_reduce(a, HB, 4, vX + 1, L_ST, sub=True)
        a.label(l)
    def tail():
        pretouch_o(a, vm); res.res_w_setup(a, 1)
    def capture(fn):
        n0 = len(a.L); fn(); o = a.L[n0:]; del a.L[n0:]; return [x.strip() for x in o]
    hooks = {"B4": hst_load}
    for k in range(4): hooks[f"B{5+k}"] = (lambda k=k: st_load(k))
    hooks["B15"] = hst_fin
    mid = {}
    def piece(i, cuts=(0, 16, 32, 46, 99)):
        if i == 0:
            vm.wait("S"); piece.L = capture(st_fin)
        a.es(piece.L[cuts[i]:cuts[i + 1]])
    for i, p in enumerate((10, 11, 12, 14)): mid[f"B{p}"] = (lambda i=i: piece(i))
    assist(a, opt, hooks)
    pre = ["A", "A"] + ["W"] * max(0, 3 - prefetched) + ["A"]
    la, cap, nxtcap = g1_sched(opt)
    cap = lambda idx: 2 if idx < 1 else opt.get("g1cap", 5)
    log = []
    n = run_loader(a, vm, events(), [A, W], pre, la, cap, hooks, tail, res.res_nxt(a, 1, vm, 22), nxtcap, log, tl=opt.get("tl") == "g1b", lgk={"BE"}, mid_hooks=mid)
    if opt.get("log"): print("g1b", log)
    ts(a, opt, PH, 2)
    return n


def x0_stats(a, opt):
    make_srd(a, 8, pAX, 4 * MB)
    D = 16; S = 48; vOne = 56
    a.e(f"s_lshl_b32 s16, s{sCI}, 2"); a.e(f"s_add_u32 s16, s16, s{sWAVE}"); a.e("s_lshl_b32 s16, s16, 1")
    a.e(f"s_lshl_b32 s17, s{sMT}, 7"); a.e("s_add_u32 s18, s17, s16"); a.e("s_lshl_b32 s18, s18, 11")
    a.e(f"s_add_u32 s19, s17, s{sCI}"); a.e("s_sub_u32 s19, s19, 16"); a.e("s_lshl_b32 s19, s19, 11")
    a.e(f"s_cmp_eq_u32 s{sMT}, 0"); a.e("s_cselect_b32 s19, 0x7f000000, s19")
    a.e(f"s_cmp_lg_u32 s{sWAVE}, 0"); a.e("s_cselect_b32 s19, 0x7f000000, s19")
    for i in range(4): a.e(f"buffer_load_dwordx4 {v(D+4*i,4)}, v{vL16}, s[8:11], s18 offen offset:{i*1024}")
    l = a.new("xs")
    for i in range(8): a.e(f"v_mov_b32 v{D+16+i}, 0")
    a.e(f"s_cbranch_scc1 {l}")
    for i in range(2): a.e(f"buffer_load_dwordx4 {v(D+16+4*i,4)}, v{vL16}, s[8:11], s19 offen offset:{i*1024}")
    a.label(l)
    a.e(f"v_mov_b32 v{vOne}, 0x{ONES:08x}")
    a.e("s_waitcnt vmcnt(0)")
    for k in range(3):
        for i in range(8):
            a.e(f"v_dot2_f32_bf16 v{S+2*k}, v{D+8*k+i}, v{vOne}, " + ("0" if i == 0 else f"v{S+2*k}"))
            a.e(f"v_dot2_f32_bf16 v{S+2*k+1}, v{D+8*k+i}, v{D+8*k+i}, " + ("0" if i == 0 else f"v{S+2*k+1}"))
    a.e("s_nop 2")
    for pat in ("quad_perm:[1,0,3,2]", "quad_perm:[2,3,0,1]", "row_half_mirror", "row_mirror"):
        for i in range(6): a.e(f"v_add_f32_dpp v{S+i}, v{S+i}, v{S+i} {pat} row_mask:0xf bank_mask:0xf")
    xreduce(a, list(range(S, S + 6)), list(range(D, D + 6)))
    for k in (1, 2):
        a.e(f"v_cmp_eq_u32 vcc, {k}, v{vL}"); a.e("s_nop 1")
        a.e(f"v_cndmask_b32 v{S}, v{S}, v{S+2*k}, vcc"); a.e(f"v_cndmask_b32 v{S+1}, v{S+1}, v{S+2*k+1}, vcc")
    finish_stats(a, S, S + 1)
    a.e(f"v_lshlrev_b32 v{D}, 3, v{vL}")
    a.e(f"s_lshl_b32 s17, s{sMT}, 12"); a.e("s_lshl_b32 s16, s16, 5"); a.e("s_add_u32 s17, s17, s16"); a.e(f"s_add_u32 s17, s17, {M_S0}")
    a.e("s_mov_b64 exec, 0xff")
    a.e(f"buffer_store_dwordx2 {v(S,2)}, v{D}, s[{SW}:{SW+3}], s17 offen{SC}")
    a.e("s_mov_b64 exec, -1")


def g1_cons(a, opt):
    ACCQ = 0; ACCK = 32; ACCV = 72; AQH = 112
    XF = 116; WF = 156
    vXa = 204; vXc = 206; vW0 = 208; vWc = 209; vOA = 210
    sSl, sAs, sCnt, s_h, sRH, sO, sZ, sSC = 16, 17, 18, 19, 20, 21, 22, 23
    sM = 28; sPM = 44
    def aq(j, ab): return ACCQ + ((j - 1) * 2 + ab) * 4
    def ak(j, ab): return ACCK + (j * 2 + ab) * 4
    def av(j, ab): return ACCV + (j * 2 + ab) * 4
    def xf(b, j): return XF + b * 20 + j * 4
    def wf(b, seg, ab): return WF + b * 24 + (seg * 2 + ab) * 4
    a.e(f"s_and_b32 s{s_h}, s{sWAVE}, 1"); a.e(f"s_lshr_b32 s{sRH}, s{sWAVE}, 1")
    l = a.new("ad")
    a.e(f"s_cmp_lg_u32 s{sLAY}, 0"); a.e(f"s_cbranch_scc1 {l}_f")
    a.e(f"v_lshlrev_b32 v{vT0}, 7, v{vI}")
    a.e(f"v_and_b32 v{vT1}, 6, v{vL}"); a.e(f"v_xor_b32 v{vT1}, v{vT1}, v{vG}")
    a.e(f"v_lshl_add_u32 v{vXa}, v{vT1}, 4, v{vT0}")
    a.e(f"v_xor_b32 v{vXa+1}, 64, v{vXa}")
    a.e(f"s_branch {l}_d")
    a.label(f"{l}_f")
    a.e(f"v_mov_b32 v{vXa}, v{vL16}"); a.e(f"v_add_u32 v{vXa+1}, 1024, v{vL16}")
    a.label(f"{l}_d")
    a.e(f"v_lshrrev_b32 v{vT0}, 2, v{vI}"); a.e(f"v_mul_u32_u24 v{vT0}, {WG}, v{vT0}")
    a.e(f"v_lshl_add_u32 v{vT0}, v{vG}, 7, v{vT0}")
    a.e(f"v_and_b32 v{vT1}, 3, v{vI}"); a.e(f"v_lshl_add_u32 v{vT0}, v{vT1}, 3, v{vT0}")
    a.e(f"s_lshl_b32 s{sT}, s{s_h}, 6"); a.e(f"s_add_u32 s{sT}, s{sT}, {LW}")
    a.e(f"v_add_u32 v{vW0}, s{sT}, v{vT0}")
    a.e(f"v_mov_b32 v{vWc}, v{vW0}")
    a.e(f"s_mov_b32 s{sSl}, 0"); a.e(f"s_mov_b32 s{sAs}, {aslot(0)}")
    a.e(f"v_add_u32 v{vXc}, s{sAs}, v{vXa}"); a.e(f"v_add_u32 v{vXc+1}, s{sAs}, v{vXa+1}")
    a.e(f"s_lshl_b32 s{sO}, s{sMB}, 4"); a.e(f"s_add_u32 s{sO}, s{sO}, s{sHP}"); a.e(f"s_lshl_b32 s{sO}, s{sO}, 1")
    a.e(f"s_add_u32 s{sO}, s{sO}, s{s_h}"); a.e(f"s_lshl_b32 s{sO}, s{sO}, 1"); a.e(f"s_add_u32 s{sO}, s{sO}, s{sRH}"); a.e(f"s_lshl_b32 s{sO}, s{sO}, 12")
    a.e(f"s_lshl_b32 s{sT}, s{sLAY}, 22"); a.e(f"s_add_u32 s{sO}, s{sO}, s{sT}"); a.e(f"s_add_u32 s{sO}, s{sO}, {WS_O}")
    sPAR, sCUR, sFM = 28, 30, 34
    vMK = 232
    vE, vC, vC2, vS1, vS2 = 236, 237, 238, 239, 240
    a.e(f"v_and_b32 v{vT1}, 1, v{vI}")
    a.e(f"v_cmp_eq_u32 s[{sPAR}:{sPAR+1}], 1, v{vT1}")
    a.e(f"v_lshlrev_b32 v{vT0}, 2, v{vG}"); a.e(f"v_sub_u32 v{vT0}, v{vI}, v{vT0}"); a.e(f"v_sub_u32 v{vT0}, v{vT0}, v{vT1}")
    a.e(f"v_lshlrev_b32 v{vT1}, 4, v{vT1}"); a.e(f"v_mov_b32 v{vOA}, 0xffff"); a.e(f"v_lshlrev_b32 v{vOA}, v{vT1}, v{vOA}")
    for k in range(2): a.e(f"v_cmp_le_i32 s[{sCUR+2*k}:{sCUR+2*k+1}], {2*k}, v{vT0}")
    a.e(f"s_or_b32 s{sZ}, s{sMB}, s{sRH}")
    a.e(f"s_cmp_eq_u32 s{sZ}, 0")
    for k in range(2): a.e(f"s_cselect_b64 s[{sFM+2*k}:{sFM+2*k+1}], s[{sCUR+2*k}:{sCUR+2*k+1}], -1")
    for k in range(2):
        a.e(f"v_cndmask_b32 v{vMK+k}, v{vOA}, 0, s[{sCUR+2*k}:{sCUR+2*k+1}]")
        a.e(f"v_cndmask_b32 v{vMK+2+k}, 0, v{vOA}, s[{sCUR+2*k}:{sCUR+2*k+1}]")
    a.e(f"s_mov_b32 s{sSC}, 0x{fbits((32 ** -0.5) * 1.4426950408889634):08x}")
    a.e(f"s_mul_i32 s{sT}, s{s_h}, 6144"); a.e(f"s_add_u32 s{sT}, s{sT}, {XSCR}"); a.e(f"v_add_u32 v{vE}, s{sT}, v{vL16}")
    a.e(f"s_mul_i32 s{sT}, s{s_h}, 384"); a.e(f"s_add_u32 s{sT}, s{sT}, {L_CS1}")
    a.e(f"v_lshlrev_b32 v{vC}, 4, v{vG}"); a.e(f"v_add_u32 v{vC}, s{sT}, v{vC}")
    a.e(f"v_lshlrev_b32 v{vC2}, 2, v{vI}"); a.e(f"v_add_u32 v{vC2}, s{sT}, v{vC2}")
    a.e(f"s_lshl_b32 s{sT}, s{sRH}, 9"); a.e(f"s_add_u32 s{sT}, s{sT}, {L_ST}")
    a.e(f"v_lshlrev_b32 v{vS1}, 3, v{vI}"); a.e(f"v_add_u32 v{vS1}, s{sT}, v{vS1}")
    a.e(f"v_lshlrev_b32 v{vS2}, 5, v{vG}"); a.e(f"v_add_u32 v{vS2}, s{sT}, v{vS2}")
    a.e(f"v_mov_b32 v241, {L_MODE}")
    for i in range(4): a.e(f"v_mov_b32 v{212+i}, 0")
    a.e(f"s_mov_b32 s{sCnt}, 16")
    a.e("s_nop 0")
    for i in range(0, 128, 16): a.e(f"v_mfma_f32_32x32x16_bf16 {v(i,16)}, {v(212,4)}, {v(212,4)}, 0")
    a.e("s_nop 7"); a.e("s_nop 3")
    a.e(f"s_cmp_eq_u32 s{sRH}, 1"); a.e("s_cbranch_scc1 g1c_r1")
    for rh in range(2):
        if rh: a.label("g1c_r1")
        def reads(b):
            g = []
            ws = [(1, 0), (1, 1), (2, 0), (2, 1), (0, 0), (0, 1)]
            xs = [0, 1, 2, 3, 4]
            wo = WSL if b == 0 else 0
            for i in range(6):
                if i < 5:
                    j = xs[i]
                    g.append(f"ds_read_b128 {v(xf(b,j),4)}, v{vXc+b} offset:{(4*rh + j) * 2048 if j else 0}")
                seg, ab = ws[i]
                g.append(f"ds_read_b64_tr_b16 {v(wf(b,seg,ab),2)}, v{vWc} offset:{wo + seg*1024 + ab*32}")
                g.append(f"ds_read_b64_tr_b16 {v(wf(b,seg,ab)+2,2)}, v{vWc} offset:{wo + seg*1024 + ab*32 + 512}")
            return g
        def mfs(b):
            zz = [(0, 4), (0, 3), (0, 2), (0, 1), (1, 1), (1, 2), (1, 3), (1, 4)]
            Q = [mfma(aq(j, ab), wf(b, 0, ab), xf(b, j)) for ab, j in zz]
            K = [mfma(ak(j, ab), wf(b, 1, ab), xf(b, j)) for ab, j in zz]
            V = [mfma(av(j, ab), xf(b, j), wf(b, 2, ab)) for ab, j in zz]
            Hq = [mfma(AQH, wf(b, 0, rh), xf(b, 0))]
            if rh == 0: return V + Hq + [mfma(ak(0, ab), wf(b, 1, ab), xf(b, 0)) for ab in (1, 0)] + K + Q
            return Hq + [mfma(av(0, ab), xf(b, 0), wf(b, 2, ab)) for ab in (1, 0)] + V + K + Q
        advW = [[f"s_add_u32 s{sSl}, s{sSl}, {2*WSL}", f"s_cmp_eq_u32 s{sSl}, {RW * WSL}"], [f"s_cselect_b32 s{sSl}, 0, s{sSl}"],
                [f"v_add_u32 v{vWc}, s{sSl}, v{vW0}"]]
        advA = [[f"s_add_u32 s{sAs}, s{sAs}, {AS}", f"s_cmp_eq_u32 s{sAs}, {RA * AS}"], [f"s_cselect_b32 s{sAs}, 0, s{sAs}"],
                [f"v_add_u32 v{vXc}, s{sAs}, v{vXa}"], [f"v_add_u32 v{vXc+1}, s{sAs}, v{vXa+1}"]]
        rdend = opt.get("g1rd", 17)
        def step(b, post):
            m = mfs(b); sl = {}
            spread(reads(1 - b), 0, rdend, sl)
            spread(post, rdend + 1, 25, sl)
            sl.setdefault(26, []).append("s_waitcnt vmcnt(0) lgkmcnt(0)" if b else "s_waitcnt lgkmcnt(0)")
            a.es(place(m, sl))
        ts(a, opt, PH, 0)
        a.e("s_barrier")
        ts(a, opt, PH, 1)
        a.es(reads(0))
        for gq in advW: a.es(gq)
        a.e("s_waitcnt lgkmcnt(0)")
        tsc(a, opt, PH, 6)
        a.label(f"g1c_loop{rh}")
        a.e("s_barrier")
        step(0, advA)
        step(1, advW + [[f"s_sub_u32 s{sCnt}, s{sCnt}, 1", f"s_cmp_lg_u32 s{sCnt}, 0"]])
        a.e(f"s_cbranch_scc1 g1c_loop{rh}")
        tsc(a, opt, PH, 7)
        ts(a, opt, PH, 2)
        CSQ = 116; MQ = 132; SV = 156; CSV = 196; CQ = 200; VP = 212
        if rh == 0:
            for i, r in enumerate((ak(4, 0), ak(4, 1), av(4, 0), av(4, 1))): a.e(f"ds_write_b128 v{vE}, {v(r,4)} offset:{i*1024}")
            a.e("s_mov_b32 exec_lo, 0x00010001"); a.e("s_mov_b32 exec_hi, 0x00010001")
            a.e(f"ds_write_b128 v{vC}, {v(AQH,4)}")
            for ab in range(2): a.e(f"ds_write_b128 v{vC}, {v(ak(0,ab),4)} offset:{128 + 64*ab}")
        else:
            for ab in range(2): a.e(f"ds_write_b128 v{vE}, {v(av(0,ab),4)} offset:{(4+ab)*1024}")
            a.e("s_mov_b32 exec_lo, 0x00010001"); a.e("s_mov_b32 exec_hi, 0x00010001")
            a.e(f"ds_write_b128 v{vC}, {v(AQH,4)} offset:64")
            a.e("s_mov_b64 exec, 0xffff")
            for ab in range(2): a.e(f"ds_write_b32 v{vC2}, v{av(0,ab)} offset:{256 + 64*ab}")
        a.e("s_mov_b64 exec, -1")
        a.e("s_waitcnt lgkmcnt(0)")
        a.e("s_barrier")
        for seg in range(2):
            for ab in range(2):
                a.e(f"ds_read_b128 {v(CSQ+(seg*2+ab)*4,4)}, v{vC} offset:{128*seg + 64*ab}")
        for j in (1, 2, 3, 4, 0):
            a.e(f"ds_read2_b32 {v(MQ+4*j,2)}, v{vS1} offset0:{32*j} offset1:{32*j}")
            a.e(f"ds_read2_b32 {v(MQ+4*j+2,2)}, v{vS1} offset0:{32*j+1} offset1:{32*j+1}")
        a.e("s_waitcnt lgkmcnt(2)")
        if rh == 0:
            for ab in range(2): a.e(f"ds_read_b128 {v(av(0,ab),4)}, v{vE} offset:{(4+ab)*1024}")
        else:
            for i, r in enumerate((ak(0, 0), ak(0, 1), av(0, 0), av(0, 1))): a.e(f"ds_read_b128 {v(r,4)}, v{vE} offset:{i*1024}")
        if rh == 0: a.e("s_branch g1c_epi")
    a.label("g1c_epi")
    a.e("ds_read_b32 v241, v241")
    for ab in range(2): a.e(f"ds_read2_b32 {v(CSV+2*ab,2)}, v{vC2} offset0:{64 + 16*ab} offset1:{64 + 16*ab}")
    ts(a, opt, PH, 3)
    NEGM = " neg_lo:[1,0,0] neg_hi:[1,0,0]"
    def svread(j):
        return [f"ds_read2_b32 {v(SV+8*j+2*k,2)}, v{vS2} offset0:{32*j + o} offset1:{32*j + o + 2}" for k, o in enumerate((0, 4, 1, 5))]
    def pack4(c): return [f"v_cvt_pk_bf16_f32 v{c+k}, v{c+2*k}, v{c+2*k+1}" for k in range(4)]
    def normq(j):
        c = aq(j, 0)
        return [f"v_pk_fma_f32 {v(c+r,2)}, {v(MQ+4*j,2)}, {v(CSQ+r,2)}, {v(c+r,2)}{NEGM}" for r in (0, 2, 4, 6)] + pack4(c) + \
               [f"v_mul_f32 v{CQ+j-1}, s{sSC}, v{MQ+4*j+2}"]
    def normk(j):
        c = ak(j, 0)
        return [f"v_pk_fma_f32 {v(c+r,2)}, {v(MQ+4*j,2)}, {v(CSQ+8+r,2)}, {v(c+r,2)}{NEGM}" for r in (0, 2, 4, 6)] + \
               [f"v_pk_mul_f32 {v(c+r,2)}, {v(MQ+4*j+2,2)}, {v(c+r,2)}" for r in (0, 2, 4, 6)] + pack4(c)
    for j in range(1, 5):
        a.es(normq(j)); a.es(svread(j))
        a.es(normk(j))
        if j == 2: a.e("s_waitcnt lgkmcnt(4)")
    a.es(svread(0))
    a.e("s_waitcnt lgkmcnt(4)")
    a.es(normk(0))
    a.e(f"v_readfirstlane_b32 s{sSLOW}, v241")
    S = [116, 124, 132, 140]
    J = range(4)
    set_mode(a, opt)
    for i in J:
        j = i + 1
        a.e(mfma(S[i], ak(j, 0), aq(j, 0), "0"))
        a.e(mfma(S[i] + 4, ak(j - 1, 0), aq(j, 0), "0"))
    for j in (1, 2, 3, 4, 0):
        if j == 0: a.e("s_waitcnt lgkmcnt(0)")
        for ab in range(2):
            c = av(j, ab)
            for k in range(2): a.e(f"v_pk_fma_f32 {v(c+2*k,2)}, {v(SV+8*j+2*k,2)}, {v(CSV+2*ab,2)}, {v(c+2*k,2)}{NEGM}")
            for k in range(2): a.e(f"v_pk_mul_f32 {v(c+2*k,2)}, {v(SV+8*j+4+2*k,2)}, {v(c+2*k,2)}")
            P = VP + ab * 10 + 2 * j
            a.e(f"v_cvt_pk_bf16_f32 v{P}, v{c}, v{c+1}")
            a.e(f"v_cvt_pk_bf16_f32 v{P+1}, v{c+2}, v{c+3}")
    res.g2_xold(a)
    X = [148, 150, 152, 154]; MX = [0, 1, 2, 3]; PP = [8, 12, 16, 20]; OO = [24, 32, 40, 48]; OP = [56, 60, 64, 68]; NEG = 4
    a.e(f"s_mov_b64 vcc, s[{sPAR}:{sPAR+1}]")
    a.e(f"v_mov_b32 v{NEG}, 0xf149f2ca")
    for i in J:
        for k in range(2):
            a.e(f"v_cndmask_b32 v{S[i]+2*k}, v{S[i]+2*k}, v{S[i]+2*k+1}, vcc")
            a.e(f"v_cndmask_b32 v{S[i]+4+2*k}, v{S[i]+4+2*k}, v{S[i]+4+2*k+1}, vcc")
        for k in range(2):
            a.e(f"v_cndmask_b32 v{X[i]+k}, v{S[i]+4+2*k}, v{S[i]+2*k}, s[{sCUR+2*k}:{sCUR+2*k+1}]")
    for k in range(2): a.e(f"v_cndmask_b32 v{X[0]+k}, v{NEG}, v{X[0]+k}, s[{sFM+2*k}:{sFM+2*k+1}]")
    def tred(op, mid=None):
        m = MX
        a.e("s_nop 0")
        a.e(f"v_permlane16_swap_b32 v{m[0]}, v{m[1]}"); a.e(f"v_permlane16_swap_b32 v{m[2]}, v{m[3]}")
        a.e(f"{op} v{m[0]}, v{m[0]}, v{m[1]}"); a.e(f"{op} v{m[2]}, v{m[2]}, v{m[3]}")
        a.e("s_nop 1")
        a.e(f"v_permlane32_swap_b32 v{m[0]}, v{m[2]}")
        a.e(f"{op} v{m[0]}, v{m[0]}, v{m[2]}")
        if mid: a.e(f"{mid} v{m[0]}, v{m[0]}"); a.e("s_nop 0")
        a.e(f"v_mov_b32 v{m[2]}, v{m[0]}")
        a.e("s_nop 1")
        a.e(f"v_permlane32_swap_b32 v{m[0]}, v{m[2]}")
        a.e(f"v_mov_b32 v{m[1]}, v{m[0]}"); a.e(f"v_mov_b32 v{m[3]}, v{m[2]}")
        a.e("s_nop 0")
        a.e(f"v_permlane16_swap_b32 v{m[0]}, v{m[1]}"); a.e(f"v_permlane16_swap_b32 v{m[2]}, v{m[3]}")
    for i in J: a.e(f"v_max_f32 v{MX[i]}, v{X[i]}, v{X[i]+1}")
    tred("v_max_f32")
    for i in J:
        for k in range(2): a.e(f"v_sub_f32 v{X[i]+k}, v{X[i]+k}, v{MX[i]}")
    for i in J:
        for k in range(2): a.e(f"v_mul_f32 v{X[i]+k}, v{CQ+i}, v{X[i]+k}")
    for i in J:
        for k in range(2): a.e(f"v_exp_f32 v{X[i]+k}, v{X[i]+k}")
    for i in J: a.e(f"v_add_f32 v{MX[i]}, v{X[i]}, v{X[i]+1}")
    tred("v_add_f32", "v_rcp_f32")
    for i in J:
        for k in range(2): a.e(f"v_mul_f32 v{X[i]+k}, v{X[i]+k}, v{MX[i]}")
        for k in range(2): a.e(f"v_cvt_pk_bf16_f32 v{X[i]+k}, v{X[i]+k}, v{X[i]+k}")
        for k in range(4): a.e(f"v_and_b32 v{PP[i]+k}, v{X[i]+(k&1)}, v{vMK+k}")
        if i:
            for ab in range(2): a.e(mfma(OO[i-1] + 4 * ab, VP + ab * 10 + 2 * (i-1), PP[i-1], "0"))
    for ab in range(2): a.e(mfma(OO[3] + 4 * ab, VP + ab * 10 + 6, PP[3], "0"))
    a.e(f"s_cmp_lg_u32 s{sHF}, 0"); a.e("s_cbranch_scc1 g1c_rem")
    def outs(fl):
        o = []
        for i in J:
            o += [f"v_cvt_pk_bf16_f32 v{OP[i]+k}, v{OO[i]+2*k}, v{OO[i]+2*k+1}" for k in range(4)]
            o.append(f"buffer_store_dwordx4 {v(OP[i],4)}, v{vL16}, s[{SW}:{SW+3}], s{sO} offen offset:{i*1024}{fl}")
        return o
    a.es(outs(""))
    a.label("g1c_remb")
    a.ool(["g1c_rem:"] + outs(SC) + ["s_branch g1c_remb"])
    ts(a, opt, PH, 4)
    signal(a, PH, 108, 109)
    ts(a, opt, PH, 5)
```

```python
from common import *
import res

AS = 8192; LW = 36736; WSL = 28800; WM = 14400; WR = 7200; PW = 7168
PH = 2
def wph(st): return (st + 1) % 4


def sharer(a, dst):
    a.e(f"s_add_u32 s{dst}, s{sK4}, s{sQ}"); a.e(f"s_lshl_b32 s{dst}, s{dst}, 1"); a.e(f"s_add_u32 s{dst}, s{dst}, s{sHF}")


class G3:
    def __init__(self, a, opt, cls):
        self.gen = g3(a, opt, cls, self)
    def w_setup(self): next(self.gen)
    def nxt(self, vm, n):
        def mk(st, k):
            def f():
                self.a.es(self.dmaW(st, range(7))[k]); vm.op()
            return f
        return [(LW + wph(st) * WSL, LW + (wph(st) + 1) * WSL, mk(st, k)) for st in range(n) for k in range(7)]
    def run(self, npre, prev_signal=None):
        self.prev_signal = prev_signal
        assert npre % 7 == 0
        self.npre = npre // 7
        for _ in self.gen: pass


def g3(a, opt, cls, self):
    self.a = a
    NP = 4 - cls
    nW0 = opt.get("g3nw0", 4)
    ks_ = list(range(7 - nW0, 7)) if cls == 0 else list(range(0, 7 - nW0))
    n = len(ks_) + 2 * cls
    sW = 8
    sWo, sWlo, sWhi, sWm = 16, 17, 18, 19
    sAo, sAlo, sAhi, sAm = 20, 21, 22, 23
    sCnt, sH, sH2, sHK, sC0 = 24, 25, 26, 27, 28
    sMS, sRS, sSH = 32, 33, 34
    if cls == 0:
        WF = 128; WFS = 32; XF = 192; AD = 224
    else:
        WF = 96; WFS = 24; XF = 144; TMP = 176; AD = 228
    vWp = AD
    vXa = AD + 7; vWa = AD + 8
    vWb = AD + 10
    tag = f"g3c{cls}"
    def acc(mat, t, rt): return ((mat * NP + t) * 4 + rt) * 4
    def wf(b, mat, t): return WF + b * WFS + (mat * NP + t) * 4
    def xf(b, rt): return XF + b * 16 + rt * 4
    def wreg(k): return vWp + (k if cls else k - (7 - nW0))
    a.e(f"s_and_b32 s{sT}, s{sWAVE}, 1")
    a.e(f"s_cmp_eq_u32 s{sT}, 0")
    a.e(f"s_cselect_b32 s{sW}, s{pW1}, s{pW3}")
    a.e(f"s_cselect_b32 s{sW+1}, s{pW1+1}, s{pW3+1}")
    a.e(f"s_mov_b32 s{sW+2}, {1024 * PW}")
    a.e(f"s_mov_b32 s{sW+3}, 0x00020000")
    a.e(f"s_mul_i32 s{sWm}, s{sT}, {WM}")
    a.e(f"s_lshr_b32 s{sT}, s{sW4}, 1")
    a.e(f"s_mul_i32 s{sT2}, s{sT}, {WR}")
    a.e(f"s_add_u32 s{sWm}, s{sWm}, s{sT2}")
    a.e(f"s_add_u32 s{sWm}, s{sWm}, {LW}")
    a.e(f"s_mul_i32 s{sWlo}, s{sT}, {4 * PW}")
    a.e(f"s_mul_i32 s{sT2}, s{sNT}, 448")
    a.e(f"s_add_u32 s{sWlo}, s{sWlo}, s{sT2}")
    a.e(f"s_add_u32 s{sWhi}, s{sWlo}, {1024 * PW}")
    LA = opt.get("g3la", 3)
    first = 0 if cls else LA
    a.e(f"s_lshl_b32 s{sT}, s{sK3}, 1")
    if first: a.e(f"s_add_u32 s{sT}, s{sT}, {first}"); a.e(f"s_and_b32 s{sT}, s{sT}, 31")
    a.e(f"s_mul_i32 s{sT2}, s{sT}, {32 * PW}")
    a.e(f"s_add_u32 s{sWo}, s{sWlo}, s{sT2}")
    a.e(f"s_mov_b32 s{sT3}, 2341")
    for k in (range(7) if cls else ks_):
        a.e(f"v_add_u32 v{vT0}, {64 * k}, v{vL}")
        a.e(f"v_mul_lo_u32 v{vT1}, v{vT0}, s{sT3}")
        a.e(f"v_lshrrev_b32 v{vT1}, 16, v{vT1}")
        a.e(f"v_mul_u32_u24 v{wreg(k)}, 28, v{vT1}")
        a.e(f"v_sub_u32 v{vT0}, v{vT0}, v{wreg(k)}")
        a.e(f"v_and_b32 v{wreg(k)}, 12, v{vT1}")
        a.e(f"v_add_u32 v{vT1}, v{vT1}, v{wreg(k)}")
        a.e(f"v_mul_u32_u24 v{vT1}, {PW}, v{vT1}")
        a.e(f"v_lshl_add_u32 v{wreg(k)}, v{vT0}, 4, v{vT1}")
    def dmaW(st, ks):
        g = []
        for k in ks:
            g.append([f"s_add_u32 m0, s{sWm}, {wph(st) * WSL + 1024 * k}", "s_nop 0",
                      f"buffer_load_dwordx4 v{wreg(k)}, s[{sW}:{sW+3}], s{sWo} offen lds"])
        adv = [f"s_add_u32 s{sWo}, s{sWo}, {32 * PW}", f"s_cmp_eq_u32 s{sWo}, s{sWhi}", f"s_cselect_b32 s{sWo}, s{sWlo}, s{sWo}"]
        if g: g[-1] = g[-1] + adv
        return g
    advA = [f"s_add_u32 s{sAo}, s{sAo}, 8192", f"s_cmp_eq_u32 s{sAo}, s{sAhi}", f"s_cselect_b32 s{sAo}, s{sAlo}, s{sAo}"]
    def dmaA(st):
        if cls == 0: return []
        return [[f"s_add_u32 m0, s{sAm}, {(st % 4) * AS}", "s_nop 0",
                 f"buffer_load_dwordx4 v{vL16}, s[{SW}:{SW+3}], s{sAo} offen sc1 lds"],
                [f"s_add_u32 m0, s{sAm}, {(st % 4) * AS}", "s_nop 0",
                 f"buffer_load_dwordx4 v{vL16}, s[{SW}:{SW+3}], s{sAo} offen offset:1024 sc1 lds"] + advA]
    self.dmaW = dmaW
    yield
    vm = VM(a)
    nPre = self.npre
    if cls:
        a.e(f"s_and_b32 s{sT}, s{sW4}, 2"); a.e(f"s_xor_b32 s{sMS}, s{sMT}, s{sT}")
        a.e(f"s_lshl_b32 s{sAlo}, s{sLAY}, 23")
        a.e(f"s_lshl_b32 s{sT}, s{sMS}, 18"); a.e(f"s_add_u32 s{sAlo}, s{sAlo}, s{sT}")
        a.e(f"s_lshl_b32 s{sT}, s{sHF}, 1"); a.e(f"s_and_b32 s{sT2}, s{sW4}, 1"); a.e(f"s_add_u32 s{sRS}, s{sT}, s{sT2}")
        a.e(f"s_lshl_b32 s{sT}, s{sRS}, 11"); a.e(f"s_add_u32 s{sAlo}, s{sAlo}, s{sT}")
        a.e(f"s_lshl_b32 s{sAm}, s{sW4}, 11")
        a.e(f"s_add_u32 s{sAhi}, s{sAlo}, {32 * 8192}")
        a.e(f"s_lshl_b32 s{sT}, s{sK3}, 14"); a.e(f"s_add_u32 s{sAo}, s{sAlo}, s{sT}")
        sharer(a, sSH)
    a.e(f"s_and_b32 s{sT}, s{sWAVE}, 1"); a.e(f"s_lshl_b32 s{sT}, s{sT}, 12")
    a.e(f"v_add_u32 v{vXa}, s{sT}, v{vL16}")
    a.e(f"v_lshrrev_b32 v{vT0}, 1, v{vG}")
    a.e(f"v_lshrrev_b32 v{vT1}, 2, v{vI}")
    a.e(f"v_lshl_add_u32 v{vT0}, v{vT0}, 2, v{vT1}")
    a.e(f"v_mul_u32_u24 v{vT0}, 448, v{vT0}")
    a.e(f"v_and_b32 v{vT1}, 1, v{vG}")
    a.e(f"v_mul_u32_u24 v{vT1}, {WR}, v{vT1}")
    a.e(f"v_add_u32 v{vT0}, v{vT0}, v{vT1}")
    a.e(f"v_and_b32 v{vT1}, 3, v{vI}")
    a.e(f"v_lshl_add_u32 v{vT0}, v{vT1}, 3, v{vT0}")
    a.e(f"v_add_u32 v{vT0}, {LW}, v{vT0}")
    a.e(f"s_lshr_b32 s{sT}, s{sW4}, 1")
    a.e(f"s_lshl_b32 s{sC0}, s{sT}, 2")
    if cls: a.e(f"s_add_u32 s{sC0}, s{sC0}, 8")
    a.e(f"s_lshl_b32 s{sT2}, s{sC0}, 5")
    a.e(f"v_add_u32 v{vWa}, s{sT2}, v{vT0}")
    a.e(f"v_add_u32 v{vWa+1}, {2 * WSL}, v{vWa}")
    if cls:
        a.e(f"s_add_u32 s{sT2}, s{sT}, 10"); a.e(f"s_lshl_b32 s{sT2}, s{sT2}, 5")
        a.e(f"v_add_u32 v{vWb}, s{sT2}, v{vT0}")
        a.e(f"v_add_u32 v{vWb+1}, {2 * WSL}, v{vWb}")
        vCa = TMP + 48
        a.e(f"s_mul_i32 s{sT2}, s{sT}, 224")
        a.e(f"s_and_b32 s{sT}, s{sWAVE}, 1"); a.e(f"s_mul_i32 s{sT}, s{sT}, {WM}"); a.e(f"s_add_u32 s{sT2}, s{sT2}, s{sT}")
        a.e(f"v_add_u32 v{vCa}, s{sT2}, v{vT0}")
        for i in range(4): a.e(f"v_mov_b32 v{TMP+44+i}, 0x{ONES:08x}")
    res.h_base(a, sH)
    a.e(f"s_and_b32 s{sT}, s{sNT}, 7"); a.e(f"s_mul_i32 s{sT}, s{sT}, {7 * 8192}"); a.e(f"s_add_u32 s{sH}, s{sH}, s{sT}")

    def reads(st):
        b = st & 1; sl = st % 4; g = []
        for rt in range(4):
            g.append(f"ds_read_b128 {v(xf(b,rt),4)}, v{vXa} offset:{sl * AS + rt * 1024}")
        for t in range(NP):
            for mat in range(2):
                third = cls and t == 2
                reg = (vWb if third else vWa) + (wph(st) >> 1)
                off = (wph(st) & 1) * WSL + mat * WM + (0 if third else 32 * t)
                g.append(f"ds_read_b64_tr_b16 {v(wf(b,mat,t),2)}, v{reg} offset:{off}")
                g.append(f"ds_read_b64_tr_b16 {v(wf(b,mat,t)+2,2)}, v{reg} offset:{off + 3584}")
        return g
    def mfmas(st, zero=False):
        b = st & 1
        mo = opt.get("g3mo", 1)
        W_ = [(t, mat) for t in range(NP) for mat in range(2)]
        if mo == 0: od = [(w, rt) for w in W_ for rt in range(4)]
        elif mo == 1: od = [(w, rt if i % 2 == 0 else 3 - rt) for i, w in enumerate(W_) for rt in range(4)]
        elif mo == 2: od = [(w, rt) for rt in range(4) for w in W_]
        elif mo == 3: od = [(w, rt) for rt in range(4) for w in (W_ if rt % 2 == 0 else W_[::-1])]
        elif mo == 4: od = [(W_[(i + rt) % len(W_)], rt) for i in range(len(W_)) for rt in range(4)]
        return [mfma(acc(mat, t, rt), wf(b, mat, t), xf(b, rt), "0" if zero else None) for (t, mat), rt in od]
    def merge(A, B):
        if not B: return list(A)
        out = []; j = 0
        for i, g in enumerate(A):
            out.append(g)
            want = ((i + 1) * len(B)) // len(A)
            while j < want: out.append(B[j]); j += 1
        return out + B[j:]
    def step(st, dma=True, rd=True, zero=False, extra=None, track=False, fill=None, fill0=0, nvm=0, pre=None, first=None):
        m = mfmas(st, zero); sl = {}
        r = [[x] for x in reads(st + 1)] if rd else []
        d = (dmaW(st + LA, ks_) + dmaA(st + LA)) if dma else []
        if first: d = first + d
        if track:
            for _ in d: vm.op(("D", st + LA))
            for _ in range(nvm): vm.op("X")
        spread(merge(r, d) if r else d, 0, int(len(m) * opt.get("g3rd", 0.8)), sl)
        if pre: sl[-1] = list(pre)
        if fill: spread(fill, fill0, len(m) - 1, sl)
        for frac, grp in (extra or []): sl.setdefault(int(frac * (len(m) - 1)), []).extend(grp)
        a.es(place(m, sl))

    def colsum_hook(tgt):
        l = a.new("cs")
        a.e(f"s_cmp_eq_u32 s{sHK}, {tgt >> 1}")
        a.e(f"s_cbranch_scc1 {l}")
        a.label(f"{l}_b")
        CA = TMP; CFR = TMP + 28; ON = TMP + 44; vCa = TMP + 48; vX = TMP + 49
        o = [f"{l}:", f"v_add_u32 v{vX}, {wph(tgt) * WSL}, v{vCa}"]
        for t0, t1 in ((0, 4), (4, 7)):
            for t in range(t0, t1):
                o.append(f"ds_read_b64_tr_b16 {v(CFR+4*(t-t0),2)}, v{vX} offset:{32*t}")
                o.append(f"ds_read_b64_tr_b16 {v(CFR+4*(t-t0)+2,2)}, v{vX} offset:{32*t + 3584}")
            o.append("s_waitcnt lgkmcnt(0)")
            for t in range(t0, t1):
                o.append(mfma(CA + 4 * t, CFR + 4 * (t - t0), ON, "0" if tgt % 2 == 0 else None))
            o.append("s_nop 7")
        if tgt % 2 == 1:
            o += [f"s_lshl_b32 s{sT}, s{sSH}, 1", f"s_and_b32 s{sT2}, s{sWAVE}, 1", f"s_add_u32 s{sT}, s{sT}, s{sT2}",
                  f"s_mul_i32 s{sT}, s{sT}, {3584 * 4}", f"s_mul_i32 s{sT2}, s{sNT}, 896", f"s_add_u32 s{sT}, s{sT}, s{sT2}",
                  f"s_lshr_b32 s{sT2}, s{sW4}, 1", f"s_mul_i32 s{sT2}, s{sT2}, 448", f"s_add_u32 s{sT}, s{sT}, s{sT2}",
                  f"s_add_u32 s{sT}, s{sT}, {M_CS}", f"v_lshlrev_b32 v{vX}, 4, v{vG}",
                  "s_mov_b32 exec_lo, 0x00010001", "s_mov_b32 exec_hi, 0x00010001"]
            for t in range(7):
                o.append(f"buffer_store_dwordx4 {v(CA+4*t,4)}, v{vX}, s[{SW}:{SW+3}], s{sT} offen offset:{64*t}{SC}")
            o += ["s_mov_b64 exec, -1", "s_nop 3"]
        o.append(f"s_branch {l}_b")
        a.ool(o)

    ts(a, opt, PH, 0)
    if cls == 0:
        for i in range(4): a.e(f"v_mov_b32 v{XF+i}, 0")
        a.e("s_nop 1")
        for i in range(0, 128, 16):
            a.e(f"v_mfma_f32_32x32x16_bf16 {v(i,16)}, {v(XF,4)}, {v(XF,4)}, 0")
        tt = opt.get("vw2", 1)
        if tt:
            make_srd(a, 12, pW2, 3584 * 2048)
            a.e(f"s_lshl_b32 s34, s2, 2"); a.e(f"s_add_u32 s34, s34, s{sWAVE}"); a.e("s_mul_i32 s34, s34, 7168")
            a.e(f"s_cmp_eq_u32 s{sLAY}, 0"); a.e("s_cselect_b32 s34, s34, 0x40000000")
            a.e(f"v_lshlrev_b32 v247, 7, v{vL}"); a.e(f"v_and_b32 v248, 56, v{vL}"); a.e("v_lshl_add_u32 v247, v248, 24, v247")
        tgrp = ["buffer_load_dword v248, v247, s[12:15], s34 offen", "s_add_u32 s34, s34, 1024"]
        a.e("s_barrier")
        ts(a, opt, PH, 1)
        a.es(reads(0))
        tsc(a, opt, PH, 6)
        a.e(f"s_mov_b32 s{sCnt}, 7")
        a.label(f"{tag}_loop")
        assert LA == 3
        for st in range(4):
            a.e(f"s_waitcnt vmcnt({n + (tt if st in (1, 2) else 0)}) lgkmcnt(0)"); a.e("s_barrier")
            if opt.get("tl") == "g3":
                a.e(f"s_memtime s[{sTS}:{sTS+1}]"); a.e("s_waitcnt lgkmcnt(0)")
                a.e(f"s_lshl_b32 s{sTS+1}, s{sCnt}, 2"); a.e(f"s_sub_u32 s{sTS+1}, {28 + st}, s{sTS+1}")
                a.e(f"s_lshl_b32 s{sT}, s{sLAY}, 5"); a.e(f"s_add_u32 m0, s{sT}, s{sTS+1}"); a.e("s_nop 0")
                a.e(f"v_writelane_b32 v246, s{sTS}, m0")
            step(st, extra=[(0.9, tgrp)] if (tt and st == 0) else None)
        a.e(f"s_sub_u32 s{sCnt}, s{sCnt}, 1"); a.e(f"s_cmp_lg_u32 s{sCnt}, 0"); a.e(f"s_cbranch_scc1 {tag}_loop")
        if opt.get("tl") == "g3":
            a.e(f"s_lshl_b32 s{sT}, s2, 3"); a.e(f"s_add_u32 s{sT}, s{sT}, s{sWAVE}"); a.e(f"s_mul_i32 s{sT}, s{sT}, 768"); a.e(f"s_add_u32 s{sT}, s{sT}, {M_TS + MB}")
            a.e(f"v_lshlrev_b32 v{vT0}, 2, v{vL}")
            a.e(f"buffer_store_dword v246, v{vT0}, s[{SW}:{SW+3}], s{sT} offen")
    else:
        a.e(f"s_cmp_eq_u32 s{sLAY}, {5 if opt.get('dbgnocs') else 0}"); a.e(f"s_cselect_b32 s{sHK}, 0, 8"); a.e(f"s_and_b32 s{sT}, s{sSH}, 3"); a.e(f"s_or_b32 s{sHK}, s{sHK}, s{sT}")
        flag_off(a, 35, PH - 1)
        a.e(f"s_lshl_b32 s{sT2}, s{sHF}, 3"); a.e(f"s_add_u32 s35, s35, s{sT2}")
        a.e(f"v_lshlrev_b32 v{res.vPO}, 5, v{vL}")
        a.e(f"s_lshl_b32 s36, s{sLAY}, 12"); a.e(f"s_add_u32 s36, s36, {M_RF}")
        a.e(f"s_xor_b32 s37, s{sMT}, 2"); a.e("s_lshl_b32 s37, s37, 1"); a.e(f"s_add_u32 s37, s37, s{sHF}"); a.e("s_lshl_b32 s37, s37, 7"); a.e("s_add_u32 s37, s37, s36")
        lr = a.new("lr")
        a.e(f"s_cmp_ge_u32 s{sW4}, 2"); a.e(f"s_cbranch_scc1 {lr}")
        poll(a, 35, res.vPO, res.vPL, 2, "0xffff")
        relay(a, "s36", res.vPL + 2, res.vPL + 3)
        a.e(f"s_branch {lr}_d")
        a.label(lr)
        poll(a, 37, res.vPO, res.vPL, 1, "1")
        a.label(f"{lr}_d")
        ts(a, opt, PH, 1)
        for st in range(2):
            for gq in dmaA(st): a.es(gq); vm.op(("D", st))
        late = []
        for st in range(2, LA):
            late += [(gq, st) for gq in (dmaW(st, range(7)) if st >= nPre else []) + dmaA(st)]
        ne = opt.get("g3e", 4)
        for gq, st in late[:ne]: a.es(gq); vm.op(("D", st))
        vm.wait(("D", 0)); a.e("s_barrier")
        a.es(reads(0))
        for gq, st in late[ne:]: a.es(gq); vm.op(("D", st))
        colsum_hook(0)
        tsc(a, opt, PH, 6)
        vX = TMP + 49
        def lines(fn):
            h = Asm(); h.uid = a.uid + 500; fn(h); a.uid = h.uid
            a.tail += h.tail
            return [x.strip() for x in h.L]
        def tree(h):
            for w in (4, 2, 1):
                for i in range(w):
                    for r in range(4): h.e(f"v_add_f32 v{TMP+4*i+r}, v{TMP+4*i+r}, v{TMP+4*(i+w)+r}")
        def st_setup(h):
            h.e(f"s_lshl_b32 s{sH2}, s{sMS}, 15"); h.e(f"s_lshl_b32 s{sT2}, s{sLAY}, 20"); h.e(f"s_add_u32 s{sH2}, s{sH2}, s{sT2}")
            h.e(f"s_lshl_b32 s{sT2}, s{sRS}, 8"); h.e(f"s_add_u32 s{sH2}, s{sH2}, s{sT2}"); h.e(f"s_add_u32 s{sH2}, s{sH2}, {M_ST}")
            stats_lane(h, vX)
        def st_loads(lo):
            o = []
            for i in range(lo, lo + 4):
                o.append([f"buffer_load_dwordx4 {v(TMP+4*i,4)}, v{vX}, s[{SW}:{SW+3}], s{sH2} offen offset:{(i&3)*1024} sc1"] +
                         ([f"s_add_u32 s{sH2}, s{sH2}, 4096"] if i == 3 else []))
            return o
        def st_red(h):
            h.e(f"s_lshl_b32 s{sH2}, s{sW4}, 8"); h.e(f"s_add_u32 s{sH2}, s{sH2}, {L_ST}")
            stats_reduce(h, TMP, 8, vX, f"s{sH2}")
        def cf_flag():
            l = a.new("cf")
            a.e(f"s_cmp_eq_u32 s{sLAY}, {5 if opt.get('dbgnocs') else 0}"); a.e(f"s_cbranch_scc1 {l}"); a.label(f"{l}_b")
            a.ool([f"{l}:", f"s_lshl_b32 s{sT}, s{sNT}, 4", f"s_add_u32 s{sT}, s{sT}, s{sSH}", f"s_lshl_b32 s{sT}, s{sT}, 3",
                   f"s_add_u32 s{sT}, s{sT}, s{sW4}", f"s_lshl_b32 s{sT}, s{sT}, 2", f"s_add_u32 s{sT}, s{sT}, {M_CF}",
                   f"v_mov_b32 v{TMP+40}, 0", f"v_mov_b32 v{TMP+41}, 1", "s_mov_b64 exec, 1",
                   f"buffer_store_dword v{TMP+41}, v{TMP+40}, s[{SW}:{SW+3}], s{sT} offen{SC}", "s_mov_b64 exec, -1", f"s_branch {l}_b"])
        red = [[x] for x in lines(st_red)]
        for st in range(12):
            tags = [("D", st + 1)] + (["X"] if st == 10 else [])
            vm.wait(tags, "lgkmcnt(0)"); a.e("s_barrier")
            if st < 7: colsum_hook(st + 1)
            if st == 9: cf_flag()
            kw = {}
            if st == 7: kw = dict(fill=st_loads(0), fill0=20, nvm=4, extra=[(0.3, lines(st_setup))])
            if st == 8: kw = dict(fill=st_loads(4), fill0=20, nvm=4)
            if st == 10: kw = dict(fill=red[:34])
            if st == 11: kw = dict(fill=red[34:])
            step(st, zero=(st == 0), track=True, **kw)
        a.e(f"s_mov_b32 s{sCnt}, 4")
        a.e(f"s_cmp_eq_u32 s{sLAY}, {5 if opt.get('dbgnocs') else 0}"); a.e(f"s_cselect_b32 s{sHK}, 6, 0")
        a.label(f"{tag}_loop")
        for st in range(4):
            a.e(f"s_waitcnt vmcnt({(LA - 2) * n}) lgkmcnt(0)"); a.e("s_barrier")
            if st == 0:
                a.e(f"s_bitcmp1_b32 s{sHK}, s{sCnt}"); a.e(f"s_cbranch_scc1 {tag}_hook"); a.label(f"{tag}_hb")
            step(st)
        a.e(f"s_sub_u32 s{sCnt}, s{sCnt}, 1"); a.e(f"s_cmp_lg_u32 s{sCnt}, 0"); a.e(f"s_cbranch_scc1 {tag}_loop")
        def hooks(h):
            F = TMP + 40
            h.label(f"{tag}_hook")
            h.e(f"s_lshl_b32 s{sT}, s{sNT}, 9"); h.e(f"s_add_u32 s{sT}, s{sT}, {M_CF}")
            h.e(f"v_lshlrev_b32 v{vX}, 5, v{vI}")
            h.e(f"s_cmp_eq_u32 s{sCnt}, 1"); h.e(f"s_cbranch_scc1 {tag}_h1")
            h.e(f"buffer_load_dwordx4 {v(F,4)}, v{vX}, s[{SW}:{SW+3}], s{sT} offen sc1")
            h.e(f"s_branch {tag}_hb")
            h.label(f"{tag}_h1")
            h.e(f"v_and_b32 v{F}, v{F}, v{F+1}"); h.e(f"v_and_b32 v{F+2}, v{F+2}, v{F+3}"); h.e(f"v_and_b32 v{F}, v{F}, v{F+2}")
            h.e(f"v_cmp_ne_u32 vcc, 1, v{F}")
            h.e(f"s_cbranch_vccz {tag}_h1b")
            poll(h, sT, vX, F, 4, "0xffff", acquire=False)
            h.label(f"{tag}_h1b")
            h.e(f"s_branch {tag}_hb")
        a.ool(lines(hooks))
        def cs_setup(h):
            h.e(f"s_and_b32 s{sH2}, s{sWAVE}, 1"); h.e(f"s_mul_i32 s{sH2}, s{sH2}, {3584 * 4}")
            h.e(f"s_mul_i32 s{sT2}, s{sNT}, 896"); h.e(f"s_add_u32 s{sH2}, s{sH2}, s{sT2}")
            h.e(f"s_lshr_b32 s{sT2}, s{sW4}, 1"); h.e(f"s_mul_i32 s{sT2}, s{sT2}, 448"); h.e(f"s_add_u32 s{sH2}, s{sH2}, s{sT2}")
            h.e(f"s_add_u32 s{sH2}, s{sH2}, {M_CS}")
            h.e(f"v_and_b32 v{vX}, 31, v{vL}"); h.e(f"v_min_u32 v{vX}, 27, v{vX}"); h.e(f"v_lshlrev_b32 v{vX}, 4, v{vX}")
            h.e(f"v_lshrrev_b32 v{vT0}, 5, v{vL}"); h.e(f"v_mul_u32_u24 v{vT0}, {8 * 28672}, v{vT0}"); h.e(f"v_add_u32 v{vX}, v{vT0}, v{vX}")
        lcs = a.new("cl")
        csld = [lines(cs_setup)]
        for i in range(8):
            csld.append([f"s_cmp_lg_u32 s{sLAY}, 0", f"s_cbranch_scc1 {lcs}_{i}",
                         f"buffer_load_dwordx4 {v(TMP+4*i,4)}, v{vX}, s[{SW}:{SW+3}], s{sH2} offen sc1", f"s_add_u32 s{sH2}, s{sH2}, 28672", f"{lcs}_{i}:"])
        def cs_red(h):
            tree(h)
            for i in range(4): h.e(f"v_mov_b32 v{TMP+4+i}, v{TMP+i}")
            h.e("s_nop 1")
            for i in range(4): h.e(f"v_permlane32_swap_b32 v{TMP+i}, v{TMP+4+i}")
            for i in range(4): h.e(f"v_add_f32 v{TMP+i}, v{TMP+i}, v{TMP+4+i}")
        csl = [[x] for x in lines(cs_red)]
        csl.append([f"s_and_b32 s{sT}, s{sWAVE}, 1", f"s_mul_i32 s{sT}, s{sT}, 896", f"s_lshr_b32 s{sT2}, s{sW4}, 1",
                    f"s_mul_i32 s{sT2}, s{sT2}, 448", f"s_add_u32 s{sT}, s{sT}, s{sT2}", f"s_add_u32 s{sT}, s{sT}, {L_CS3}",
                    f"v_add_u32 v{vX}, s{sT}, v{vL16}", f"s_cmp_lg_u32 s{sLAY}, 0", f"s_cbranch_scc1 {tag}_ncs",
                    "s_mov_b64 exec, 0x0fffffff", f"ds_write_b128 v{vX}, {v(TMP,4)}", "s_mov_b64 exec, -1", f"{tag}_ncs:"])
    vY = 247
    def touch(k):
        o = [f"v_lshlrev_b32 v{vY}, 7, v{vL}", f"s_add_u32 s29, s{sWAVE}, {8*k}", f"s_lshl_b32 s30, s29, 12", f"s_add_u32 s30, s30, s{sH}",
             f"s_cmp_lt_u32 s29, s{sHK}", f"s_cselect_b32 s30, s30, 0x7f000000", "s_mov_b64 exec, 0xffffffff",
             f"buffer_load_dword v248, v{vY}, s[{SW}:{SW+3}], s30 offen sc1", "s_mov_b64 exec, -1"]
        return o
    a.e(f"s_sub_u32 s{sHK}, s{sNT}, s{sK4}"); a.e(f"s_and_b32 s{sHK}, s{sHK}, 7")
    a.e(f"s_cmp_lt_u32 s{sHK}, {opt.get('htouch', 4)}"); a.e(f"s_cselect_b32 s{sHK}, 14, 0")
    pf = []
    if cls:
        for st in range(res.CFG[3]['RW']): pf += res.res_w_issue(3, st)
    n300 = opt.get("g3pf300", 8); n30 = opt.get("g3pf30", 6); n31 = opt.get("g3pf31", 6)
    d28 = (LA == 3)
    if opt.get("noptH"): ex = [[], []]
    elif opt.get("hsc1"):
        a.e(f"s_and_b32 s{sT}, s{sWAVE}, 6"); a.e(f"s_cmp_eq_u32 s{sT}, 2"); a.e(f"s_cselect_b32 s{sHK}, 14, 0")
        ex = [[], [(0.05, touch(1))] if cls == 0 else []]
    elif d28: ex = [[], [(0.05, touch(0)), (0.55, touch(1))] if cls == 0 else [(0.3, touch(0)), (0.9, touch(1))]]
    else: ex = [[(0.05, touch(0))], [(0.05, touch(1))]] if cls == 0 else [[(0.6, touch(0))], [(0.6, touch(1))]]
    a.e(f"s_waitcnt vmcnt({(LA - 2) * n}) lgkmcnt(0)"); a.e("s_barrier")
    step(28, dma=d28, extra=ex[0], first=csld if cls else None)
    a.e(f"s_waitcnt vmcnt({n + len(ex[0])}) lgkmcnt(0)"); a.e("s_barrier")
    step(29, dma=False, extra=ex[1], fill=(csl + [[x] for x in lines(lambda h: res.res_w_setup(h, 3))]) if cls else None)
    a.e(f"s_waitcnt vmcnt({len(ex[1]) + (0 if d28 else len(ex[0]))}) lgkmcnt(0)"); a.e("s_barrier")
    if opt.get("g3tp", 1): a.e(f"s_setprio {2 if cls == 0 else 1}")
    m = mfmas(30); sl = {}
    if cls == 0:
        spread([[x] for x in reads(31)], 0, 13, sl)
        sl.setdefault(20, []).extend(["s_waitcnt lgkmcnt(0)", "s_barrier"])
    else:
        sl[-1] = reads(31) + ["s_waitcnt lgkmcnt(0)"] + [x for gq in pf[:2] for x in gq] + ["s_barrier"] + [x for gq in pf[2:n300] for x in gq]
        spread(pf[n300:n300 + n30], 0, len(m) - 1, sl)
    a.es(place(m, sl))
    pf = pf[n300 + n30:]
    CS = WF; MR = XF
    a.e(f"s_and_b32 s{sT}, s{sWAVE}, 1"); a.e(f"s_lshl_b32 s{sT}, s{sT}, 9"); a.e(f"s_add_u32 s{sT}, s{sT}, {L_ST}")
    a.e(f"v_lshlrev_b32 v{vT0}, 3, v{vI}"); a.e(f"v_add_u32 v{vT0}, s{sT}, v{vT0}")
    a.e(f"s_lshl_b32 s{sT}, s{sC0}, 6"); a.e(f"s_add_u32 s{sT}, s{sT}, {L_CS3}")
    a.e(f"v_lshlrev_b32 v{vT1}, 4, v{vG}"); a.e(f"v_add_u32 v{vXa}, s{sT}, v{vT1}")
    if cls:
        a.e(f"s_lshr_b32 s{sT}, s{sW4}, 1"); a.e(f"s_add_u32 s{sT}, s{sT}, 10"); a.e(f"s_lshl_b32 s{sT}, s{sT}, 6"); a.e(f"s_add_u32 s{sT}, s{sT}, {L_CS3}")
        a.e(f"v_add_u32 v{vWb}, s{sT}, v{vT1}")
    er = [f"ds_read_b64 {v(MR+2*rt,2)}, v{vT0} offset:{128*rt}" for rt in range(4)]
    for mat in range(2):
        for t in range(NP):
            third = cls and t == 2
            er.append(f"ds_read_b128 {v(CS+(mat*NP+t)*4,4)}, v{vWb if third else vXa} offset:{mat*896 + (0 if third else 64*t)}")
    m = mfmas(31); sl = {}
    spread([[x] for x in er], 0, len(m) // 2, sl)
    spread(pf[:n31], 0, len(m) - 2, sl)
    a.es(place(m, sl))
    pf = pf[n31:]
    if opt.get("g3tp", 1) and cls == 0: a.e("s_setprio 0")
    tsc(a, opt, PH, 7)
    ts(a, opt, PH, 2)
    a.e(f"s_and_b32 s{sT}, s{sWAVE}, 1"); a.e(f"s_lshl_b32 s{sT}, s{sT}, 12"); a.e(f"s_add_u32 s{sH}, s{sH}, s{sT}")
    a.e(f"s_lshr_b32 s{sT}, s{sW4}, 1")
    if cls == 0:
        a.e(f"s_lshl_b32 s{sT}, s{sT}, 14"); a.e(f"s_add_u32 s{sH}, s{sH}, s{sT}"); a.e(f"s_add_u32 s{sH2}, s{sH}, 8192")
    else:
        a.e(f"s_lshl_b32 s{sT2}, s{sT}, 3"); a.e(f"s_add_u32 s{sH2}, s{sH}, s{sT2}"); a.e(f"s_add_u32 s{sH2}, s{sH2}, {5 * 8192}")
        a.e(f"s_lshl_b32 s{sT}, s{sT}, 14"); a.e(f"s_add_u32 s{sH}, s{sH}, s{sT}"); a.e(f"s_add_u32 s{sH}, s{sH}, {4 * 8192}")
    vLo, vLo2 = vWa, vWa + 1
    assert res.aslot(3, 1) == 0 and res.aslot(3, 0) == 7 * AS
    a.e(f"s_and_b32 s{sT}, s{sWAVE}, 1"); a.e(f"s_lshl_b32 s{sT}, s{sT}, 12")
    a.e(f"s_lshr_b32 s{sT2}, s{sW4}, 1")
    if cls == 0:
        a.e(f"s_lshl_b32 s{sT2}, s{sT2}, 14"); a.e(f"s_add_u32 s{sT}, s{sT}, s{sT2}")
        a.e(f"v_add_u32 v{vLo2}, s{sT}, v{vL16}")
        a.e(f"v_add_u16 v{vLo}, 0xe000, v{vLo2}")
    else:
        a.e(f"s_lshl_b32 s{sT3}, s{sT2}, 3"); a.e(f"s_add_u32 s{sT3}, s{sT3}, s{sT}"); a.e(f"s_add_u32 s{sT3}, s{sT3}, {4 * AS}")
        a.e(f"v_add_u32 v{vLo2}, s{sT3}, v{vL16}")
        a.e(f"s_lshl_b32 s{sT2}, s{sT2}, 14"); a.e(f"s_add_u32 s{sT}, s{sT}, s{sT2}"); a.e(f"s_add_u32 s{sT}, s{sT}, {3 * AS}")
        a.e(f"v_add_u32 v{vLo}, s{sT}, v{vL16}")
    a.e("s_waitcnt lgkmcnt(0)")
    B1 = WF + WFS
    NM, RL, I2 = B1, B1 + 8, B1 + 16
    a.e(f"s_mov_b32 s{sT}, 0xbfb8aa3b")
    for rt in range(4):
        a.e(f"v_mul_f32 v{I2+2*rt}, v{MR+2*rt+1}, v{MR+2*rt+1}")
        for d in range(2):
            a.e(f"v_sub_f32 v{NM+2*rt+d}, 0, v{MR+2*rt}")
            a.e(f"v_mul_f32 v{RL+2*rt+d}, s{sT}, v{MR+2*rt+1}")
    for rt in range(4):
        a.e(f"v_rcp_f32 v{I2+2*rt+1}, v{I2+2*rt}")
        a.e(f"v_rcp_f32 v{I2+2*rt}, v{I2+2*rt}")
    E = XF + 8; O = XF + 24
    ep = []
    def pk(op, d, *srcs): ep.append(f"{op} {v(d,2)}, " + ", ".join(v(r, 2) for r in srcs))
    TR = [(t, r) for t in range(NP) for r in (0, 2)]
    for rt in range(4):
        cg = lambda t: acc(0, t, rt); cu = lambda t: acc(1, t, rt)
        for t, r in TR: pk("v_pk_fma_f32", cg(t) + r, NM + 2*rt, CS + t * 4 + r, cg(t) + r)
        for t, r in TR: pk("v_pk_mul_f32", E + 4*t + r, RL + 2*rt, cg(t) + r)
        for i in range(4 * NP): ep.append(f"v_exp_f32 v{E+i}, v{E+i}")
        for t, r in TR: pk("v_pk_fma_f32", cu(t) + r, NM + 2*rt, CS + (NP + t) * 4 + r, cu(t) + r)
        for t, r in TR: pk("v_pk_fma_f32", E + 4*t + r, E + 4*t + r, I2 + 2*rt, I2 + 2*rt)
        for i in range(4 * NP): ep.append(f"v_rcp_f32 v{E+i}, v{E+i}")
        for t, r in TR: pk("v_pk_mul_f32", cg(t) + r, cg(t) + r, cu(t) + r)
        for t, r in TR: pk("v_pk_mul_f32", cg(t) + r, cg(t) + r, E + 4*t + r)
        for t, r in TR: ep.append(f"v_cvt_pk_bf16_f32 v{O + 2*t + r//2}, v{cg(t)+r}, v{cg(t)+r+1}")
        hs = SC if opt.get("hsc1") else ""
        ep.append(f"buffer_store_dwordx4 {v(O,4)}, v{vL16}, s[{SW}:{SW+3}], s{sH} offen offset:{rt*1024}{hs}")
        ep.append(f"ds_write_b128 v{vLo}, {v(O,4)} offset:{rt*1024}")
        if cls == 0:
            ep.append(f"buffer_store_dwordx4 {v(O+4,4)}, v{vL16}, s[{SW}:{SW+3}], s{sH2} offen offset:{rt*1024}{hs}")
            ep.append(f"ds_write_b128 v{vLo2}, {v(O+4,4)} offset:{rt*1024}")
        else:
            ep.append(f"buffer_store_dwordx2 {v(O+4,2)}, v{vL16}, s[{SW}:{SW+3}], s{sH2} offen offset:{rt*1024}")
            ep.append(f"ds_write_b64 v{vLo2}, {v(O+4,2)} offset:{rt*1024}")
    sl = {}
    spread(pf, 0, int(len(ep) * opt.get("g3pff", 0.6)), sl)
    a.es(place(ep, sl))
    ts(a, opt, PH, 3)
    if cls: signal(a, PH, XF, XF + 1); ts(a, opt, PH, 4)
```

```python
from common import *

RA = 8; AS = 8192; LW = 65536
CFG = {1: dict(NS=32, WS=4224, RW=22, NT=2, WROT=12, AROT=0, SKIP=(14, 15)), 3: dict(NS=56, WS=8448, RW=10, NT=4, WROT=5, AROT=7, SKIP=(0, 2, 27))}
def wslot(ph, st):
    c = CFG[ph]; return LW + ((st + c['WROT']) % c['RW']) * c['WS']
def aslot(ph, st): return ((st + CFG[ph]['AROT']) % RA) * AS

sWR = 12
sWo, sWlo, sWhi, sWm = 48, 49, 50, 51
sAo, sAlo, sAhi, sAm = 52, 53, 54, 55
sD4 = 50
vWp = 244
vPL = 240
vPO = 246


def res_w_setup(a, ph):
    c = CFG[ph]
    if ph == 1:
        make_srd(a, sWR, pWO, 1024 * 2048)
        a.e(f"v_lshrrev_b32 v{vT0}, 3, v{vL}")
        a.e(f"v_lshlrev_b32 v{vT0}, 13, v{vT0}")
        a.e(f"v_and_b32 v{vT1}, 7, v{vL}")
        a.e(f"v_lshl_add_u32 v{vT0}, v{vT1}, 4, v{vT0}")
        a.e(f"s_lshl_b32 s{sT}, s{sW4}, 11")
        a.e(f"v_add_u32 v{vWp}, s{sT}, v{vT0}")
        a.e(f"s_mul_i32 s{sWm}, s{sW4}, 1056")
        a.e(f"s_lshl_b32 s{sWlo}, s{sCI}, 7")
    else:
        make_srd(a, sWR, pW2, 3584 * 2048)
        a.e(f"v_lshlrev_b32 v{vT0}, 14, v{vG}")
        a.e(f"v_and_b32 v{vT1}, 8, v{vI}")
        a.e(f"v_lshl_add_u32 v{vT0}, v{vT1}, 7, v{vT0}")
        a.e(f"v_and_b32 v{vT1}, 7, v{vI}")
        a.e(f"v_lshl_add_u32 v{vT0}, v{vT1}, 4, v{vT0}")
        a.e(f"s_lshl_b32 s{sT}, s{sW4}, 12")
        a.e(f"v_add_u32 v{vWp}, s{sT}, v{vT0}")
        a.e(f"v_add_u32 v{vWp+1}, 2048, v{vWp}")
        a.e(f"s_mul_i32 s{sWm}, s{sW4}, 2112")
        a.e(f"s_lshr_b32 s{sT}, s{sNT}, 3")
        a.e(f"s_mul_i32 s{sWlo}, s{sT}, {56 * 65536}")
        a.e(f"s_lshl_b32 s{sT2}, s{sN8}, 7")
        a.e(f"s_add_u32 s{sWlo}, s{sWlo}, s{sT2}")
        a.e(f"s_sub_u32 s{sD4}, s{sNT}, s{sK4}"); a.e(f"s_and_b32 s{sD4}, s{sD4}, 7")


def chunk_base(pos, dst, lo, mul):
    if pos == 0: o = [f"s_and_b32 s{dst}, s{sNT}, 7"]
    else: o = [f"s_cmp_le_u32 s{sD4}, {pos - 1}", f"s_addc_u32 s{dst}, s{sK4}, {pos - 1}", f"s_and_b32 s{dst}, s{dst}, 7"]
    return o + [f"s_mul_i32 s{dst}, s{dst}, {mul}", f"s_add_u32 s{dst}, s{dst}, s{lo}"]


def unit_base(i, dst, lo, sh):
    return [f"s_add_u32 s{dst}, s{sK4}, {i}", f"s_and_b32 s{dst}, s{dst}, 7", f"s_and_b32 s{sT3}, s{sNT}, 8"] + \
           ([f"s_xor_b32 s{sT3}, s{sT3}, 8"] if i >= 8 else []) + \
           [f"s_or_b32 s{dst}, s{dst}, s{sT3}", f"s_lshl_b32 s{dst}, s{dst}, {sh}", f"s_add_u32 s{dst}, s{dst}, s{lo}"]


def res_w_issue(ph, st):
    c = CFG[ph]; g = []
    for i in range(c['NT'] // 2):
        g.append([f"s_add_u32 m0, s{sWm}, {wslot(ph, st) + i * 1056}", "s_nop 0",
                  f"buffer_load_dwordx4 v{vWp+i}, s[{sWR}:{sWR+3}], s{sWo} offen lds"])
    g[-1] += [f"s_add_u32 s{sWo}, s{sWo}, 65536"]
    if ph == 1:
        if st % 2 == 0: g[0] = unit_base(st // 2, sWo, sWlo, 17) + g[0]
    elif st % 7 == 0: g[0] = chunk_base(st // 7, sWo, sWlo, 7 * 65536) + g[0]
    return g


def res_nxt(a, ph, vm, n):
    def mk(st):
        def f():
            for g in res_w_issue(ph, st):
                a.es(g); vm.op()
        return f
    return [(wslot(ph, st), wslot(ph, st) + CFG[ph]['WS'], mk(st)) for st in range(n)]


def h_base(a, dst):
    a.e(f"s_lshl_b32 s{dst}, s{sMT}, 1"); a.e(f"s_add_u32 s{dst}, s{dst}, s{sHF}"); a.e(f"s_mul_i32 s{dst}, s{dst}, {56 * 8192}")
    a.e(f"s_lshl_b32 s{sT3}, s{sLB}, 24"); a.e(f"s_add_u32 s{dst}, s{dst}, s{sT3}"); a.e(f"s_add_u32 s{dst}, s{dst}, {WS_H}")


def res_load(a, opt, ph, prefetched, nxt_setup, nxt_items, nxtcap):
    c = CFG[ph]; NS = c['NS']
    vm = VM(a)
    nxt_setup()
    if ph == 1:
        a.e(f"s_lshl_b32 s{sAlo}, s{sLAY}, 22")
        a.e(f"s_lshl_b32 s{sT}, s{sMT}, 18")
        a.e(f"s_add_u32 s{sAlo}, s{sAlo}, s{sT}")
        a.e(f"s_add_u32 s{sAlo}, s{sAlo}, {WS_O}")
    else:
        h_base(a, sAlo)
    a.e(f"s_lshl_b32 s{sAm}, s{sW4}, 11")
    a.e(f"s_add_u32 s{sAlo}, s{sAlo}, s{sAm}")
    sFo = 56
    flag_off(a, sFo, ph - 1)
    if ph == 1:
        a.e(f"v_lshlrev_b32 v{vPO}, 5, v{vL}")
        a.e(f"s_lshl_b32 s{sEXS}, 1, s{sCI}"); a.e(f"s_or_b32 s{sEXS}, s{sEXS}, 0x5555"); a.e(f"s_mov_b32 s{sEXS+1}, 0")
        a.e(f"s_xor_b32 s{sT}, s{sCI}, 1"); a.e(f"s_or_b32 s{sT}, s{sT}, s{sW4}"); a.e(f"s_cselect_b32 s{sEXS}, s{sEXS}, 0xffff")
        mask = f"s[{sEXS}:{sEXS+1}]"
        a.e(f"s_lshl_b32 s46, s{sLAY}, 12"); a.e(f"s_add_u32 s46, s46, {M_RF + 3 * 4096}")
        a.e(f"s_xor_b32 s47, s{sMT}, 2"); a.e("s_lshl_b32 s47, s47, 8"); a.e("s_add_u32 s47, s47, s46"); a.e("s_add_u32 s47, s47, 128")
    else:
        a.e(f"v_lshlrev_b32 v{vPO}, 4, v{vL}")
        a.e(f"s_lshl_b32 s{sT}, s{sHF}, 1"); a.e(f"s_lshl_b32 s{sEXS}, 0x33333333, s{sT}"); a.e(f"s_mov_b32 s{sEXS+1}, 0")
        mask = f"s[{sEXS}:{sEXS+1}]"
    def do_poll():
        ts(a, opt, ph, 0)
        poll(a, sFo, vPO, vPL, 4, mask); vm.drain()
        ts(a, opt, ph, 1)
    if ph == 1:
        do_poll()
        relay(a, "s46", vPL + 2, vPL + 3)

    def issW(st):
        for g in res_w_issue(ph, st):
            if opt.get("dbgW") and ph == 3: g = [x for x in g if "m0" in x or "buffer" in x or "nop" in x]
            a.es(g); vm.op(("W", st))
    def issA(st):
        if ph == 3 and st % 7 == 0: a.es(chunk_base(1 if opt.get("dbgA") else st // 7, sAo, sAlo, 7 * 8192))
        if ph == 1 and st == 16: rcheck()
        if ph == 1 and st % 2 == 0: a.es(unit_base(st // 2, sAo, sAlo, 14))
        a.e(f"s_add_u32 m0, s{sAm}, {aslot(ph, st)}")
        a.e("s_nop 0")
        for i in range(2):
            a.e(f"buffer_load_dwordx4 v{vL16}, s[{SW}:{SW+3}], s{sAo} offen offset:{i*1024} sc1 lds"); vm.op(("A", st))
        a.e(f"s_add_u32 s{sAo}, s{sAo}, 8192")
        if ph == 1 and st == opt.get("g2rq", 12): rreq()
    def rreq():
        a.e(f"v_mov_b32 v{vPO}, 0")
        a.e(f"buffer_load_dword v{vPL}, v{vPO}, s[{SW}:{SW+3}], s47 offen sc1"); vm.op("R")
    def rcheck():
        l = a.new("rc")
        vm.wait("R")
        a.e(f"v_cmp_ne_u32 vcc, 1, v{vPL}")
        a.e(f"s_or_b32 s{sT}, vcc_lo, s{sSLOW}")
        a.e(f"s_cbranch_scc1 {l}"); a.label(f"{l}_b")
        h = Asm(); h.uid = a.uid + 100
        h.label(l); poll(h, 47, vPO, vPL, 1, "1"); h.e(f"s_branch {l}_b"); h.flush_tail(); a.uid = h.uid
        a.ool([x.strip() for x in h.L])
    W = Stream("W", NS, c['RW'], issW, lambda u: (wslot(ph, u), wslot(ph, u) + c['WS']), issued=prefetched)
    A = Stream("A", NS, RA, issA, lambda u: (aslot(ph, u), aslot(ph, u) + AS), issued=0 if ph == 1 else 7)
    def touchX():
        a.e(f"s_lshr_b32 s{sT2}, s{sW4}, 1")
        x4_off(a, sT, sT2, 1)
        a.e(f"s_and_b32 s{sT2}, s{sW4}, 1"); a.e(f"s_lshl_b32 s{sT2}, s{sT2}, 13"); a.e(f"s_add_u32 s{sT}, s{sT}, s{sT2}")
        a.e(f"v_lshlrev_b32 v{vT0}, 7, v{vL}")
        a.e("s_mov_b64 exec, 0xffffffff")
        a.e(f"buffer_load_dword v{vPL+1}, v{vT0}, s[{SW}:{SW+3}], s{sT} offen sc1"); vm.op()
        a.e("s_mov_b64 exec, -1")
    ev0 = barrier_events(NS, deep=(ph == 1)); ev = []
    for e in ev0:
        if e[0] != "Bm1" and int(e[0][1:]) in c['SKIP']: ev[-1] = (ev[-1][0], e[1], ev[-1][2])
        else: ev.append(e)
    ev.append(("BE", NS - 1, NS - 1))
    hooks = {}; pre_hooks = {}; mid_hooks = {}
    if ph == 1:
        pre = ["A"] * 4
        laA = opt.get("g2la", 4)
        la = lambda n, idx: laA if n == "A" else 14
        cap = lambda idx: 3
    else:
        pre = []
        l4 = opt.get("g4la", 3)
        la = lambda n, idx: (0 if idx == 0 else (opt.get("g4l1", 2) if idx == 1 else l4))
        cap = lambda idx: opt.get("g4c1", 4) if idx == 1 else opt.get("g4cap", 4) + (1 if idx < 8 else 0)
        def b1():
            for _ in range(opt.get("g4w1", 3)): W.go()
            do_poll()
        pre_hooks["B1"] = b1
        ah = opt.get("g4as", 6)
        if ah:
            a.e("s_lshr_b32 s40, s2, 3"); a.e("s_lshl_b32 s40, s40, 2"); a.e(f"s_add_u32 s40, s40, s{sW4}")
            a.e("s_and_b32 s41, s40, 31"); a.e("s_lshl_b32 s41, s41, 11")
            a.e("s_lshr_b32 s46, s40, 5"); a.e("s_and_b32 s46, s46, 1")
            a.e("s_lshr_b32 s40, s40, 6"); a.e("s_lshl_b32 s40, s40, 10"); a.e("s_add_u32 s40, s40, s41")
            a.e(f"s_lshr_b32 s41, s{sNT}, 3"); a.e(f"s_mul_i32 s41, s41, {56 * 65536}"); a.e("s_add_u32 s40, s40, s41")
            a.e(f"s_add_u32 s40, s{pW2}, s40"); a.e(f"s_addc_u32 s41, s{pW2+1}, 0")
            a.e(f"s_mul_i32 s47, s{sK4}, 7"); a.e("s_add_u32 s46, s46, s47")
            def go(u):
                a.e(f"s_add_u32 s42, s46, {2 * u}"); a.e("s_cmp_ge_u32 s42, 56"); a.e("s_cselect_b32 s47, 56, 0"); a.e("s_sub_u32 s42, s42, s47")
                a.e("s_lshl_b32 s42, s42, 16")
                a.e("s_add_u32 s44, s40, s42"); a.e("s_addc_u32 s45, s41, 0")
                for o in (384, 448): a.e(f"s_load_dword s43, s[44:45], {o}")
            done = 5
            for e in ev[:-1]:
                p = -1 if e[0] == "Bm1" else int(e[0][1:])
                us = list(range(done, min(p + ah + 1, 28))); done = max(done, min(p + ah + 1, 28))
                if us:
                    if p <= 1:
                        h0 = pre_hooks.get(e[0])
                        pre_hooks[e[0]] = (lambda us=us, h0=h0: ([go(u) for u in us], h0() if h0 else None))
                    else: mid_hooks[e[0]] = (lambda us=us: [go(u) for u in us])
    log = []
    n = run_loader(a, vm, ev, [A, W], pre, la, cap, hooks, None, nxt_items(vm), nxtcap, log, tl=opt.get('tl') == f'g{ph+1}',
                   lgk={"Bm1"}, pre_hooks=pre_hooks, mid_hooks=mid_hooks, mid_at=opt.get('g4mid', 1))
    if opt.get("log"): print(ph, log)
    ts(a, opt, ph, 2)
    return n


def xbuf(a, dst, which):
    if which == 1: a.e(f"s_add_u32 s{dst}, s{dst}, {WS_X + 4 * MB}")
    else:
        a.e(f"s_lshl_b32 s{sT3}, s{sLAY}, 23"); a.e(f"s_add_u32 s{dst}, s{dst}, s{sT3}")
    assert WS_X == 0


def x4_off(a, dst, s_wc, which):
    a.e(f"s_lshl_b32 s{s_wc}, s{s_wc}, 3"); a.e(f"s_add_u32 s{s_wc}, s{s_wc}, s{sN8}")
    a.e(f"s_lshl_b32 s{dst}, s{sMT}, 4"); a.e(f"s_add_u32 s{dst}, s{dst}, s{s_wc}")
    a.e(f"s_lshl_b32 s{dst}, s{dst}, 2"); a.e(f"s_add_u32 s{dst}, s{dst}, s{sHF}"); a.e(f"s_lshl_b32 s{dst}, s{dst}, 12")
    if which is not None: xbuf(a, dst, which)


XO2 = 176
def g2_xold(a):
    vRM = 243
    l = a.new("xo")
    a.e(f"s_cmp_lg_u32 s{sLAY}, 0"); a.e(f"s_cbranch_scc1 {l}_f")
    make_srd(a, 8, pAX, 4 * MB)
    a.e(f"s_lshl_b32 s{sT}, s{sMT}, 1"); a.e(f"s_lshr_b32 s{sT2}, s{sWAVE}, 1"); a.e(f"s_add_u32 s{sT}, s{sT}, s{sT2}"); a.e(f"s_lshl_b32 s{sT}, s{sT}, 17")
    a.e(f"s_and_b32 s{sT2}, s{sWAVE}, 1"); a.e(f"s_lshl_b32 s{sT2}, s{sT2}, 6"); a.e(f"s_add_u32 s{sT}, s{sT}, s{sT2}")
    a.e(f"s_lshl_b32 s{sT2}, s{sCI}, 7"); a.e(f"s_add_u32 s{sT}, s{sT}, s{sT2}")
    a.e(f"v_lshlrev_b32 v{vRM}, 11, v{vI}"); a.e(f"v_lshl_add_u32 v{vRM}, v{vG}, 3, v{vRM}")
    for rt in range(4):
        a.e(f"buffer_load_dwordx2 {v(XO2+4*rt,2)}, v{vRM}, s[8:11], s{sT} offen")
        a.e(f"buffer_load_dwordx2 {v(XO2+4*rt+2,2)}, v{vRM}, s[8:11], s{sT} offen offset:32")
        a.e(f"s_add_u32 s{sT}, s{sT}, 32768")
    a.e(f"s_branch {l}_d")
    a.label(f"{l}_f")
    a.e(f"s_lshl_b32 s12, s{sMT}, 4"); a.e(f"s_add_u32 s12, s12, s{sCI}"); a.e("s_lshl_b32 s12, s12, 14")
    a.e(f"s_and_b32 s{sT}, s{sWAVE}, 1"); a.e(f"s_lshl_b32 s{sT}, s{sT}, 13"); a.e(f"s_add_u32 s12, s12, s{sT}")
    a.e(f"s_lshr_b32 s{sT}, s{sWAVE}, 1"); a.e(f"s_lshl_b32 s{sT}, s{sT}, 12"); a.e(f"s_add_u32 s12, s12, s{sT}")
    xbuf(a, 12, 1)
    for u in range(4): a.e(f"buffer_load_dwordx4 {v(XO2+4*u,4)}, v{vL16}, s[{SW}:{SW+3}], s12 offen offset:{u*1024} sc1")
    a.label(f"{l}_d")


def res_cons(a, opt, ph, prev_signal=None):
    nxo = 4
    c = CFG[ph]; NS = c['NS']; NT = c['NT']; RW = c['RW']; WS_ = c['WS']
    FB = 32 if ph == 1 else 64; FS = 16 + 4 * NT
    XO = 128 if ph == 3 else XO2
    XU = 144
    RC = 176
    E = 208
    vA, vW0, vWc, vRM, vSO = 240, 241, 242, 243, 239
    sSl, sCnt, sXo, sXn, sP, sF, sSt, sJ = 16, 17, 18, 20, 22, 23, 24, 25
    sIO = 8
    def acc(t, r): return (r * NT + t) * 4
    def xf(b, rt, sub=0): return FB + (b * (2 if ph == 1 else 1) + sub) * FS + rt * 4
    def wf(b, t, sub=0): return FB + (b * (2 if ph == 1 else 1) + sub) * FS + 16 + t * 4
    def uoff(u, s0): return (s0, u * 1024) if ph == 1 else (s0 + (u & 1), (u >> 1) * 1024)
    tag = f"r{ph}"
    a.e(f"s_lshr_b32 s{sT}, s{sWAVE}, 1"); a.e(f"s_lshl_b32 s{sT}, s{sT}, {12 if ph == 1 else 11}")
    a0 = aslot(ph, 0) - (0 if ph == 1 else AS); w0 = wslot(ph, 0) - LW - (0 if ph == 1 else WS_)
    assert a0 % (2 * AS) == 0 and w0 % (2 * WS_) == 0 and a0 >= 0 and w0 >= 0
    if a0: a.e(f"s_add_u32 s{sT}, s{sT}, {a0}")
    a.e(f"v_add_u32 v{vA}, s{sT}, v{vL16}")
    a.e(f"v_lshrrev_b32 v{vT0}, 2, v{vI}")
    if ph == 1:
        a.e(f"v_mul_u32_u24 v{vT0}, 1056, v{vT0}")
        a.e(f"v_lshl_add_u32 v{vT0}, v{vG}, 7, v{vT0}")
        aoff = [0, 1024, 2048, 3072]
    else:
        a.e(f"v_and_b32 v{vT1}, 1, v{vG}")
        a.e(f"v_lshl_add_u32 v{vT0}, v{vT1}, 2, v{vT0}")
        a.e(f"v_mul_u32_u24 v{vT0}, 1056, v{vT0}")
        a.e(f"v_lshrrev_b32 v{vT1}, 1, v{vG}")
        a.e(f"v_lshl_add_u32 v{vT0}, v{vT1}, 8, v{vT0}")
        aoff = [0, 1024, 4096, 5120]
    a.e(f"v_and_b32 v{vT1}, 3, v{vI}")
    a.e(f"v_lshl_add_u32 v{vT0}, v{vT1}, 3, v{vT0}")
    a.e(f"s_and_b32 s{sT}, s{sWAVE}, 1"); a.e(f"s_lshl_b32 s{sT}, s{sT}, {6 if ph == 1 else 7}"); a.e(f"s_add_u32 s{sT}, s{sT}, {LW}")
    a.e(f"v_add_u32 v{vW0}, s{sT}, v{vT0}")
    a.e(f"s_mov_b32 s{sSl}, {w0}")
    a.e(f"v_add_u32 v{vWc}, s{sSl}, v{vW0}")
    if ph == 1:
        a.e(f"s_mov_b32 s{sJ}, s{sCI}")
        a.e(f"s_lshl_b32 s{sXo}, s{sMT}, 4"); a.e(f"s_add_u32 s{sXo}, s{sXo}, s{sCI}"); a.e(f"s_lshl_b32 s{sXo}, s{sXo}, 14")
        a.e(f"s_and_b32 s{sT}, s{sWAVE}, 1"); a.e(f"s_lshl_b32 s{sT}, s{sT}, 13"); a.e(f"s_add_u32 s{sXo}, s{sXo}, s{sT}")
        a.e(f"s_lshr_b32 s{sT}, s{sWAVE}, 1"); a.e(f"s_lshl_b32 s{sT}, s{sT}, 12"); a.e(f"s_add_u32 s{sXo}, s{sXo}, s{sT}")
        a.e(f"s_mov_b32 s{sXn}, s{sXo}"); xbuf(a, sXn, 'lay')
    else:
        a.e(f"s_and_b32 s{sJ}, s{sWAVE}, 1")
        x4_off(a, sXo, sJ, None)
        a.e(f"s_lshr_b32 s{sT}, s{sWAVE}, 1"); a.e(f"s_lshl_b32 s{sT}, s{sT}, 11"); a.e(f"s_add_u32 s{sXo}, s{sXo}, s{sT}")
        a.e(f"s_mov_b32 s{sXn}, s{sXo}"); xbuf(a, sXn, 1); xbuf(a, sXo, 'lay')
        a.e(f"s_add_u32 s{sXo+1}, s{sXo}, 8192"); a.e(f"s_add_u32 s{sXn+1}, s{sXn}, 8192")
    def rowmajor():
        if ph == 1:
            a.e(f"s_lshl_b32 s{sT}, s{sMT}, 1"); a.e(f"s_lshr_b32 s{sT2}, s{sWAVE}, 1"); a.e(f"s_add_u32 s{sT}, s{sT}, s{sT2}"); a.e(f"s_lshl_b32 s{sT}, s{sT}, 17")
            a.e(f"s_and_b32 s{sT2}, s{sWAVE}, 1"); a.e(f"s_lshl_b32 s{sT2}, s{sT2}, 6"); a.e(f"s_add_u32 s{sT}, s{sT}, s{sT2}")
        else:
            a.e(f"s_lshl_b32 s{sT}, s{sMT}, 1"); a.e(f"s_add_u32 s{sT}, s{sT}, s{sHF}"); a.e(f"s_lshl_b32 s{sT}, s{sT}, 1")
            a.e(f"s_lshr_b32 s{sT2}, s{sWAVE}, 1"); a.e(f"s_add_u32 s{sT}, s{sT}, s{sT2}"); a.e(f"s_lshl_b32 s{sT}, s{sT}, 16")
        a.e(f"s_lshl_b32 s{sT2}, s{sJ}, 7"); a.e(f"s_add_u32 s{sT}, s{sT}, s{sT2}")
        a.e(f"v_lshlrev_b32 v{vRM}, 11, v{vI}")
        a.e(f"v_add_u32 v{vRM}, s{sT}, v{vRM}")
    if ph == 3:
        for u in range(4):
            so, im = uoff(u, sXo)
            a.e(f"buffer_load_dwordx4 {v(XO+4*u,4)}, v{vL16}, s[{SW}:{SW+3}], s{so} offen offset:{im} sc1")
    a.e(f"s_lshl_b32 s{sSt}, s{sMT}, 4"); a.e(f"s_add_u32 s{sSt}, s{sSt}, s{sJ}"); a.e(f"s_lshl_b32 s{sSt}, s{sSt}, 11")
    if ph == 1:
        a.e(f"s_lshl_b32 s{sT2}, s{sLAY}, 20"); a.e(f"s_add_u32 s{sSt}, s{sSt}, s{sT2}"); a.e(f"s_add_u32 s{sSt}, s{sSt}, {M_ST}")
        a.e(f"s_lshr_b32 s{sT2}, s{sWAVE}, 1"); a.e(f"s_lshl_b32 s{sT2}, s{sT2}, 9"); a.e(f"s_add_u32 s{sSt}, s{sSt}, s{sT2}")
        a.e(f"s_and_b32 s{sT2}, s{sWAVE}, 1"); a.e(f"s_lshl_b32 s{sT2}, s{sT2}, 10"); a.e(f"s_add_u32 s{sSt}, s{sSt}, s{sT2}")
        a.e(f"v_lshlrev_b32 v{vSO}, 3, v{vL}")
    else:
        a.e(f"s_add_u32 s{sSt}, s{sSt}, {M_ST + 524288}")
        a.e(f"s_lshl_b32 s{sT2}, s{sHF}, 9"); a.e(f"s_add_u32 s{sSt}, s{sSt}, s{sT2}")
        a.e(f"s_lshr_b32 s{sT2}, s{sWAVE}, 1"); a.e(f"s_lshl_b32 s{sT2}, s{sT2}, 8"); a.e(f"s_add_u32 s{sSt}, s{sSt}, s{sT2}")
        a.e(f"v_lshrrev_b32 v{vT0}, 1, v{vG}"); a.e(f"v_lshl_add_u32 v{vT0}, v{vT0}, 4, v{vI}"); a.e(f"v_lshlrev_b32 v{vT0}, 3, v{vT0}")
        a.e(f"v_and_b32 v{vT1}, 1, v{vG}"); a.e(f"v_lshl_add_u32 v{vSO}, v{vT1}, 10, v{vT0}")
        a.e(f"s_lshl_b32 s{sF}, s{sLAY}, 8"); a.e(f"s_add_u32 s{sF}, s{sF}, s2"); a.e(f"s_lshl_b32 s{sF}, s{sF}, 2"); a.e(f"s_add_u32 s{sF}, s{sF}, s{sWAVE}")
        a.e(f"s_lshl_b32 s{sP}, s{sF}, 13"); a.e(f"s_add_u32 s{sP}, s{sP}, {WS_P}")
        a.e(f"s_lshl_b32 s{sF}, s{sF}, 7"); a.e(f"s_add_u32 s{sF}, s{sF}, {M_XF}")

    def rd_list(b, sub, ao, wo):
        g = []
        for i in range(4):
            k = i if ph == 1 else (i + 2) % 4
            g.append(f"ds_read_b128 {v(xf(b,k,sub),4)}, v{vA} offset:{ao + aoff[k]}")
            if i < NT:
                g.append(f"ds_read_b64_tr_b16 {v(wf(b,i,sub),2)}, v{vWc} offset:{wo + 32*i}")
                g.append(f"ds_read_b64_tr_b16 {v(wf(b,i,sub)+2,2)}, v{vWc} offset:{wo + 32*i + 512}")
        return g
    adv = [[f"v_add_u16 v{vA}, 0x4000, v{vA}"], [f"s_add_u32 s{sSl}, s{sSl}, {2*WS_}", f"s_cmp_eq_u32 s{sSl}, {RW * WS_}"],
           [f"s_cselect_b32 s{sSl}, 0, s{sSl}"], [f"v_add_u32 v{vWc}, s{sSl}, v{vW0}"]]
    if ph == 1: order = [(t, r if t == 0 else 3 - r) for t in range(2) for r in range(4)]
    else: order = [(t if i % 2 == 0 else 3 - t, r) for i, r in enumerate((2, 3, 0, 1)) for t in range(4)]
    def mf(b, sub): return [mfma(acc(t, r), wf(b, t, sub), xf(b, r, sub)) for t, r in order]
    rdend = opt.get(f"g{ph+1}rd", 9 if ph == 3 else 10)
    def seg(m, rd, post):
        sl = {}
        spread(rd, 0, rdend, sl)
        spread(post, rdend + 1, 14, sl)
        sl.setdefault(15, []).append("s_waitcnt lgkmcnt(0)")
        a.es(place(m, sl))
    for i in range(4): a.e(f"v_mov_b32 v{E+i}, 0")
    a.e("s_nop 1")
    for i in range(0, 16 * NT, 16): a.e(f"v_mfma_f32_32x32x16_bf16 {v(i,16)}, {v(E,4)}, {v(E,4)}, 0")
    a.e(f"s_mov_b32 s{sCnt}, {NS // 4}")
    def unpack_x():
        a.e("s_waitcnt vmcnt(1)" if ph == 1 else f"s_waitcnt vmcnt({4 if opt.get('xb16', 1) else 8})")
        for i in range(16):
            a.e(f"v_lshlrev_b32 v{XU+2*i}, 16, v{XO+i}")
            a.e(f"v_and_b32 v{XU+2*i+1}, 0xffff0000, v{XO+i}")
    if prev_signal: prev_signal(nxo)
    if ph == 1: unpack_x()
    ts(a, opt, ph, 0)
    a.e("s_waitcnt lgkmcnt(0)")
    a.e("s_barrier")
    ts(a, opt, ph, 1)
    if ph == 1: a.es(rd_list(0, 0, 0, 0) + rd_list(0, 1, AS, WS_))
    else: a.es(rd_list(0, 0, AS, WS_))
    for g in adv: a.es(g)
    a.e("s_waitcnt lgkmcnt(0)")
    tsc(a, opt, ph, 6)
    a.label(f"{tag}_loop")
    for per in range(2):
        mk = sum(1 << (NS // 4 - p // 2) for p in c['SKIP'] if p % 2 == per)
        if mk:
            a.e(f"s_bitcmp1_b32 {mk}, s{sCnt}"); a.e(f"s_cbranch_scc1 {tag}_nb{per}")
        a.e("s_barrier")
        a.label(f"{tag}_nb{per}")
        cnt = [[f"s_sub_u32 s{sCnt}, s{sCnt}, 1", f"s_cmp_lg_u32 s{sCnt}, 0"]] if per == 1 else []
        if ph == 1:
            seg(mf(per, 0) + mf(per, 1), rd_list(1 - per, 0, 0, 0) + rd_list(1 - per, 1, AS, WS_), adv + cnt)
        else:
            seg(mf(0, 0), rd_list(1, 0, 0, 0), [])
            seg(mf(1, 0), rd_list(0, 0, AS, WS_), adv + cnt)
    a.e(f"s_cbranch_scc1 {tag}_loop")
    tsc(a, opt, ph, 7)
    ts(a, opt, ph, 2)
    if ph == 3:
        NX = 4 if opt.get("xb16", 1) else 8
        a.e(f"s_add_u32 s{sT2}, s{sP}, 4096")
        for i in range(NX):
            so = sP if i < 4 else sT2
            if NX == 4:
                for k in range(4): a.e(f"v_cvt_pk_bf16_f32 v{32+8*i+k}, v{32+8*i+2*k}, v{32+8*i+2*k+1}")
            a.e(f"buffer_store_dwordx4 {v(32+(32//NX)*i,4)}, v{vL16}, s[{SW}:{SW+3}], s{so} offen offset:{(i%4)*1024}{SC}")
        bepos = opt.get("g4be", 1)
        if bepos == 0: a.e("s_barrier")
        unpack_x()
        store_flag_remote(a, sF, E, E + 1)
        if bepos == 1: a.e("s_barrier")
        ts(a, opt, ph, 3)
        a.e(f"s_xor_b32 s{sF}, s{sF}, 512")
        a.e(f"s_xor_b32 s{sP}, s{sP}, {4 * 8192}")
        poll(a, sF, E, E + 2, 1, "1", acquire=False)
        a.e(f"s_add_u32 s{sT2}, s{sP}, 4096")
        for i in range(NX):
            so = sP if i < 4 else sT2
            a.e(f"buffer_load_dwordx4 {v(RC+4*i if NX == 8 else 32+4*i,4)}, v{vL16}, s[{SW}:{SW+3}], s{so} offen offset:{(i%4)*1024} sc1")
        if bepos == 2: a.e("s_barrier")
        ts(a, opt, ph, 4)
    else:
        a.e("s_barrier")
        a.e("s_nop 5")
    O = 64
    S = 80
    vOne = 88
    Y = E
    a.e(f"v_mov_b32 v{vOne}, 0x{ONES:08x}")
    def fin2(u0):
        U = 96; cc = 8 * u0
        if ph == 3:
            if NX == 8:
                a.e(f"s_waitcnt vmcnt({4 if u0 == 0 else 2})")
            else:
                a.e("s_waitcnt vmcnt(2)")
                for k in range(8): a.e(f"v_lshlrev_b32 v{RC+cc+2*k}, 16, v{32+4*u0+k}")
                for k in range(8): a.e(f"v_and_b32 v{RC+cc+2*k+1}, 0xffff0000, v{32+4*u0+k}")
            for r in range(0, 16, 2): a.e(f"v_pk_add_f32 {v(cc+r,2)}, {v(cc+r,2)}, {v(RC+cc+r,2)}")
        for i in range(8): a.e(f"v_cvt_pk_bf16_f32 v{Y+i}, v{cc+2*i}, v{cc+2*i+1}")
        for i in range(8): a.e(f"v_lshlrev_b32 v{U+2*i}, 16, v{Y+i}")
        for i in range(8): a.e(f"v_and_b32 v{U+2*i+1}, 0xffff0000, v{Y+i}")
        for i in range(8): a.e(f"v_pk_add_f32 {v(U+2*i,2)}, {v(U+2*i,2)}, {v(XU+cc+2*i,2)}")
        for i in range(8): a.e(f"v_cvt_pk_bf16_f32 v{O+4*u0+i}, v{U+2*i}, v{U+2*i+1}")
    def fin(u):
        if u % 2 == 0: fin2(u)
    lo = a.new("fo")
    if ph == 3:
        a.e(f"s_cmp_lg_u32 s{sLAY}, 0"); a.e(f"s_cbranch_scc1 {lo}_out")
    for u in range(4):
        fin(u)
        so, im = uoff(u, sXn)
        a.e(f"buffer_store_dwordx4 {v(O+4*u,4)}, v{vL16}, s[{SW}:{SW+3}], s{so} offen offset:{im}{SC}")
    if ph == 3:
        lh = a.new("hl")
        a.e(f"s_lshr_b32 s{sT}, s{sWAVE}, 1"); a.e(f"s_and_b32 s{sT}, s{sT}, s{sHF}"); a.e(f"s_cbranch_scc0 {lh}")
        a.e(f"v_cmp_eq_u32 vcc, 0, v{vI}")
        a.e(f"s_lshl_b32 s{sT}, s{sMT}, 4"); a.e(f"s_add_u32 s{sT}, s{sT}, s{sJ}"); a.e(f"s_lshl_b32 s{sT}, s{sT}, 11")
        a.e(f"s_add_u32 s{sT}, s{sT}, {M_HALO}")
        for i in range(8): a.e(f"v_cndmask_b32 v{E+4+i}, v{O+8+i}, v{vOne}, vcc")
        for b in range(2): a.e(f"buffer_store_dwordx4 {v(E+4+4*b,4)}, v{vL16}, s[{SW}:{SW+3}], s{sT} offen offset:{b*1024}{SC}")
        a.label(lh)
    for i in range(4):
        for u in range(4):
            a.e(f"v_dot2_f32_bf16 v{S+u}, v{O+4*u+i}, v{vOne}, " + ("0" if i == 0 else f"v{S+u}"))
            a.e(f"v_dot2_f32_bf16 v{S+4+u}, v{O+4*u+i}, v{O+4*u+i}, " + ("0" if i == 0 else f"v{S+4+u}"))
    a.e("s_nop 2")
    for b in (S, S + 4):
        a.e(f"v_permlane16_swap_b32 v{b}, v{b+1}")
        a.e(f"v_permlane16_swap_b32 v{b+2}, v{b+3}")
    for b in (S, S + 4):
        a.e(f"v_add_f32 v{b}, v{b}, v{b+1}")
        a.e(f"v_add_f32 v{b+2}, v{b+2}, v{b+3}")
    a.e("s_nop 1")
    for b in (S, S + 4): a.e(f"v_permlane32_swap_b32 v{b}, v{b+2}")
    a.e(f"v_add_f32 v{S}, v{S}, v{S+2}")
    a.e(f"v_add_f32 v{S+1}, v{S+4}, v{S+6}")
    a.e(f"buffer_store_dwordx2 {v(S,2)}, v{vSO}, s[{SW}:{SW+3}], s{sSt} offen{SC}")
    signal(a, ph, E, E + 1)
    ts(a, opt, ph, 5)
    if ph == 1: return
    a.e(f"s_branch {lo}_end")
    a.label(f"{lo}_out")
    make_srd(a, sIO, pOUT, 4 * MB)
    rowmajor()
    a.e(f"v_and_b32 v{vT0}, 1, v{vG}"); a.e(f"v_lshl_add_u32 v{vRM}, v{vT0}, 5, v{vRM}")
    a.e(f"v_lshrrev_b32 v{vT0}, 1, v{vG}"); a.e(f"v_lshl_add_u32 v{vRM}, v{vT0}, 4, v{vRM}")
    for u in range(4):
        fin(u)
        a.e(f"s_mov_b32 s{sT}, {(u >> 1) * 32768}")
        a.e("s_nop 0")
        a.e(f"v_permlane16_swap_b32 v{O+4*u}, v{O+4*u+2}")
        a.e(f"v_permlane16_swap_b32 v{O+4*u+1}, v{O+4*u+3}")
        a.e(f"buffer_store_dwordx4 {v(O+4*u,4)}, v{vRM}, s[{sIO}:{sIO+3}], s{sT} offen offset:{(u & 1) * 64}" + str(opt.get("ofl", "")).replace("-", " "))
    ts(a, opt, ph, 5)
    a.label(f"{lo}_end")
```

```python
from common import *
import res, g1, g3

def gen(name, opt):
    t = gen_(name, opt)
    if opt.get("onlysc1"): t = t.replace(" sc0 sc1", " sc1")
    return t

def gen_(name, opt):
    a = Asm(); kernel_header(a, name)
    nph = opt.get("nph", 8)
    if opt.get("ts"): a.e("s_memrealtime s[100:101]")
    a.e("s_cmp_ge_u32 s2, 256"); a.e("s_cbranch_scc1 L_end")
    a.e(f"s_load_dwordx4 s[{pAX}:{pAX+3}], s[0:1], 0")
    a.e(f"s_load_dwordx2 s[{sWS}:{sWS+1}], s[0:1], 72")
    a.e(f"s_load_dwordx2 s[{pWO}:{pWO+1}], s[0:1], 16")
    a.e(f"s_load_dwordx4 s[{pW1}:{pW1+3}], s[0:1], 32")
    a.e(f"s_load_dwordx4 s[{pW2}:{pW2+3}], s[0:1], 48")
    a.e(f"s_load_dwordx2 s[{pDBG}:{pDBG+1}], s[0:1], 64")
    a.e("v_lshrrev_b32 v1, 6, v0")
    a.e(f"v_and_b32 v{vL}, 63, v0")
    a.e(f"v_readfirstlane_b32 s{sWAVE}, v1")
    a.e(f"v_lshrrev_b32 v{vG}, 4, v{vL}"); a.e(f"v_and_b32 v{vI}, 15, v{vL}"); a.e(f"v_lshlrev_b32 v{vL16}, 4, v{vL}")
    if opt.get("ts"): a.e("v_mov_b32 v255, 0")
    a.e(f"s_and_b32 s{sX}, s2, 7"); a.e(f"s_lshr_b32 s{sCI}, s2, 4"); a.e(f"s_lshr_b32 s{sQ}, s2, 3"); a.e(f"s_and_b32 s{sQ}, s{sQ}, 1")
    a.e(f"s_lshl_b32 s{sMT}, s{sX}, 1")
    a.e(f"s_add_u32 s{sMT}, s{sMT}, s{sQ}")
    a.e(f"s_and_b32 s{sHF}, s{sCI}, 1")
    a.e(f"s_lshl_b32 s{sMB}, s{sHF}, 1"); a.e(f"s_xor_b32 s{sMB}, s{sMB}, s{sMT}")
    a.e(f"s_and_b32 s{sT}, s{sX}, 1"); a.e(f"s_lshl_b32 s{sT}, s{sT}, 3"); a.e(f"s_lshr_b32 s{sNT}, s{sCI}, 1"); a.e(f"s_add_u32 s{sNT}, s{sNT}, s{sT}")
    a.e(f"s_and_b32 s{sK4}, s{sX}, 6"); a.e(f"s_lshl_b32 s{sK3}, s{sK4}, 1")
    a.e(f"s_sub_u32 s{sN8}, s{sNT}, s{sK4}"); a.e(f"s_add_u32 s{sN8}, s{sN8}, 3"); a.e(f"s_and_b32 s{sN8}, s{sN8}, 7")
    a.e(f"s_mov_b32 s{sLB}, 0"); a.e(f"s_mov_b32 s{sXM}, 1")
    a.e(f"s_and_b32 s{sW4}, s{sWAVE}, 3")
    a.e(f"s_mov_b32 s{sLAY}, 0"); a.e(f"s_mov_b32 s{sSLOW}, 1"); a.e(f"s_mov_b32 s{sSPIN}, {opt.get('spin', SPIN)}")
    a.e("s_waitcnt lgkmcnt(0)")
    if opt.get("ts"):
        a.e("v_writelane_b32 v255, s100, 53")
        a.e(f"s_memrealtime s[{sTS}:{sTS+1}]"); a.e("s_waitcnt lgkmcnt(0)"); a.e(f"v_writelane_b32 v255, s{sTS}, 13")
    make_srd(a, SW, sWS, WS_SIZE)
    a.e(f"s_cmp_ge_u32 s{sWAVE}, 4"); a.e("s_cbranch_scc1 L_load")
    def stop_check(p):
        if nph < 8 and (nph - 1) % 4 == p:
            a.e(f"s_cmp_eq_u32 s{sLAY}, {(nph - 1) // 4}"); a.e("s_cbranch_scc1 L_fin")
    a.e(f"s_mul_i32 s{sT}, s{sWAVE}, {g1.AS}"); a.e(f"v_add_u32 v8, s{sT}, v{vL16}")
    for i in range(4): a.e(f"v_mov_b32 v{4+i}, 0x{ONES:08x}")
    a.e("s_mov_b64 exec, 0xff")
    a.e("ds_write_b128 v8, v[4:7]")
    a.e("s_mov_b64 exec, -1")
    a.e("v_mov_b32 v0, 0")
    g1.x0_stats(a, opt)
    a.e(f"s_cmp_lg_u32 s{sWAVE}, 3"); a.e("s_cbranch_scc1 L_noinit")
    for i in range(4): a.e(f"v_mov_b32 v{i}, 0")
    a.e(f"s_lshl_b32 s{sT}, s2, 10"); a.e(f"s_add_u32 s{sT}, s{sT}, {M_XF}")
    a.e(f"buffer_store_dwordx4 v[0:3], v{vL16}, s[{SW}:{SW+3}], s{sT} offen{SC}")
    a.e(f"s_mul_i32 s{sT}, s2, 384"); a.e(f"s_add_u32 s{sT}, s{sT}, {M_FL}")
    a.e("s_mov_b64 exec, 0xffffff")
    a.e(f"buffer_store_dwordx4 v[0:3], v{vL16}, s[{SW}:{SW+3}], s{sT} offen{SC}")
    a.e("s_mov_b64 exec, -1")
    a.label("L_noinit")
    a.e("s_waitcnt lgkmcnt(0)")
    a.label("C_layer")
    g1.g1_cons(a, opt); stop_check(0)
    res.res_cons(a, opt, 1); stop_check(1)
    G0 = g3.G3(a, opt, 0); G0.w_setup(); G0.run(0); stop_check(2)
    res.res_cons(a, opt, 3, lambda p: signal(a, 2, 236, 237, p)); stop_check(3)
    a.e(f"s_add_u32 s{sLAY}, s{sLAY}, 1"); set_mode(a, opt)
    a.e(f"s_cmp_lt_u32 s{sLAY}, 2"); a.e("s_cbranch_scc1 C_layer")
    a.e("s_branch L_fin")
    a.flush_tail()
    a.label("L_load")
    if opt.get("lprio", 3): a.e(f"s_setprio {opt.get('lprio', 3)}")
    n2 = g1.g1_load0(a, opt)
    a.label("L_g2")
    stop_check(0)
    G3 = g3.G3(a, opt, 1)
    n3 = res.res_load(a, opt, 1, n2, G3.w_setup, lambda vm: G3.nxt(vm, opt.get("g3pre", 2)),
                      lambda idx, n: 0 if n else (opt.get("g3pc", 3) if idx < 14 else opt.get("g3pd", 11))); stop_check(1)
    if opt.get("lprio", 3): a.e(f"s_setprio {opt.get('g3prio', 1)}")
    G3.run(n3); stop_check(2)
    if opt.get("lprio", 3): a.e(f"s_setprio {opt.get('lprio', 3)}")
    n1 = res.res_load(a, opt, 3, res.CFG[3]['RW'], lambda: g1.g1_w_setup(a, opt, 1), lambda vm: g1.g1_nxt(a, vm, opt.get("g1pre", 6)), lambda idx, n: 0 if n else opt.get("g1pc", 2)); stop_check(3)
    a.e(f"s_cmp_eq_u32 s{sLAY}, 1"); a.e("s_cbranch_scc1 L_fin")
    a.e(f"s_mov_b32 s{sLAY}, 1"); set_mode(a, opt)
    n2b = g1.g1_load1(a, opt, n1)
    assert n2b == n2
    a.e("s_branch L_g2")
    a.flush_tail()
    a.label("L_fin")
    if opt.get("ts"):
        a.e(f"s_lshl_b32 s{sT}, s2, 3"); a.e(f"s_add_u32 s{sT}, s{sT}, s{sWAVE}"); a.e(f"s_lshl_b32 s{sT}, s{sT}, 8"); a.e(f"s_add_u32 s{sT}, s{sT}, {M_TS}")
        a.e(f"v_lshlrev_b32 v{vT0}, 2, v{vL}")
        a.e("s_waitcnt vmcnt(0)")
        a.e(f"s_memrealtime s[{sTS}:{sTS+1}]"); a.e("s_waitcnt lgkmcnt(0)"); a.e(f"v_writelane_b32 v255, s{sTS}, 21")
        a.e(f"buffer_store_dword v255, v{vT0}, s[{SW}:{SW+3}], s{sT} offen")
    a.label("L_abort")
    a.label("L_end")
    a.e("s_endpgm")
    return a.text()

if __name__ == "__main__":
    opt = parse_opts(sys.argv[2:])
    if opt.get("list"):
        t = build([("mega_kernel", 256, 512, 163840)], [gen("mega_kernel", opt)])
    else:
        KN = NAME + "_kernel"
        t = build([(KN, 256, 512, 163840)], [gen(KN, opt)], single=True)
    open(sys.argv[1], "w").write(t)
```

```python
from common import *
import res

AS = 18432; RA = 4; LW = 73984; WSL = 12416; WG = 3104; RW = 6; PW = 6144
XSCR = 18432
def wslot(st): return LW + ((st + 1) % RW) * WSL
def aslot(u): return ((u + 1) % RA) * AS
def events(): return barrier_events(32) + [("BE", 31, 31)]
PH = 0
sW = 8; sXR = 12
sWo, sWlo, sWhi, sWm = 16, 17, 18, 19
sAo, sAlo, sAhi, sAm, sHo, sHm = 20, 21, 22, 23, 24, 25
vWp = 10
vAp = 13


def k0_units(a, opt, dst):
    a.e(f"s_mov_b32 s{dst}, s{sK3}")


def g1_w_setup(a, opt, lay_next):
    make_srd(a, sW, pWQKV, 1024 * PW)
    a.e(f"v_lshrrev_b32 v{vT0}, 3, v{vL}")
    if lay_next == 0:
        a.e(f"v_and_b32 v{vT1}, 3, v{vT0}"); a.e(f"v_lshlrev_b32 v{vT1}, 3, v{vT1}")
        a.e(f"v_and_b32 v{vT0}, 4, v{vT0}"); a.e(f"v_add_u32 v{vT0}, v{vT0}, v{vT1}")
    else:
        a.e(f"v_lshlrev_b32 v{vT0}, 2, v{vT0}")
    a.e(f"v_add_u32 v{vT0}, s{sW4}, v{vT0}")
    a.e(f"v_mul_u32_u24 v{vT0}, {PW}, v{vT0}")
    a.e(f"v_and_b32 v{vT1}, 7, v{vL}")
    a.e(f"v_lshl_add_u32 v{vWp}, v{vT1}, 4, v{vT0}")
    a.e(f"v_add_u32 v{vWp+1}, 2048, v{vWp}")
    a.e(f"v_add_u32 v{vWp+2}, 4096, v{vWp}")
    a.e(f"s_mul_i32 s{sWm}, s{sW4}, {WG}")
    a.e(f"s_lshl_b32 s{sWlo}, s{sHP}, 7")
    a.e(f"s_add_u32 s{sWhi}, s{sWlo}, {1024 * PW}")
    k0_units(a, opt, sT)
    a.e(f"s_mul_i32 s{sT}, s{sT}, {64 * PW}")
    a.e(f"s_add_u32 s{sWo}, s{sWlo}, s{sT}")


def g1_nxt(a, vm, n):
    return [(wslot(st), wslot(st) + WSL, (lambda st=st: g1_w_issue(a, st, vm, None))) for st in range(n)]


def g1_w_issue(a, st, vm, tag):
    for i in range(3):
        a.e(f"s_add_u32 m0, s{sWm}, {wslot(st) + i * 1024}"); a.e("s_nop 0")
        a.e(f"buffer_load_dwordx4 v{vWp+i}, s[{sW}:{sW+3}], s{sWo} offen lds")
        vm.op(tag)
    a.e(f"s_add_u32 s{sWo}, s{sWo}, {32 * PW}"); a.e(f"s_cmp_eq_u32 s{sWo}, s{sWhi}"); a.e(f"s_cselect_b32 s{sWo}, s{sWlo}, s{sWo}")


def pretouch_o(a, vm, always=False):
    a.e(f"s_lshl_b32 s{sT}, s{sMB}, 4"); a.e(f"s_add_u32 s{sT}, s{sT}, s{sHP}"); a.e(f"s_lshl_b32 s{sT}, s{sT}, 2")
    a.e(f"s_add_u32 s{sT}, s{sT}, s{sW4}"); a.e(f"s_lshl_b32 s{sT}, s{sT}, 12")
    a.e(f"s_lshl_b32 s{sT2}, s{sLAY}, 22"); a.e(f"s_add_u32 s{sT}, s{sT}, s{sT2}"); a.e(f"s_add_u32 s{sT}, s{sT}, {WS_O}")
    if not always: a.e(f"s_cmp_eq_u32 s{sHF}, 0"); a.e(f"s_cselect_b32 s{sT}, s{sT}, 0x7f000000")
    a.e(f"v_lshlrev_b32 v{vT0}, 7, v{vL}")
    a.e("s_mov_b64 exec, 0xffffffff")
    a.e(f"buffer_load_dword v9, v{vT0}, s[{SW}:{SW+3}], s{sT} offen sc1"); vm.op()
    a.e("s_mov_b64 exec, -1")


def assist(a, opt, hooks):
    ah = opt.get("g1as", 4)
    if not ah: return
    a.e("s_lshr_b32 s40, s2, 3"); a.e("s_lshl_b32 s40, s40, 2"); a.e(f"s_add_u32 s40, s40, s{sW4}")
    a.e("s_and_b32 s41, s40, 63"); a.e(f"s_mul_i32 s41, s41, {PW}")
    a.e("s_and_b32 s40, s40, 64"); a.e("s_add_u32 s40, s40, s41"); a.e("s_add_u32 s40, s40, 384")
    a.e(f"s_and_b32 s41, s{sX}, 1"); a.e("s_lshl_b32 s41, s41, 10"); a.e("s_add_u32 s40, s40, s41")
    a.e(f"s_add_u32 s40, s{pWQKV}, s40"); a.e(f"s_addc_u32 s41, s{pWQKV+1}, 0")
    def go(u):
        a.e(f"s_add_u32 s42, s{sK3}, {u}"); a.e("s_and_b32 s42, s42, 15"); a.e(f"s_mul_i32 s42, s42, {64 * PW}")
        a.e("s_add_u32 s44, s40, s42"); a.e("s_addc_u32 s45, s41, 0")
        for seg in range(3): a.e(f"s_load_dword s43, s[44:45], {seg * 2048}")
    for p in range(-1, 16):
        us = [p + ah] if p >= 0 else list(range(2, ah))
        us = [u for u in us if u < 16]
        if not us: continue
        nm = f"B{p}" if p >= 0 else "Bm1"
        h0 = hooks.get(nm)
        hooks[nm] = (lambda us=us, h0=h0: ([go(u) for u in us], h0() if h0 else None))


def g1_sched(opt):
    la = lambda n, idx: 3
    cap = lambda idx: 2 if idx < 1 else 4
    nxtcap = lambda idx, n: opt.get("g2pc", 8) if idx < 16 else opt.get("g2pd", 5)
    return la, cap, nxtcap


def g1_load0(a, opt):
    vm = VM(a)
    make_srd(a, sXR, pAX, 4 * MB)
    if opt.get("coop", 0):
        make_srd(a, sW, pWQKV, 1024 * PW)
        l = a.new("co")
        a.e(f"s_cmp_eq_u32 s{sW4}, 3"); a.e(f"s_cbranch_scc1 {l}")
        a.e(f"s_lshl_b32 s{sT}, s{sQ}, 1"); a.e(f"s_add_u32 s{sT}, s{sT}, s{sHF}"); a.e(f"s_add_u32 s{sT}, s{sT}, s{sK3}"); a.e(f"s_mul_i32 s{sT}, s{sT}, {64 * PW}")
        a.e(f"s_lshl_b32 s{sT2}, s{sW4}, 4"); a.e(f"s_add_u32 s{sT2}, s{sT2}, s{sHP}"); a.e(f"s_lshl_b32 s{sT2}, s{sT2}, 7"); a.e(f"s_add_u32 s{sT}, s{sT}, s{sT2}")
        a.e(f"v_mul_u32_u24 v8, {PW}, v{vL}")
        a.e(f"buffer_load_dword v9, v8, s[{sW}:{sW+3}], s{sT} offen")
        a.e(f"s_branch {l}_d")
        a.label(l)
        a.e(f"s_lshl_b32 s{sT}, s{sMB}, 3"); a.e(f"s_and_b32 s{sT2}, s{sNT}, 7"); a.e(f"s_add_u32 s{sT}, s{sT}, s{sT2}"); a.e(f"s_lshl_b32 s{sT}, s{sT}, 15")
        a.e(f"s_lshl_b32 s{sT2}, s{sK3}, 7"); a.e(f"s_add_u32 s{sT}, s{sT}, s{sT2}")
        a.e(f"v_lshlrev_b32 v8, 11, v{vI}"); a.e(f"v_lshl_add_u32 v8, v{vG}, 7, v8")
        a.e(f"buffer_load_dword v9, v8, s[{sXR}:{sXR+3}], s{sT} offen")
        a.label(f"{l}_d")
    g1_w_setup(a, opt, 0)
    g1_w_issue(a, 0, vm, ("W", 0))
    a.e(f"v_lshrrev_b32 v{vT0}, 3, v{vL}")
    a.e(f"v_and_b32 v{vT1}, 6, v{vT0}")
    a.e(f"v_and_b32 v{vAp}, 7, v{vL}")
    a.e(f"v_xor_b32 v{vT1}, v{vT1}, v{vAp}")
    a.e(f"v_lshlrev_b32 v{vT1}, 4, v{vT1}")
    a.e(f"v_lshl_add_u32 v{vAp}, v{vT0}, 11, v{vT1}")
    for i in range(1, 4): a.e(f"v_add_u32 v{vAp+i}, {i * 16384}, v{vAp}")
    a.e(f"s_lshl_b32 s{sAlo}, s{sMB}, 18"); a.e(f"s_lshl_b32 s{sT}, s{sW4}, 16"); a.e(f"s_add_u32 s{sAlo}, s{sAlo}, s{sT}")
    a.e(f"s_add_u32 s{sAhi}, s{sAlo}, 2048")
    k0_units(a, opt, sT); a.e(f"s_lshl_b32 s{sT}, s{sT}, 7"); a.e(f"s_add_u32 s{sAo}, s{sAlo}, s{sT}")
    a.e(f"s_mul_i32 s{sHo}, s{sW4}, {(-24 * 2048) & 0xffffffff}"); a.e(f"s_sub_u32 s{sHo}, s{sHo}, 32768")
    a.e(f"s_cmp_eq_u32 s{sMB}, 0"); a.e(f"s_cselect_b32 s{sHo}, 0x7f000000, s{sHo}")
    a.e(f"s_lshl_b32 s{sAm}, s{sW4}, 12"); a.e(f"s_add_u32 s{sAm}, s{sAm}, 2048")
    a.e(f"s_lshl_b32 s{sHm}, s{sW4}, 10")
    a.e(f"s_cmp_eq_u32 s{sW4}, 0"); a.e(f"s_cselect_b32 s26, 0xffffff00, -1"); a.e("s_mov_b32 s27, -1")
    def issW(st): g1_w_issue(a, st, vm, ("W", st))
    def issA(u):
        l = a.new("nh")
        a.e(f"s_cmp_ge_u32 s{sW4}, 2"); a.e(f"s_cbranch_scc1 {l}")
        a.e(f"s_add_u32 m0, s{sHm}, {aslot(u)}"); a.e(f"s_add_u32 s{sT}, s{sAo}, s{sHo}")
        a.e("s_mov_b64 exec, s[26:27]")
        a.e(f"buffer_load_dwordx4 v{vAp}, s[{sXR}:{sXR+3}], s{sT} offen lds")
        a.e("s_mov_b64 exec, -1")
        a.label(l)
        for i in range(4):
            a.e(f"s_add_u32 m0, s{sAm}, {aslot(u) + i * 1024}"); a.e("s_nop 0")
            a.e(f"buffer_load_dwordx4 v{vAp+i}, s[{sXR}:{sXR+3}], s{sAo} offen lds"); vm.op(("A", u))
        a.e(f"s_add_u32 s{sAo}, s{sAo}, 128"); a.e(f"s_cmp_eq_u32 s{sAo}, s{sAhi}"); a.e(f"s_cselect_b32 s{sAo}, s{sAlo}, s{sAo}")
    W = Stream("W", 32, RW, issW, lambda u: (wslot(u), wslot(u) + WSL), issued=1)
    A = Stream("A", 32, RA, issA, lambda u: (aslot(u), aslot(u) + AS), unit=2)
    ts(a, opt, PH, 0)
    for nm in str(opt.get("g1p0", "AWWAWW")): (A if nm == "A" else W).go()
    sXC = 32
    make_srd(a, 28, pDBG, 256)
    a.e(f"s_getreg_b32 s{sXC}, hwreg(HW_REG_XCC_ID)")
    a.e(f"s_and_b32 s{sXC}, s{sXC}, 15"); a.e(f"s_or_b32 s{sXC}, s{sXC}, 0x80")
    def arrive():
        l = a.new("ar")
        a.e(f"s_cmp_lg_u32 s{sW4}, 3"); a.e(f"s_cbranch_scc1 {l}")
        a.e("s_and_b32 s33, s2, 3"); a.e("s_lshl_b32 s33, s33, 3"); a.e(f"s_lshl_b32 s33, s{sXC}, s33")
        a.e("s_and_b32 s46, s2, 0xfc"); a.e(f"s_add_u32 s46, s{pDBG}, s46"); a.e(f"s_addc_u32 s47, s{pDBG+1}, 0")
        a.e("s_atomic_or s33, s[46:47], 0" + (" glc" if opt.get("aglc") else ""))
        a.label(l)
    def hs1():
        a.e(f"v_lshlrev_b32 v71, 2, v{vL}")
        a.e(f"buffer_load_dword v72, v71, s[28:31], 0 offen sc1"); vm.op("HS")
    def hs2():
        l = a.new("hs")
        vm.wait("HS")
        a.e("v_and_b32 v73, 0x80808080, v72")
        a.e("v_cmp_ne_u32 vcc, 0x80808080, v73")
        a.e(f"s_cbranch_vccnz {l}")
        a.label(f"{l}_b")
        h = Asm()
        h.label(l)
        h.e(f"buffer_load_dword v72, v71, s[28:31], 0 offen sc1")
        spin_guard(h)
        h.e("s_waitcnt vmcnt(0)")
        h.e("v_and_b32 v73, 0x80808080, v72")
        h.e("v_cmp_ne_u32 vcc, 0x80808080, v73")
        h.e(f"s_cbranch_vccnz {l}")
        h.e(f"s_branch {l}_b")
        a.ool([x.strip() for x in h.L])
        a.e(f"s_mul_i32 s{sT2}, s{sW4}, 36"); a.e(f"v_add_u32 v75, s{sT2}, v{vL}")
        a.e(f"s_lshl_b32 s{sT}, s{sMB}, 7"); a.e(f"s_sub_u32 s{sT}, s{sT}, 16")
        a.e(f"v_add_u32 v76, s{sT}, v75"); a.e("v_and_b32 v76, 0x7ff, v76")
        a.e("v_lshrrev_b32 v77, 1, v76"); a.e("v_and_b32 v76, 1, v76")
        a.e("v_lshlrev_b32 v77, 6, v77"); a.e("v_lshl_add_u32 v74, v76, 3, v77")
        a.e(f"s_mov_b32 s{sT}, {M_S0}")
        a.e("s_mov_b32 exec_hi, 15")
        a.e(f"buffer_load_dwordx2 {v(76,2)}, v74, s[{SW}:{SW+3}], s{sT} offen sc1"); vm.op("S0")
        a.e("s_mov_b64 exec, -1")
        a.e("v_lshlrev_b32 v75, 3, v75"); a.e(f"v_add_u32 v75, {L_ST}, v75")
        a.e(f"s_and_b32 s{sT}, s{sX}, 3"); a.e(f"s_lshl_b32 s{sT}, s{sT}, 3")
        a.e(f"v_bfe_u32 v72, v72, s{sT}, 8")
        a.e(f"v_cmp_ne_u32 vcc, s{sXC}, v72")
        a.e(f"s_lshr_b32 s{sT}, s{sX}, 2")
        a.e(f"s_lshl_b32 s{sT2}, 0x55555555, s{sT}")
        a.e(f"s_or_b32 s{sT}, vcc_lo, vcc_hi"); a.e(f"s_and_b32 s{sT}, s{sT}, s{sT2}")
        a.e(f"s_cselect_b32 s{sSLOW}, 1, 0")
        if opt.get("forceslow"): a.e(f"s_mov_b32 s{sSLOW}, 1")
        set_mode(a, opt)
    def hs3():
        vm.wait("S0")
        a.e(f"v_mov_b32 v72, s{sSLOW}"); a.e(f"v_mov_b32 v73, {L_MODE}")
        a.e("s_mov_b32 exec_hi, 15")
        a.e(f"ds_write_b64 v75, {v(76,2)}")
        a.e("ds_write_b32 v73, v72")
        a.e("s_mov_b64 exec, -1")
    def tail():
        pretouch_o(a, vm, always=opt.get("tx1", 0))
        if opt.get("tx1", 0):
            a.e(f"s_lshl_b32 s{sT}, s{sMT}, 4"); a.e(f"s_add_u32 s{sT}, s{sT}, s{sCI}"); a.e(f"s_lshl_b32 s{sT}, s{sT}, 2"); a.e(f"s_add_u32 s{sT}, s{sT}, s{sW4}")
            a.e(f"s_lshl_b32 s{sT}, s{sT}, 12")
            a.e("s_mov_b64 exec, 0xffffffff")
            a.e(f"buffer_load_dword v9, v{vT0}, s[{SW}:{SW+3}], s{sT} offen sc1"); vm.op()
            a.e("s_mov_b64 exec, -1")
        res.res_w_setup(a, 1)
    hooks = {"B1": arrive}
    hooks["B11"] = hs1; hooks["B13"] = hs2; hooks["B15"] = hs3
    if opt.get("vw", 1):
        a.e("s_cmp_lt_u32 s2, 128")
        a.e(f"s_cselect_b32 s36, s{pW1}, s{pW3}"); a.e(f"s_cselect_b32 s37, s{pW1+1}, s{pW3+1}")
        a.e(f"s_mov_b32 s38, {1024 * 7168}"); a.e("s_mov_b32 s39, 0x00020000")
        a.e("s_and_b32 s34, s2, 127"); a.e("s_mul_i32 s34, s34, 57344")
        a.e(f"v_lshlrev_b32 v70, 7, v{vL}")
        at = [int(x) for x in str(opt.get("vwat", "1x7")).split("x")]
        nl = 112 // len(at)
        a.e(f"s_mul_i32 s35, s{sW4}, 14336"); a.e("s_add_u32 s34, s34, s35")
        stag = opt.get("vws", 6)
        a.e("s_lshr_b32 s35, s2, 3"); a.e(f"s_mul_i32 s33, s35, {65536 // stag + 1}"); a.e("s_lshr_b32 s33, s33, 16")
        a.e(f"s_mul_i32 s33, s33, {stag}"); a.e("s_sub_u32 s35, s35, s33")
        def vwarm(ph_):
            l = a.new("vw")
            if stag > 1: a.e(f"s_cmp_lg_u32 s35, {ph_}"); a.e(f"s_cbranch_scc1 {l}")
            if nl < 64:
                mk = (1 << nl) - 1
                a.e(f"s_mov_b32 exec_lo, {mk & 0xffffffff}"); a.e(f"s_mov_b32 exec_hi, {mk >> 32}")
            a.e("buffer_load_dword v69, v70, s[36:39], s34 offen")
            if stag == 1: vm.op()
            a.e("s_mov_b64 exec, -1")
            a.e(f"s_add_u32 s34, s34, {nl * 128}")
            a.label(l)
        for p0 in at:
            for ph_ in range(stag):
                p = p0 + ph_
                nm = f"B{p}" if p < 16 else "BE"
                h0 = hooks.get(nm)
                hooks[nm] = (lambda ph_=ph_, h0=h0: (h0() if h0 else None, vwarm(ph_)))
    assist(a, opt, hooks)
    pre = []
    la, cap, nxtcap = g1_sched(opt)
    log = []
    n = run_loader(a, vm, events(), [A, W], pre, la, cap, hooks, tail, res.res_nxt(a, 1, vm, 22), nxtcap, log, tl=opt.get("tl") == "g1a", lgk={"BE"})
    if opt.get("log"): print("g1a", log)
    ts(a, opt, PH, 2)
    return n


def g1_load1(a, opt, prefetched):
    vm = VM(a)
    a.e(f"s_lshl_b32 s{sAlo}, s{sMB}, 18"); a.e(f"s_add_u32 s{sAlo}, s{sAlo}, {WS_X + 4 * MB}")
    a.e(f"s_lshl_b32 s{sT}, s{sW4}, 11"); a.e(f"s_add_u32 s{sAlo}, s{sAlo}, s{sT}")
    a.e(f"s_lshl_b32 s{sAm}, s{sW4}, 12"); a.e(f"s_add_u32 s{sAm}, s{sAm}, 2048")
    a.e(f"s_add_u32 s{sAhi}, s{sAlo}, {32 * 8192}")
    k0_units(a, opt, sT)
    a.e(f"s_lshl_b32 s{sT2}, s{sT}, 14"); a.e(f"s_add_u32 s{sAo}, s{sAlo}, s{sT2}")
    sHlo, sHk, sMP = 26, 27, 28
    a.e(f"s_sub_u32 s{sMP}, s{sMB}, 1"); a.e(f"s_and_b32 s{sMP}, s{sMP}, 15")
    a.e(f"s_lshl_b32 s{sHlo}, s{sMP}, 18"); a.e(f"s_add_u32 s{sHlo}, s{sHlo}, {WS_X + 4 * MB + 7 * 1024}")
    a.e(f"s_lshl_b32 s{sHk}, s{sT}, 14")
    a.e(f"v_lshlrev_b32 v{res.vPO}, 5, v{vL}")
    a.e(f"s_lshl_b32 s35, s{sX}, 10"); a.e(f"s_add_u32 s35, s35, {M_FL + 3 * 8192}")
    a.e(f"s_xor_b32 s36, s{sX}, 1"); a.e("s_lshl_b32 s36, s36, 9")
    a.e(f"s_sub_u32 s37, s{sK4}, 1"); a.e("s_and_b32 s37, s37, 7"); a.e("s_lshl_b32 s37, s37, 9")
    a.e("v_mov_b32 v8, s36"); a.e("v_writelane_b32 v8, s37, 1")
    a.e(f"s_mov_b32 s37, {M_RF + 8192 + 384}")
    ts(a, opt, PH, 0)
    poll(a, 35, res.vPO, res.vPL, 4, "0xffffffff")
    ts(a, opt, PH, 3)
    relay(a, M_RF + 8192, res.vPL + 2, res.vPL + 3)
    poll(a, 37, 8, res.vPL, 1, "3")
    ts(a, opt, PH, 1)
    def issW(st): g1_w_issue(a, st, vm, ("W", st))
    def issA(st):
        base = aslot(st >> 1) + (st & 1) * 1024
        l = a.new("nh")
        a.e(f"s_cmp_lg_u32 s{sW4}, {9 if opt.get('dbgnohalo') else st & 3}"); a.e(f"s_cbranch_scc1 {l}")
        a.e(f"s_add_u32 s{sT}, s{sHk}, {st * 8192}"); a.e(f"s_and_b32 s{sT}, s{sT}, 0x3ffff")
        a.e(f"s_mov_b32 m0, {base}"); a.e(f"s_add_u32 s{sT}, s{sT}, s{sHlo}")
        a.e(f"buffer_load_dwordx4 v{vL16}, s[{SW}:{SW+3}], s{sT} offen sc1 lds")
        a.label(l)
        for i in range(2):
            a.e(f"s_add_u32 m0, s{sAm}, {base + i * 1024}"); a.e("s_nop 0")
            a.e(f"buffer_load_dwordx4 v{vL16}, s[{SW}:{SW+3}], s{sAo} offen offset:{i*1024} sc1 lds"); vm.op(("A", st))
        if not opt.get("dbgsameA"):
            a.e(f"s_add_u32 s{sAo}, s{sAo}, 8192"); a.e(f"s_cmp_eq_u32 s{sAo}, s{sAhi}"); a.e(f"s_cselect_b32 s{sAo}, s{sAlo}, s{sAo}")
    W = Stream("W", 32, RW, issW, lambda u: (wslot(u), wslot(u) + WSL), issued=prefetched)
    A = Stream("A", 32, 2 * RA, issA, lambda u: (aslot(u >> 1), aslot(u >> 1) + AS))
    SB = 32; HB = 64; vX = 80
    sSO = 29
    def hst_load():
        a.e(f"s_lshl_b32 s{sT}, s{sMP}, 15"); a.e(f"s_add_u32 s{sT}, s{sT}, {M_ST + 524288 + 112 * 8}")
        a.e(f"v_and_b32 v{vX+1}, 7, v{vI}"); a.e(f"v_lshlrev_b32 v{vX+1}, 4, v{vX+1}")
        a.e(f"v_lshrrev_b32 v{vT0}, 3, v{vL}"); a.e(f"v_lshl_add_u32 v{vX+1}, v{vT0}, 12, v{vX+1}")
        l = a.new("hs")
        a.e(f"s_cmp_lg_u32 s{sW4}, 3"); a.e(f"s_cbranch_scc1 {l}")
        for i in range(4):
            a.e(f"buffer_load_dwordx4 {v(HB+4*i,4)}, v{vX+1}, s[{SW}:{SW+3}], s{sT} offen offset:{i*1024} sc1")
        a.label(l)
        a.e(f"s_lshl_b32 s{sSO}, s{sMB}, 15"); a.e(f"s_lshl_b32 s{sT2}, s{sW4}, 8"); a.e(f"s_add_u32 s{sSO}, s{sSO}, s{sT2}")
        a.e(f"s_add_u32 s{sSO}, s{sSO}, {M_ST + 524288}")
        stats_lane(a, vX)
    def st_load(k):
        for i in (2 * k, 2 * k + 1):
            a.e(f"buffer_load_dwordx4 {v(SB+4*i,4)}, v{vX}, s[{SW}:{SW+3}], s{sSO} offen offset:{(i&1)*1024} sc1"); vm.op("S")
        a.e(f"s_add_u32 s{sSO}, s{sSO}, 2048")
    def st_fin():
        a.e(f"s_lshl_b32 s{sSO}, s{sW4}, 8"); a.e(f"s_add_u32 s{sSO}, s{sSO}, {L_ST + 128}")
        stats_reduce(a, SB, 8, vX, f"s{sSO}")
    def hst_fin():
        l = a.new("hf")
        a.e(f"s_cmp_lg_u32 s{sW4}, 3"); a.e(f"s_cbranch_scc1 {l}")
        stats_reduce(a, HB, 4, vX + 1, L_ST, sub=True)
        a.label(l)
    def tail():
        pretouch_o(a, vm); res.res_w_setup(a, 1)
    def capture(fn):
        n0 = len(a.L); fn(); o = a.L[n0:]; del a.L[n0:]; return [x.strip() for x in o]
    hooks = {"B4": hst_load}
    for k in range(4): hooks[f"B{5+k}"] = (lambda k=k: st_load(k))
    hooks["B15"] = hst_fin
    mid = {}
    def piece(i, cuts=(0, 16, 32, 46, 99)):
        if i == 0:
            vm.wait("S"); piece.L = capture(st_fin)
        a.es(piece.L[cuts[i]:cuts[i + 1]])
    for i, p in enumerate((10, 11, 12, 14)): mid[f"B{p}"] = (lambda i=i: piece(i))
    assist(a, opt, hooks)
    pre = ["A", "A"] + ["W"] * max(0, 3 - prefetched) + ["A"]
    la, cap, nxtcap = g1_sched(opt)
    cap = lambda idx: 2 if idx < 1 else opt.get("g1cap", 5)
    log = []
    n = run_loader(a, vm, events(), [A, W], pre, la, cap, hooks, tail, res.res_nxt(a, 1, vm, 22), nxtcap, log, tl=opt.get("tl") == "g1b", lgk={"BE"}, mid_hooks=mid)
    if opt.get("log"): print("g1b", log)
    ts(a, opt, PH, 2)
    return n


def x0_stats(a, opt):
    make_srd(a, 8, pAX, 4 * MB)
    D = 16; S = 48; vOne = 56
    a.e(f"s_lshl_b32 s16, s{sCI}, 2"); a.e(f"s_add_u32 s16, s16, s{sWAVE}"); a.e("s_lshl_b32 s16, s16, 1")
    a.e(f"s_lshl_b32 s17, s{sMT}, 7"); a.e("s_add_u32 s18, s17, s16"); a.e("s_lshl_b32 s18, s18, 11")
    for i in range(4): a.e(f"buffer_load_dwordx4 {v(D+4*i,4)}, v{vL16}, s[8:11], s18 offen offset:{i*1024}")
    a.e(f"v_mov_b32 v{vOne}, 0x{ONES:08x}")
    yield
    a.e("s_waitcnt vmcnt(0)")
    for i in range(8):
        for k in range(2):
            a.e(f"v_dot2_f32_bf16 v{S+2*k}, v{D+8*k+i}, v{vOne}, " + ("0" if i == 0 else f"v{S+2*k}"))
            a.e(f"v_dot2_f32_bf16 v{S+2*k+1}, v{D+8*k+i}, v{D+8*k+i}, " + ("0" if i == 0 else f"v{S+2*k+1}"))
    a.e("s_nop 2")
    for pat in ("quad_perm:[1,0,3,2]", "quad_perm:[2,3,0,1]", "row_half_mirror", "row_mirror"):
        for i in range(4): a.e(f"v_add_f32_dpp v{S+i}, v{S+i}, v{S+i} {pat} row_mask:0xf bank_mask:0xf")
    a.e(f"v_cmp_eq_u32 vcc, 1, v{vL}")
    xreduce(a, list(range(S, S + 4)), list(range(D, D + 4)))
    a.e(f"v_cndmask_b32 v{S}, v{S}, v{S+2}, vcc"); a.e(f"v_cndmask_b32 v{S+1}, v{S+1}, v{S+3}, vcc")
    finish_stats(a, S, S + 1)
    a.e(f"v_lshlrev_b32 v{D}, 3, v{vL}")
    a.e(f"s_lshl_b32 s17, s{sMT}, 12"); a.e("s_lshl_b32 s16, s16, 5"); a.e("s_add_u32 s17, s17, s16"); a.e(f"s_add_u32 s17, s17, {M_S0}")
    a.e("s_mov_b64 exec, 0xff")
    a.e(f"buffer_store_dwordx2 {v(S,2)}, v{D}, s[{SW}:{SW+3}], s17 offen{SC}")
    a.e("s_mov_b64 exec, -1")


def g1_cons(a, opt):
    ACCQ = 0; ACCK = 32; ACCV = 72; AQH = 112
    XF = 116; WF = 156
    vXa = 204; vXc = 206; vW0 = 208; vWc = 209; vOA = 210
    sSl, sAs, sCnt, s_h, sRH, sO, sZ, sSC = 16, 17, 18, 19, 20, 21, 22, 23
    sM = 28; sPM = 44
    def aq(j, ab): return ACCQ + ((j - 1) * 2 + ab) * 4
    def ak(j, ab): return ACCK + (j * 2 + ab) * 4
    def av(j, ab): return ACCV + (j * 2 + ab) * 4
    def xf(b, j): return XF + b * 20 + j * 4
    def wf(b, seg, ab): return WF + b * 24 + (seg * 2 + ab) * 4
    a.e(f"s_and_b32 s{s_h}, s{sWAVE}, 1"); a.e(f"s_lshr_b32 s{sRH}, s{sWAVE}, 1")
    l = a.new("ad")
    a.e(f"s_cmp_lg_u32 s{sLAY}, 0"); a.e(f"s_cbranch_scc1 {l}_f")
    a.e(f"v_lshlrev_b32 v{vT0}, 7, v{vI}")
    a.e(f"v_and_b32 v{vT1}, 6, v{vL}"); a.e(f"v_xor_b32 v{vT1}, v{vT1}, v{vG}")
    a.e(f"v_lshl_add_u32 v{vXa}, v{vT1}, 4, v{vT0}")
    a.e(f"v_xor_b32 v{vXa+1}, 64, v{vXa}")
    a.e(f"s_branch {l}_d")
    a.label(f"{l}_f")
    a.e(f"v_mov_b32 v{vXa}, v{vL16}"); a.e(f"v_add_u32 v{vXa+1}, 1024, v{vL16}")
    a.label(f"{l}_d")
    a.e(f"v_lshrrev_b32 v{vT0}, 2, v{vI}"); a.e(f"v_mul_u32_u24 v{vT0}, {WG}, v{vT0}")
    a.e(f"v_lshl_add_u32 v{vT0}, v{vG}, 7, v{vT0}")
    a.e(f"v_and_b32 v{vT1}, 3, v{vI}"); a.e(f"v_lshl_add_u32 v{vT0}, v{vT1}, 3, v{vT0}")
    a.e(f"s_lshl_b32 s{sT}, s{s_h}, 6"); a.e(f"s_add_u32 s{sT}, s{sT}, {LW}")
    a.e(f"v_add_u32 v{vW0}, s{sT}, v{vT0}")
    a.e(f"v_mov_b32 v{vWc}, v{vW0}")
    a.e(f"s_mov_b32 s{sSl}, 0"); a.e(f"s_mov_b32 s{sAs}, {aslot(0)}")
    a.e(f"v_add_u32 v{vXc}, s{sAs}, v{vXa}"); a.e(f"v_add_u32 v{vXc+1}, s{sAs}, v{vXa+1}")
    a.e(f"s_lshl_b32 s{sO}, s{sMB}, 4"); a.e(f"s_add_u32 s{sO}, s{sO}, s{sHP}"); a.e(f"s_lshl_b32 s{sO}, s{sO}, 1")
    a.e(f"s_add_u32 s{sO}, s{sO}, s{s_h}"); a.e(f"s_lshl_b32 s{sO}, s{sO}, 1"); a.e(f"s_add_u32 s{sO}, s{sO}, s{sRH}"); a.e(f"s_lshl_b32 s{sO}, s{sO}, 12")
    a.e(f"s_lshl_b32 s{sT}, s{sLAY}, 22"); a.e(f"s_add_u32 s{sO}, s{sO}, s{sT}"); a.e(f"s_add_u32 s{sO}, s{sO}, {WS_O}")
    sPAR, sCUR, sFM = 28, 30, 34
    vMK = 232
    vE, vC, vC2, vS1, vS2 = 236, 237, 238, 239, 240
    a.e(f"v_and_b32 v{vT1}, 1, v{vI}")
    a.e(f"v_cmp_eq_u32 s[{sPAR}:{sPAR+1}], 1, v{vT1}")
    a.e(f"v_lshlrev_b32 v{vT0}, 2, v{vG}"); a.e(f"v_sub_u32 v{vT0}, v{vI}, v{vT0}"); a.e(f"v_sub_u32 v{vT0}, v{vT0}, v{vT1}")
    a.e(f"v_lshlrev_b32 v{vT1}, 4, v{vT1}"); a.e(f"v_mov_b32 v{vOA}, 0xffff"); a.e(f"v_lshlrev_b32 v{vOA}, v{vT1}, v{vOA}")
    for k in range(2): a.e(f"v_cmp_le_i32 s[{sCUR+2*k}:{sCUR+2*k+1}], {2*k}, v{vT0}")
    a.e(f"s_or_b32 s{sZ}, s{sMB}, s{sRH}")
    a.e(f"s_cmp_eq_u32 s{sZ}, 0")
    for k in range(2): a.e(f"s_cselect_b64 s[{sFM+2*k}:{sFM+2*k+1}], s[{sCUR+2*k}:{sCUR+2*k+1}], -1")
    for k in range(2):
        a.e(f"v_cndmask_b32 v{vMK+k}, v{vOA}, 0, s[{sCUR+2*k}:{sCUR+2*k+1}]")
        a.e(f"v_cndmask_b32 v{vMK+2+k}, 0, v{vOA}, s[{sCUR+2*k}:{sCUR+2*k+1}]")
    a.e(f"s_mov_b32 s{sSC}, 0x{fbits((32 ** -0.5) * 1.4426950408889634):08x}")
    a.e(f"s_mul_i32 s{sT}, s{s_h}, 6144"); a.e(f"s_add_u32 s{sT}, s{sT}, {XSCR}"); a.e(f"v_add_u32 v{vE}, s{sT}, v{vL16}")
    a.e(f"s_mul_i32 s{sT}, s{s_h}, 384"); a.e(f"s_add_u32 s{sT}, s{sT}, {L_CS1}")
    a.e(f"v_lshlrev_b32 v{vC}, 4, v{vG}"); a.e(f"v_add_u32 v{vC}, s{sT}, v{vC}")
    a.e(f"v_lshlrev_b32 v{vC2}, 2, v{vI}"); a.e(f"v_add_u32 v{vC2}, s{sT}, v{vC2}")
    a.e(f"s_lshl_b32 s{sT}, s{sRH}, 9"); a.e(f"s_add_u32 s{sT}, s{sT}, {L_ST}")
    a.e(f"v_lshlrev_b32 v{vS1}, 3, v{vI}"); a.e(f"v_add_u32 v{vS1}, s{sT}, v{vS1}")
    a.e(f"v_lshlrev_b32 v{vS2}, 5, v{vG}"); a.e(f"v_add_u32 v{vS2}, s{sT}, v{vS2}")
    vKa = 244
    a.e(f"v_and_b32 v{vT1}, 1, v{vI}"); a.e(f"v_lshl_add_u32 v{vT1}, v{vT1}, 3, v{vS2}"); a.e(f"v_mov_b32 v{vT0}, 128")
    for k in range(2):
        a.e(f"v_cndmask_b32 v{vKa+k}, 0, v{vT0}, s[{sCUR+2*k}:{sCUR+2*k+1}]")
        a.e(f"v_add3_u32 v{vKa+k}, v{vKa+k}, v{vT1}, {16*k + 4}")
    a.e(f"v_mov_b32 v241, {L_MODE}")
    for i in range(4): a.e(f"v_mov_b32 v{212+i}, 0")
    a.e(f"s_mov_b32 s{sCnt}, 16")
    a.e("s_nop 0")
    for i in range(0, 128, 16): a.e(f"v_mfma_f32_32x32x16_bf16 {v(i,16)}, {v(212,4)}, {v(212,4)}, 0")
    a.e("s_nop 7"); a.e("s_nop 3")
    CSQ = 116; CSV = 132; MQ = 156; RK = 166; SV = 136; CQ = 200; VP = 212
    RQ = 174
    a.e(f"s_lshl_b32 s{sT}, s{sLAY}, 1"); a.e(f"s_add_u32 s{sT}, s{sT}, s{sRH}")
    for vv in range(1, 4): a.e(f"s_cmp_eq_u32 s{sT}, {vv}"); a.e(f"s_cbranch_scc1 g1c_v{vv}")
    for vv in range(4):
        rh = vv & 1; lay = vv >> 1
        if vv: a.label(f"g1c_v{vv}")
        def reads(b):
            g = []
            ws = [(2, 0), (2, 1), (1, 1), (1, 0), (0, 0), (0, 1)]
            xs = [0, 4, 3, 2, 1]
            wo = WSL if b == 0 else 0
            for i in range(6):
                if i < 5:
                    j = xs[i]
                    g.append(f"ds_read_b128 {v(xf(b,j),4)}, v{vXc+b} offset:{(4*rh + j) * 2048 if j else 0}")
                seg, ab = ws[i]
                g.append(f"ds_read_b64_tr_b16 {v(wf(b,seg,ab),2)}, v{vWc} offset:{wo + seg*1024 + ab*32}")
                g.append(f"ds_read_b64_tr_b16 {v(wf(b,seg,ab)+2,2)}, v{vWc} offset:{wo + seg*1024 + ab*32 + 512}")
            return g
        def mfs(b, last=False):
            zz = [(0, 4), (0, 3), (0, 2), (0, 1), (1, 1), (1, 2), (1, 3), (1, 4)]
            Q = [mfma(aq(j, ab), wf(b, 0, ab), xf(b, j)) for ab, j in zz]
            K = [mfma(ak(j, ab), wf(b, 1, ab), xf(b, j)) for ab, j in zz]
            V = [mfma(av(j, ab), xf(b, j), wf(b, 2, ab)) for ab, j in zz]
            Hq = [mfma(AQH, wf(b, 0, rh), xf(b, 0))] if lay == 0 else []
            if rh == 0:
                H = Hq + [mfma(ak(0, ab), wf(b, 1, ab), xf(b, 0)) for ab in (1, 0)]
                if last: return H + [K[0], K[7], V[7], V[0]] + Q + K[1:7] + V[1:7]
                return V + H + K + Q
            H = Hq + [mfma(av(0, ab), xf(b, 0), wf(b, 2, ab)) for ab in (1, 0)]
            if last: return H + Q + K + V
            return H + V + K + Q
        NM_ = 27 - lay
        advW = [[f"s_add_u32 s{sSl}, s{sSl}, {2*WSL}", f"s_cmp_eq_u32 s{sSl}, {RW * WSL}"], [f"s_cselect_b32 s{sSl}, 0, s{sSl}"],
                [f"v_add_u32 v{vWc}, s{sSl}, v{vW0}"]]
        advA = [[f"s_add_u32 s{sAs}, s{sAs}, {AS}", f"s_cmp_eq_u32 s{sAs}, {RA * AS}"], [f"s_cselect_b32 s{sAs}, 0, s{sAs}"],
                [f"v_add_u32 v{vXc}, s{sAs}, v{vXa}"], [f"v_add_u32 v{vXc+1}, s{sAs}, v{vXa+1}"]]
        rdend = opt.get("g1rd", 17)
        def step(b, post):
            m = mfs(b); sl = {}
            spread(reads(1 - b), 0, rdend, sl)
            spread(post, rdend + 1, NM_ - 2, sl)
            sl.setdefault(NM_ - 1, []).append("s_waitcnt vmcnt(0) lgkmcnt(0)" if (b and lay == 0) else "s_waitcnt lgkmcnt(0)")
            a.es(place(m, sl))
        ts(a, opt, PH, 0)
        a.e("s_barrier")
        ts(a, opt, PH, 1)
        a.es(reads(0))
        for gq in advW: a.es(gq)
        a.e("s_waitcnt lgkmcnt(0)")
        tsc(a, opt, PH, 6)
        a.e(f"s_branch g1c_ent{vv}")
        a.label(f"g1c_loop{vv}")
        step(1, advW)
        a.label(f"g1c_ent{vv}")
        a.e("s_barrier")
        step(0, advA + [[f"s_sub_u32 s{sCnt}, s{sCnt}, 1", f"s_cmp_lg_u32 s{sCnt}, 0"]])
        a.e(f"s_cbranch_scc1 g1c_loop{vv}")
        m = mfs(1, last=True); sl = {}
        w = []
        M1 = ["s_mov_b32 exec_lo, 0x00010001", "s_mov_b32 exec_hi, 0x00010001"]
        if rh == 0:
            if lay == 0:
                w.append(M1 + [f"ds_write_b128 v{vC}, {v(AQH,4)}"] + [f"ds_write_b128 v{vC}, {v(ak(0,ab),4)} offset:{128 + 64*ab}" for ab in range(2)] + ["s_mov_b64 exec, -1"])
            w += [[f"ds_write_b128 v{vE}, {v(r,4)} offset:{i*1024}"] for i, r in ((0, ak(4, 0)), (1, ak(4, 1)), (3, av(4, 1)), (2, av(4, 0)))]
            rx = [f"ds_read_b128 {v(av(0,ab),4)}, v{vE} offset:{(4+ab)*1024}" for ab in range(2)]
        else:
            if lay == 0:
                w.append(M1 + [f"ds_write_b128 v{vC}, {v(AQH,4)} offset:64", "s_mov_b64 exec, 0xffff"] +
                         [f"ds_write_b32 v{vC2}, v{av(0,ab)} offset:{256 + 64*ab}" for ab in range(2)] + ["s_mov_b64 exec, -1"])
            w += [[f"ds_write_b128 v{vE}, {v(av(0,ab),4)} offset:{(4+ab)*1024}"] for ab in range(2)]
            rx = [f"ds_read_b128 {v(r,4)}, v{vE} offset:{i*1024}" for i, r in enumerate((ak(0, 0), ak(0, 1), av(0, 0), av(0, 1)))]
        for i, gq in enumerate(w): sl[11 + i] = gq
        bp = opt.get("g1bp", 18)
        sl[bp] = ["s_waitcnt lgkmcnt(0)", "s_barrier"]
        rd = [f"ds_read_b128 {v(CSQ+4*i,4)}, v{vC} offset:{64*i}" for i in range(4)]
        rd += [f"ds_read2_b32 {v(MQ+2*j,2)}, v{vS1} offset0:{32*j} offset1:{32*j}" for j in (1, 2, 3, 4, 0)]
        rd = rd[:2] + rd[4:8] + rd[2:4] + rd[8:] + rx
        spread(rd, bp, NM_ - 2, sl)
        a.es(place(m, sl))
        tsc(a, opt, PH, 7)
        ts(a, opt, PH, 2)
        a.e(f"s_waitcnt lgkmcnt({len(rx) + 1})")
        if vv < 3: a.e("s_branch g1c_epi")
    a.label("g1c_epi")
    a.e("ds_read_b32 v241, v241")
    for ab in range(2): a.e(f"ds_read2_b32 {v(CSV+2*ab,2)}, v{vC2} offset0:{64 + 16*ab} offset1:{64 + 16*ab}")
    for i in range(2): a.e(f"ds_read2_b32 {v(RQ+2*i,2)}, v{vS1} offset0:{32*(2*i+1)+1} offset1:{32*(2*i+2)+1}")
    ts(a, opt, PH, 3)
    NEGM = " neg_lo:[1,0,0] neg_hi:[1,0,0]"
    def svread(j): return [f"ds_read2_b32 {v(SV+4*j+2*k,2)}, v{vS2} offset0:{32*j + 4*k} offset1:{32*j + 4*k + 2}" for k in range(2)]
    def pack4(c): return [f"v_cvt_pk_bf16_f32 v{c+k}, v{c+2*k}, v{c+2*k+1}" for k in range(4)]
    def cen(c, j, cs): return [f"v_pk_fma_f32 {v(c+r,2)}, {v(MQ+2*j,2)}, {v(cs+r,2)}, {v(c+r,2)}{NEGM}" for r in (0, 2, 4, 6)]
    for j in range(1, 5):
        a.es(cen(aq(j, 0), j, CSQ) + cen(ak(j, 0), j, CSQ + 8)); a.es(svread(j))
        a.es(pack4(aq(j, 0)) + pack4(ak(j, 0)))
        if j == 2: a.e("s_waitcnt lgkmcnt(2)")
    a.es(svread(0))
    for k in range(2):
        for i in range(2): a.e(f"ds_read2_b32 {v(RK+4*k+2*i,2)}, v{vKa+k} offset0:{64*i} offset1:{64*i+32}")
    a.es(cen(ak(0, 0), 0, CSQ + 8))
    for i in range(4): a.e(f"v_mul_f32 v{CQ+i}, s{sSC}, v{RQ+i}")
    a.es(pack4(ak(0, 0)))
    a.e(f"v_readfirstlane_b32 s{sSLOW}, v241")
    S = [116, 124, 178, 186]
    J = range(4)
    set_mode(a, opt)
    for i in J:
        j = i + 1
        a.e(mfma(S[i], ak(j, 0), aq(j, 0), "0"))
        a.e(mfma(S[i] + 4, ak(j - 1, 0), aq(j, 0), "0"))
    a.e("s_waitcnt lgkmcnt(0)")
    for j in (1, 2, 3, 4, 0):
        for ab in range(2):
            for k in range(2): a.e(f"v_pk_fma_f32 {v(av(j,ab)+2*k,2)}, {v(SV+4*j+2*k,2)}, {v(CSV+2*ab,2)}, {v(av(j,ab)+2*k,2)}{NEGM}")
        for ab in range(2):
            for k in range(2): a.e(f"v_cvt_pk_bf16_f32 v{VP + ab*10 + 2*j + k}, v{av(j,ab)+2*k}, v{av(j,ab)+2*k+1}")
    X = [156, 158, 160, 162]; MX = [0, 1, 2, 3]; PP = [8, 12, 16, 20]; OO = [24, 32, 40, 48]; OP = [56, 60, 64, 68]; NEG = 4
    a.e(f"s_mov_b64 vcc, s[{sPAR}:{sPAR+1}]")
    a.e(f"v_mov_b32 v{NEG}, 0xf149f2ca")
    for i in J:
        for k in range(2):
            a.e(f"v_cndmask_b32 v{S[i]+2*k}, v{S[i]+2*k}, v{S[i]+2*k+1}, vcc")
            a.e(f"v_cndmask_b32 v{S[i]+4+2*k}, v{S[i]+4+2*k}, v{S[i]+4+2*k+1}, vcc")
        for k in range(2):
            a.e(f"v_cndmask_b32 v{X[i]+k}, v{S[i]+4+2*k}, v{S[i]+2*k}, s[{sCUR+2*k}:{sCUR+2*k+1}]")
    res.g2_xold(a)
    for i in J:
        for k in range(2): a.e(f"v_mul_f32 v{X[i]+k}, v{RK+4*k+i}, v{X[i]+k}")
    for k in range(2): a.e(f"v_cndmask_b32 v{X[0]+k}, v{NEG}, v{X[0]+k}, s[{sFM+2*k}:{sFM+2*k+1}]")
    def tred(op, mid=None):
        m = MX
        a.e("s_nop 0")
        a.e(f"v_permlane16_swap_b32 v{m[0]}, v{m[1]}"); a.e(f"v_permlane16_swap_b32 v{m[2]}, v{m[3]}")
        a.e(f"{op} v{m[0]}, v{m[0]}, v{m[1]}"); a.e(f"{op} v{m[2]}, v{m[2]}, v{m[3]}")
        a.e("s_nop 1")
        a.e(f"v_permlane32_swap_b32 v{m[0]}, v{m[2]}")
        a.e(f"{op} v{m[0]}, v{m[0]}, v{m[2]}")
        if mid: a.e(f"{mid} v{m[0]}, v{m[0]}"); a.e("s_nop 0")
        a.e(f"v_mov_b32 v{m[2]}, v{m[0]}")
        a.e("s_nop 1")
        a.e(f"v_permlane32_swap_b32 v{m[0]}, v{m[2]}")
        a.e(f"v_mov_b32 v{m[1]}, v{m[0]}"); a.e(f"v_mov_b32 v{m[3]}, v{m[2]}")
        a.e("s_nop 0")
        a.e(f"v_permlane16_swap_b32 v{m[0]}, v{m[1]}"); a.e(f"v_permlane16_swap_b32 v{m[2]}, v{m[3]}")
    for i in J: a.e(f"v_max_f32 v{MX[i]}, v{X[i]}, v{X[i]+1}")
    tred("v_max_f32")
    for i in J:
        for k in range(2): a.e(f"v_sub_f32 v{X[i]+k}, v{X[i]+k}, v{MX[i]}")
    for i in J:
        for k in range(2): a.e(f"v_mul_f32 v{X[i]+k}, v{CQ+i}, v{X[i]+k}")
    for i in J:
        for k in range(2): a.e(f"v_exp_f32 v{X[i]+k}, v{X[i]+k}")
    for i in J: a.e(f"v_add_f32 v{MX[i]}, v{X[i]}, v{X[i]+1}")
    for i in J:
        for k in range(2): a.e(f"v_mul_f32 v{X[i]+k}, v{RK+4*k+i}, v{X[i]+k}")
    tred("v_add_f32", "v_rcp_f32")
    for i in J:
        for k in range(2): a.e(f"v_mul_f32 v{X[i]+k}, v{X[i]+k}, v{MX[i]}")
        for k in range(2): a.e(f"v_cvt_pk_bf16_f32 v{X[i]+k}, v{X[i]+k}, v{X[i]+k}")
        for k in range(4): a.e(f"v_and_b32 v{PP[i]+k}, v{X[i]+(k&1)}, v{vMK+k}")
        if i:
            for ab in range(2): a.e(mfma(OO[i-1] + 4 * ab, VP + ab * 10 + 2 * (i-1), PP[i-1], "0"))
    for ab in range(2): a.e(mfma(OO[3] + 4 * ab, VP + ab * 10 + 6, PP[3], "0"))
    a.e(f"s_cmp_lg_u32 s{sHF}, 0"); a.e("s_cbranch_scc1 g1c_rem")
    def outs(fl):
        o = []
        for i in J:
            o += [f"v_cvt_pk_bf16_f32 v{OP[i]+k}, v{OO[i]+2*k}, v{OO[i]+2*k+1}" for k in range(4)]
            o.append(f"buffer_store_dwordx4 {v(OP[i],4)}, v{vL16}, s[{SW}:{SW+3}], s{sO} offen offset:{i*1024}{fl}")
        return o
    a.es(outs(""))
    a.label("g1c_remb")
    a.ool(["g1c_rem:"] + outs(SC) + ["s_branch g1c_remb"])
    ts(a, opt, PH, 4)
    signal(a, PH, 108, 109)
    ts(a, opt, PH, 5)
```

```python
from common import *
import res

AS = 8192; LW = 36736; WSL = 28800; WM = 14400; WR = 7200; PW = 7168
PH = 2
def wph(st): return (st + 1) % 4


def sharer(a, dst):
    a.e(f"s_add_u32 s{dst}, s{sK4}, s{sQ}"); a.e(f"s_lshl_b32 s{dst}, s{dst}, 1"); a.e(f"s_add_u32 s{dst}, s{dst}, s{sHF}")


class G3:
    def __init__(self, a, opt, cls):
        self.gen = g3(a, opt, cls, self)
    def w_setup(self): next(self.gen)
    def nxt(self, vm, n):
        def mk(st, k):
            def f():
                self.a.es(self.dmaW(st, range(7))[k]); vm.op()
            return f
        return [(LW + wph(st) * WSL, LW + (wph(st) + 1) * WSL, mk(st, k)) for st in range(n) for k in range(7)]
    def run(self, npre, prev_signal=None):
        self.prev_signal = prev_signal
        assert npre % 7 == 0
        self.npre = npre // 7
        for _ in self.gen: pass


def g3(a, opt, cls, self):
    self.a = a
    NP = 4 - cls
    nW0 = opt.get("g3nw0", 4)
    ks_ = list(range(7 - nW0, 7)) if cls == 0 else list(range(0, 7 - nW0))
    n = len(ks_) + 2 * cls
    sW = 8
    sWo, sWlo, sWhi, sWm = 16, 17, 18, 19
    sAo, sAlo, sAhi, sAm = 20, 21, 22, 23
    sCnt, sH, sH2, sHK, sC0 = 24, 25, 26, 27, 28
    sMS, sRS, sSH = 32, 33, 34
    if cls == 0:
        WF = 128; WFS = 32; XF = 192; AD = 224
    else:
        WF = 96; WFS = 24; XF = 144; TMP = 176; AD = 228
    vWp = AD
    vXa = AD + 7; vWa = AD + 8
    vWb = AD + 10
    tag = f"g3c{cls}"
    def acc(mat, t, rt): return ((mat * NP + t) * 4 + rt) * 4
    def wf(b, mat, t): return WF + b * WFS + (mat * NP + t) * 4
    def xf(b, rt): return XF + b * 16 + rt * 4
    def wreg(k): return vWp + (k if cls else k - (7 - nW0))
    a.e(f"s_and_b32 s{sT}, s{sWAVE}, 1")
    a.e(f"s_cmp_eq_u32 s{sT}, 0")
    a.e(f"s_cselect_b32 s{sW}, s{pW1}, s{pW3}")
    a.e(f"s_cselect_b32 s{sW+1}, s{pW1+1}, s{pW3+1}")
    a.e(f"s_mov_b32 s{sW+2}, {1024 * PW}")
    a.e(f"s_mov_b32 s{sW+3}, 0x00020000")
    a.e(f"s_mul_i32 s{sWm}, s{sT}, {WM}")
    a.e(f"s_lshr_b32 s{sT}, s{sW4}, 1")
    a.e(f"s_mul_i32 s{sT2}, s{sT}, {WR}")
    a.e(f"s_add_u32 s{sWm}, s{sWm}, s{sT2}")
    a.e(f"s_add_u32 s{sWm}, s{sWm}, {LW}")
    a.e(f"s_mul_i32 s{sWlo}, s{sT}, {4 * PW}")
    a.e(f"s_mul_i32 s{sT2}, s{sNT}, 448")
    a.e(f"s_add_u32 s{sWlo}, s{sWlo}, s{sT2}")
    a.e(f"s_add_u32 s{sWhi}, s{sWlo}, {1024 * PW}")
    LA = opt.get("g3la", 3)
    first = 0 if cls else LA
    a.e(f"s_lshl_b32 s{sT}, s{sK3}, 1")
    if first: a.e(f"s_add_u32 s{sT}, s{sT}, {first}"); a.e(f"s_and_b32 s{sT}, s{sT}, 31")
    a.e(f"s_mul_i32 s{sT2}, s{sT}, {32 * PW}")
    a.e(f"s_add_u32 s{sWo}, s{sWlo}, s{sT2}")
    a.e(f"s_mov_b32 s{sT3}, 2341")
    for k in (range(7) if cls else ks_):
        a.e(f"v_add_u32 v{vT0}, {64 * k}, v{vL}")
        a.e(f"v_mul_lo_u32 v{vT1}, v{vT0}, s{sT3}")
        a.e(f"v_lshrrev_b32 v{vT1}, 16, v{vT1}")
        a.e(f"v_mul_u32_u24 v{wreg(k)}, 28, v{vT1}")
        a.e(f"v_sub_u32 v{vT0}, v{vT0}, v{wreg(k)}")
        a.e(f"v_and_b32 v{wreg(k)}, 12, v{vT1}")
        a.e(f"v_add_u32 v{vT1}, v{vT1}, v{wreg(k)}")
        a.e(f"v_mul_u32_u24 v{vT1}, {PW}, v{vT1}")
        a.e(f"v_lshl_add_u32 v{wreg(k)}, v{vT0}, 4, v{vT1}")
    def dmaW(st, ks):
        g = []
        for k in ks:
            g.append([f"s_add_u32 m0, s{sWm}, {wph(st) * WSL + 1024 * k}", "s_nop 0",
                      f"buffer_load_dwordx4 v{wreg(k)}, s[{sW}:{sW+3}], s{sWo} offen lds"])
        adv = [f"s_add_u32 s{sWo}, s{sWo}, {32 * PW}", f"s_cmp_eq_u32 s{sWo}, s{sWhi}", f"s_cselect_b32 s{sWo}, s{sWlo}, s{sWo}"]
        if g: g[-1] = g[-1] + adv
        return g
    advA = [f"s_add_u32 s{sAo}, s{sAo}, 8192", f"s_cmp_eq_u32 s{sAo}, s{sAhi}", f"s_cselect_b32 s{sAo}, s{sAlo}, s{sAo}"]
    def dmaA(st):
        if cls == 0: return []
        return [[f"s_add_u32 m0, s{sAm}, {(st % 4) * AS}", "s_nop 0",
                 f"buffer_load_dwordx4 v{vL16}, s[{SW}:{SW+3}], s{sAo} offen sc1 lds"],
                [f"s_add_u32 m0, s{sAm}, {(st % 4) * AS}", "s_nop 0",
                 f"buffer_load_dwordx4 v{vL16}, s[{SW}:{SW+3}], s{sAo} offen offset:1024 sc1 lds"] + advA]
    self.dmaW = dmaW
    yield
    vm = VM(a)
    nPre = self.npre
    if cls:
        a.e(f"s_and_b32 s{sT}, s{sW4}, 2"); a.e(f"s_xor_b32 s{sMS}, s{sMT}, s{sT}")
        a.e(f"s_lshl_b32 s{sAlo}, s{sLAY}, 23")
        a.e(f"s_lshl_b32 s{sT}, s{sMS}, 18"); a.e(f"s_add_u32 s{sAlo}, s{sAlo}, s{sT}")
        a.e(f"s_lshl_b32 s{sT}, s{sHF}, 1"); a.e(f"s_and_b32 s{sT2}, s{sW4}, 1"); a.e(f"s_add_u32 s{sRS}, s{sT}, s{sT2}")
        a.e(f"s_lshl_b32 s{sT}, s{sRS}, 11"); a.e(f"s_add_u32 s{sAlo}, s{sAlo}, s{sT}")
        a.e(f"s_lshl_b32 s{sAm}, s{sW4}, 11")
        a.e(f"s_add_u32 s{sAhi}, s{sAlo}, {32 * 8192}")
        a.e(f"s_lshl_b32 s{sT}, s{sK3}, 14"); a.e(f"s_add_u32 s{sAo}, s{sAlo}, s{sT}")
        sharer(a, sSH)
    a.e(f"s_and_b32 s{sT}, s{sWAVE}, 1"); a.e(f"s_lshl_b32 s{sT}, s{sT}, 12")
    a.e(f"v_add_u32 v{vXa}, s{sT}, v{vL16}")
    a.e(f"v_lshrrev_b32 v{vT0}, 1, v{vG}")
    a.e(f"v_lshrrev_b32 v{vT1}, 2, v{vI}")
    a.e(f"v_lshl_add_u32 v{vT0}, v{vT0}, 2, v{vT1}")
    a.e(f"v_mul_u32_u24 v{vT0}, 448, v{vT0}")
    a.e(f"v_and_b32 v{vT1}, 1, v{vG}")
    a.e(f"v_mul_u32_u24 v{vT1}, {WR}, v{vT1}")
    a.e(f"v_add_u32 v{vT0}, v{vT0}, v{vT1}")
    a.e(f"v_and_b32 v{vT1}, 3, v{vI}")
    a.e(f"v_lshl_add_u32 v{vT0}, v{vT1}, 3, v{vT0}")
    a.e(f"v_add_u32 v{vT0}, {LW}, v{vT0}")
    a.e(f"s_lshr_b32 s{sT}, s{sW4}, 1")
    a.e(f"s_lshl_b32 s{sC0}, s{sT}, 2")
    if cls: a.e(f"s_add_u32 s{sC0}, s{sC0}, 8")
    a.e(f"s_lshl_b32 s{sT2}, s{sC0}, 5")
    a.e(f"v_add_u32 v{vWa}, s{sT2}, v{vT0}")
    a.e(f"v_add_u32 v{vWa+1}, {2 * WSL}, v{vWa}")
    if cls:
        a.e(f"s_add_u32 s{sT2}, s{sT}, 10"); a.e(f"s_lshl_b32 s{sT2}, s{sT2}, 5")
        a.e(f"v_add_u32 v{vWb}, s{sT2}, v{vT0}")
        a.e(f"v_add_u32 v{vWb+1}, {2 * WSL}, v{vWb}")
        vCa = TMP + 48
        a.e(f"s_mul_i32 s{sT2}, s{sT}, 224")
        a.e(f"s_and_b32 s{sT}, s{sWAVE}, 1"); a.e(f"s_mul_i32 s{sT}, s{sT}, {WM}"); a.e(f"s_add_u32 s{sT2}, s{sT2}, s{sT}")
        a.e(f"v_add_u32 v{vCa}, s{sT2}, v{vT0}")
        a.e(f"v_mov_b32 v{TMP+44}, 0x{ONES:08x}")
        for t in range(7):
            a.e(f"v_cmp_eq_u32 vcc, {t}, v{vI}"); a.e("s_nop 1")
            for i in range(4): a.e(f"v_cndmask_b32 v{TMP+4*t+i}, 0, v{TMP+44}, vcc")
    res.h_base(a, sH)
    a.e(f"s_and_b32 s{sT}, s{sNT}, 7"); a.e(f"s_mul_i32 s{sT}, s{sT}, {7 * 8192}"); a.e(f"s_add_u32 s{sH}, s{sH}, s{sT}")

    def reads(st):
        b = st & 1; sl = st % 4; g = []
        for rt in range(4):
            g.append(f"ds_read_b128 {v(xf(b,rt),4)}, v{vXa} offset:{sl * AS + rt * 1024}")
        for t in range(NP):
            for mat in range(2):
                third = cls and t == 2
                reg = (vWb if third else vWa) + (wph(st) >> 1)
                off = (wph(st) & 1) * WSL + mat * WM + (0 if third else 32 * t)
                g.append(f"ds_read_b64_tr_b16 {v(wf(b,mat,t),2)}, v{reg} offset:{off}")
                g.append(f"ds_read_b64_tr_b16 {v(wf(b,mat,t)+2,2)}, v{reg} offset:{off + 3584}")
        return g
    def mfmas(st, zero=False):
        b = st & 1
        mo = opt.get("g3mo", 1)
        W_ = [(t, mat) for t in range(NP) for mat in range(2)]
        if mo == 0: od = [(w, rt) for w in W_ for rt in range(4)]
        elif mo == 1: od = [(w, rt if i % 2 == 0 else 3 - rt) for i, w in enumerate(W_) for rt in range(4)]
        elif mo == 2: od = [(w, rt) for rt in range(4) for w in W_]
        elif mo == 3: od = [(w, rt) for rt in range(4) for w in (W_ if rt % 2 == 0 else W_[::-1])]
        elif mo == 4: od = [(W_[(i + rt) % len(W_)], rt) for i in range(len(W_)) for rt in range(4)]
        return [mfma(acc(mat, t, rt), wf(b, mat, t), xf(b, rt), "0" if zero else None) for (t, mat), rt in od]
    def merge(A, B):
        if not B: return list(A)
        out = []; j = 0
        for i, g in enumerate(A):
            out.append(g)
            want = ((i + 1) * len(B)) // len(A)
            while j < want: out.append(B[j]); j += 1
        return out + B[j:]
    def step(st, dma=True, rd=True, zero=False, extra=None, track=False, fill=None, fill0=0, nvm=0, pre=None, first=None):
        m = mfmas(st, zero); sl = {}
        r = [[x] for x in reads(st + 1)] if rd else []
        d = (dmaW(st + LA, ks_) + dmaA(st + LA)) if dma else []
        if first: d = first + d
        if track:
            for _ in d: vm.op(("D", st + LA))
            for _ in range(nvm): vm.op("X")
        spread(merge(r, d) if r else d, 0, int(len(m) * opt.get("g3rd", 0.8)), sl)
        if pre: sl[-1] = list(pre)
        if fill: spread(fill, fill0, len(m) - 1, sl)
        for frac, grp in (extra or []): sl.setdefault(int(frac * (len(m) - 1)), []).extend(grp)
        a.es(place(m, sl))

    def colsum_hook(tgt):
        l = a.new("cs")
        a.e(f"s_cmp_eq_u32 s{sHK}, {tgt >> 1}")
        a.e(f"s_cbranch_scc1 {l}")
        a.label(f"{l}_b")
        ON = TMP; CFR = TMP + 28; CA = TMP + 44; vCa = TMP + 48; vX = TMP + 49
        o = [f"{l}:", f"v_add_u32 v{vX}, {wph(tgt) * WSL}, v{vCa}"]
        for t0, t1 in ((0, 4), (4, 7)):
            for t in range(t0, t1):
                o.append(f"ds_read_b64_tr_b16 {v(CFR+4*(t-t0),2)}, v{vX} offset:{32*t}")
                o.append(f"ds_read_b64_tr_b16 {v(CFR+4*(t-t0)+2,2)}, v{vX} offset:{32*t + 3584}")
            o.append("s_waitcnt lgkmcnt(0)")
            for t in range(t0, t1):
                o.append(mfma(CA, CFR + 4 * (t - t0), ON + 4 * t, "0" if (tgt % 2 == 0 and t == 0) else None))
            if t0 == 0: o.append("s_nop 3")
        if tgt % 2 == 1:
            o += [f"s_lshl_b32 s{sT}, s{sSH}, 1", f"s_and_b32 s{sT2}, s{sWAVE}, 1", f"s_add_u32 s{sT}, s{sT}, s{sT2}",
                  f"s_mul_i32 s{sT}, s{sT}, {3584 * 4}", f"s_mul_i32 s{sT2}, s{sNT}, 896", f"s_add_u32 s{sT}, s{sT}, s{sT2}",
                  f"s_lshr_b32 s{sT2}, s{sW4}, 1", f"s_mul_i32 s{sT2}, s{sT2}, 448", f"s_add_u32 s{sT}, s{sT}, s{sT2}",
                  f"s_add_u32 s{sT}, s{sT}, {M_CS}", f"v_lshlrev_b32 v{vX}, 4, v{vG}", f"v_lshl_add_u32 v{vX}, v{vI}, 6, v{vX}",
                  "s_mov_b32 exec_lo, 0x007f007f", "s_mov_b32 exec_hi, 0x007f007f",
                  f"buffer_store_dwordx4 {v(CA,4)}, v{vX}, s[{SW}:{SW+3}], s{sT} offen{SC}",
                  "s_mov_b64 exec, -1", f"s_waitcnt vmcnt({n + 1}) lgkmcnt(0)", f"s_branch {tag}_pb{tgt + 1}"]
        else: o.append(f"s_branch {l}_b")
        a.ool(o)

    ts(a, opt, PH, 0)
    if cls == 0:
        for i in range(4): a.e(f"v_mov_b32 v{XF+i}, 0")
        a.e("s_nop 1")
        for i in range(0, 128, 16):
            a.e(f"v_mfma_f32_32x32x16_bf16 {v(i,16)}, {v(XF,4)}, {v(XF,4)}, 0")
        tt = opt.get("vw2", 1)
        if tt:
            make_srd(a, 12, pW2, 3584 * 2048)
            a.e(f"s_lshl_b32 s34, s2, 2"); a.e(f"s_add_u32 s34, s34, s{sWAVE}"); a.e("s_mul_i32 s34, s34, 7168")
            a.e(f"s_cmp_eq_u32 s{sLAY}, 0"); a.e("s_cselect_b32 s34, s34, 0x40000000")
            a.e(f"v_lshlrev_b32 v247, 7, v{vL}"); a.e(f"v_and_b32 v248, 56, v{vL}"); a.e("v_lshl_add_u32 v247, v248, 24, v247")
        tgrp = ["buffer_load_dword v248, v247, s[12:15], s34 offen", "s_add_u32 s34, s34, 1024"]
        a.e("s_barrier")
        ts(a, opt, PH, 1)
        a.es(reads(0))
        tsc(a, opt, PH, 6)
        a.e(f"s_mov_b32 s{sCnt}, 7")
        a.label(f"{tag}_loop")
        assert LA == 3
        for st in range(4):
            a.e(f"s_waitcnt vmcnt({n + (tt if st in (3, 0) else 0)}) lgkmcnt(0)"); a.e("s_barrier")
            if opt.get("tl") == "g3":
                a.e(f"s_memtime s[{sTS}:{sTS+1}]"); a.e("s_waitcnt lgkmcnt(0)")
                a.e(f"s_lshl_b32 s{sTS+1}, s{sCnt}, 2"); a.e(f"s_sub_u32 s{sTS+1}, {28 + st}, s{sTS+1}")
                a.e(f"s_lshl_b32 s{sT}, s{sLAY}, 5"); a.e(f"s_add_u32 m0, s{sT}, s{sTS+1}"); a.e("s_nop 0")
                a.e(f"v_writelane_b32 v246, s{sTS}, m0")
            step(st, extra=[(0.9, tgrp)] if (tt and st == 2) else None)
        a.e(f"s_sub_u32 s{sCnt}, s{sCnt}, 1"); a.e(f"s_cmp_lg_u32 s{sCnt}, 0"); a.e(f"s_cbranch_scc1 {tag}_loop")
        if opt.get("tl") == "g3":
            a.e(f"s_lshl_b32 s{sT}, s2, 3"); a.e(f"s_add_u32 s{sT}, s{sT}, s{sWAVE}"); a.e(f"s_mul_i32 s{sT}, s{sT}, 768"); a.e(f"s_add_u32 s{sT}, s{sT}, {M_TS + MB}")
            a.e(f"v_lshlrev_b32 v{vT0}, 2, v{vL}")
            a.e(f"buffer_store_dword v246, v{vT0}, s[{SW}:{SW+3}], s{sT} offen")
    else:
        a.e(f"s_cmp_eq_u32 s{sLAY}, {5 if opt.get('dbgnocs') else 0}"); a.e(f"s_cselect_b32 s{sHK}, 0, 8"); a.e(f"s_and_b32 s{sT}, s{sSH}, 3"); a.e(f"s_or_b32 s{sHK}, s{sHK}, s{sT}")
        flag_off(a, 35, PH - 1)
        a.e(f"s_lshl_b32 s{sT2}, s{sHF}, 3"); a.e(f"s_add_u32 s35, s35, s{sT2}")
        a.e(f"v_lshlrev_b32 v{res.vPO}, 5, v{vL}")
        a.e(f"s_lshl_b32 s36, s{sLAY}, 12"); a.e(f"s_add_u32 s36, s36, {M_RF}")
        a.e(f"s_xor_b32 s37, s{sMT}, 2"); a.e("s_lshl_b32 s37, s37, 1"); a.e(f"s_add_u32 s37, s37, s{sHF}"); a.e("s_lshl_b32 s37, s37, 7"); a.e("s_add_u32 s37, s37, s36")
        lr = a.new("lr")
        a.e(f"s_cmp_ge_u32 s{sW4}, 2"); a.e(f"s_cbranch_scc1 {lr}")
        poll(a, 35, res.vPO, res.vPL, 2, "0xffff")
        relay(a, "s36", res.vPL + 2, res.vPL + 3)
        a.e(f"s_branch {lr}_d")
        a.label(lr)
        poll(a, 37, res.vPO, res.vPL, 1, "1")
        a.label(f"{lr}_d")
        ts(a, opt, PH, 1)
        for st in range(2):
            for gq in dmaA(st): a.es(gq); vm.op(("D", st))
        late = []
        for st in range(2, LA):
            late += [(gq, st) for gq in (dmaW(st, range(7)) if st >= nPre else []) + dmaA(st)]
        ne = opt.get("g3e", 4)
        for gq, st in late[:ne]: a.es(gq); vm.op(("D", st))
        vm.wait(("D", 0)); a.e("s_barrier")
        a.es(reads(0))
        for gq, st in late[ne:]: a.es(gq); vm.op(("D", st))
        tsc(a, opt, PH, 6)
        vX = TMP + 49
        def lines(fn):
            h = Asm(); h.uid = a.uid + 500; fn(h); a.uid = h.uid
            a.tail += h.tail
            return [x.strip() for x in h.L]
        def tree(h):
            for w in (4, 2, 1):
                for i in range(w):
                    for r in range(4): h.e(f"v_add_f32 v{TMP+4*i+r}, v{TMP+4*i+r}, v{TMP+4*(i+w)+r}")
        def st_setup(h):
            h.e(f"s_lshl_b32 s{sH2}, s{sMS}, 15"); h.e(f"s_lshl_b32 s{sT2}, s{sLAY}, 20"); h.e(f"s_add_u32 s{sH2}, s{sH2}, s{sT2}")
            h.e(f"s_lshl_b32 s{sT2}, s{sRS}, 8"); h.e(f"s_add_u32 s{sH2}, s{sH2}, s{sT2}"); h.e(f"s_add_u32 s{sH2}, s{sH2}, {M_ST}")
            stats_lane(h, vX)
        def st_loads(lo):
            o = []
            for i in range(lo, lo + 4):
                o.append([f"buffer_load_dwordx4 {v(TMP+4*i,4)}, v{vX}, s[{SW}:{SW+3}], s{sH2} offen offset:{(i&3)*1024} sc1"] +
                         ([f"s_add_u32 s{sH2}, s{sH2}, 4096"] if i == 3 else []))
            return o
        def st_red(h):
            h.e(f"s_lshl_b32 s{sH2}, s{sW4}, 8"); h.e(f"s_add_u32 s{sH2}, s{sH2}, {L_ST}")
            stats_reduce(h, TMP, 8, vX, f"s{sH2}")
        def cf_flag():
            l = a.new("cf")
            a.e(f"s_cmp_eq_u32 s{sLAY}, {5 if opt.get('dbgnocs') else 0}"); a.e(f"s_cbranch_scc1 {l}"); a.label(f"{l}_b")
            a.ool([f"{l}:", f"s_lshl_b32 s{sT}, s{sNT}, 4", f"s_add_u32 s{sT}, s{sT}, s{sSH}", f"s_lshl_b32 s{sT}, s{sT}, 3",
                   f"s_add_u32 s{sT}, s{sT}, s{sW4}", f"s_lshl_b32 s{sT}, s{sT}, 2", f"s_add_u32 s{sT}, s{sT}, {M_CF}",
                   f"v_mov_b32 v{TMP+40}, 0", f"v_mov_b32 v{TMP+41}, 1", "s_mov_b64 exec, 1",
                   f"buffer_store_dword v{TMP+41}, v{TMP+40}, s[{SW}:{SW+3}], s{sT} offen{SC}", "s_mov_b64 exec, -1", f"s_branch {l}_b"])
        red = lines(st_red)
        for st in range(12):
            tags = [("D", st + 1)] + (["X"] if st == 11 else [])
            if st in (2, 4, 6, 8): assert vm.after(("D", st + 1)) == n
            vm.wait(tags, "lgkmcnt(0)"); a.label(f"{tag}_pb{st}"); a.e("s_barrier")
            kw = {}
            if st == 8: kw = dict(fill=st_loads(0), fill0=23, nvm=4, extra=[(0.3, lines(st_setup))])
            if st == 9: kw = dict(fill=st_loads(4), fill0=23, nvm=4)
            if st == 11:
                nf = opt.get("g3nf", 24)
                kw = dict(fill=[[x] for x in red[:nf]])
            step(st, zero=(st == 0), track=True, **kw)
            if st < 8: colsum_hook(st)
            if st == 10: cf_flag()
            if st == 11: a.es(red[nf:])
        a.e(f"s_mov_b32 s{sCnt}, 4")
        a.e(f"s_cmp_eq_u32 s{sLAY}, {5 if opt.get('dbgnocs') else 0}"); a.e(f"s_cselect_b32 s{sHK}, 6, 0")
        a.label(f"{tag}_loop")
        for st in range(4):
            a.e(f"s_waitcnt vmcnt({(LA - 2) * n}) lgkmcnt(0)"); a.e("s_barrier")
            step(st)
            if st == 0:
                a.e(f"s_bitcmp1_b32 s{sHK}, s{sCnt}"); a.e(f"s_cbranch_scc1 {tag}_hook"); a.label(f"{tag}_hb")
        a.e(f"s_sub_u32 s{sCnt}, s{sCnt}, 1"); a.e(f"s_cmp_lg_u32 s{sCnt}, 0"); a.e(f"s_cbranch_scc1 {tag}_loop")
        def hooks(h):
            F = TMP + 40
            h.label(f"{tag}_hook")
            h.e(f"s_lshl_b32 s{sT}, s{sNT}, 9"); h.e(f"s_add_u32 s{sT}, s{sT}, {M_CF}")
            h.e(f"v_lshlrev_b32 v{vX}, 5, v{vI}")
            h.e(f"s_cmp_eq_u32 s{sCnt}, 1"); h.e(f"s_cbranch_scc1 {tag}_h1")
            h.e(f"buffer_load_dwordx4 {v(F,4)}, v{vX}, s[{SW}:{SW+3}], s{sT} offen sc1")
            h.e(f"s_branch {tag}_hb")
            h.label(f"{tag}_h1")
            h.e(f"v_and_b32 v{F}, v{F}, v{F+1}"); h.e(f"v_and_b32 v{F+2}, v{F+2}, v{F+3}"); h.e(f"v_and_b32 v{F}, v{F}, v{F+2}")
            h.e(f"v_cmp_ne_u32 vcc, 1, v{F}")
            h.e(f"s_cbranch_vccz {tag}_h1b")
            poll(h, sT, vX, F, 4, "0xffff", acquire=False)
            h.label(f"{tag}_h1b")
            h.e(f"s_branch {tag}_hb")
        a.ool(lines(hooks))
        def cs_setup(h):
            h.e(f"s_and_b32 s{sH2}, s{sWAVE}, 1"); h.e(f"s_mul_i32 s{sH2}, s{sH2}, {3584 * 4}")
            h.e(f"s_mul_i32 s{sT2}, s{sNT}, 896"); h.e(f"s_add_u32 s{sH2}, s{sH2}, s{sT2}")
            h.e(f"s_lshr_b32 s{sT2}, s{sW4}, 1"); h.e(f"s_mul_i32 s{sT2}, s{sT2}, 448"); h.e(f"s_add_u32 s{sH2}, s{sH2}, s{sT2}")
            h.e(f"s_add_u32 s{sH2}, s{sH2}, {M_CS}")
            h.e(f"v_and_b32 v{vX}, 31, v{vL}"); h.e(f"v_min_u32 v{vX}, 27, v{vX}"); h.e(f"v_lshlrev_b32 v{vX}, 4, v{vX}")
            h.e(f"v_lshrrev_b32 v{vT0}, 5, v{vL}"); h.e(f"v_mul_u32_u24 v{vT0}, {8 * 28672}, v{vT0}"); h.e(f"v_add_u32 v{vX}, v{vT0}, v{vX}")
        lcs = a.new("cl")
        csld = [lines(cs_setup)]
        for i in range(8):
            csld.append([f"s_cmp_lg_u32 s{sLAY}, 0", f"s_cbranch_scc1 {lcs}_{i}",
                         f"buffer_load_dwordx4 {v(TMP+4*i,4)}, v{vX}, s[{SW}:{SW+3}], s{sH2} offen sc1", f"s_add_u32 s{sH2}, s{sH2}, 28672", f"{lcs}_{i}:"])
        def cs_red(h):
            tree(h)
            for i in range(4): h.e(f"v_mov_b32 v{TMP+4+i}, v{TMP+i}")
            h.e("s_nop 1")
            for i in range(4): h.e(f"v_permlane32_swap_b32 v{TMP+i}, v{TMP+4+i}")
            for i in range(4): h.e(f"v_add_f32 v{TMP+i}, v{TMP+i}, v{TMP+4+i}")
        csl = [[x] for x in lines(cs_red)]
        csl.append([f"s_and_b32 s{sT}, s{sWAVE}, 1", f"s_mul_i32 s{sT}, s{sT}, 896", f"s_lshr_b32 s{sT2}, s{sW4}, 1",
                    f"s_mul_i32 s{sT2}, s{sT2}, 448", f"s_add_u32 s{sT}, s{sT}, s{sT2}", f"s_add_u32 s{sT}, s{sT}, {L_CS3}",
                    f"v_add_u32 v{vX}, s{sT}, v{vL16}", f"s_cmp_lg_u32 s{sLAY}, 0", f"s_cbranch_scc1 {tag}_ncs",
                    "s_mov_b64 exec, 0x0fffffff", f"ds_write_b128 v{vX}, {v(TMP,4)}", "s_mov_b64 exec, -1", f"{tag}_ncs:"])
    vY = 247
    def touch(k):
        o = [f"v_lshlrev_b32 v{vY}, 7, v{vL}", f"s_add_u32 s29, s{sWAVE}, {8*k}", f"s_lshl_b32 s30, s29, 12", f"s_add_u32 s30, s30, s{sH}",
             f"s_cmp_lt_u32 s29, s{sHK}", f"s_cselect_b32 s30, s30, 0x7f000000", "s_mov_b64 exec, 0xffffffff",
             f"buffer_load_dword v248, v{vY}, s[{SW}:{SW+3}], s30 offen sc1", "s_mov_b64 exec, -1"]
        return o
    a.e(f"s_sub_u32 s{sHK}, s{sNT}, s{sK4}"); a.e(f"s_and_b32 s{sHK}, s{sHK}, 7")
    a.e(f"s_cmp_lt_u32 s{sHK}, {opt.get('htouch', 4)}"); a.e(f"s_cselect_b32 s{sHK}, 14, 0")
    pf = []
    if cls:
        for st in range(res.CFG[3]['RW']): pf += res.res_w_issue(3, st)
    n300 = opt.get("g3pf300", 8); n30 = opt.get("g3pf30", 6); n31 = opt.get("g3pf31", 6)
    d28 = (LA == 3)
    if opt.get("noptH"): ex = [[], []]
    elif opt.get("hsc1"):
        a.e(f"s_and_b32 s{sT}, s{sWAVE}, 6"); a.e(f"s_cmp_eq_u32 s{sT}, 2"); a.e(f"s_cselect_b32 s{sHK}, 14, 0")
        ex = [[], [(0.05, touch(1))] if cls == 0 else []]
    elif d28: ex = [[], [(0.05, touch(0)), (0.55, touch(1))] if cls == 0 else [(0.3, touch(0)), (0.9, touch(1))]]
    else: ex = [[(0.05, touch(0))], [(0.05, touch(1))]] if cls == 0 else [[(0.6, touch(0))], [(0.6, touch(1))]]
    a.e(f"s_waitcnt vmcnt({(LA - 2) * n}) lgkmcnt(0)"); a.e("s_barrier")
    step(28, dma=d28, extra=ex[0], first=csld if cls else None)
    a.e(f"s_waitcnt vmcnt({n + len(ex[0])}) lgkmcnt(0)"); a.e("s_barrier")
    step(29, dma=False, extra=ex[1], fill=(csl + [[x] for x in lines(lambda h: res.res_w_setup(h, 3))]) if cls else None)
    a.e(f"s_waitcnt vmcnt({len(ex[1]) + (0 if d28 else len(ex[0]))}) lgkmcnt(0)"); a.e("s_barrier")
    if opt.get("g3tp", 1): a.e(f"s_setprio {2 if cls == 0 else 1}")
    m = mfmas(30); sl = {}
    if cls == 0:
        spread([[x] for x in reads(31)], 0, 13, sl)
        sl.setdefault(20, []).extend(["s_waitcnt lgkmcnt(0)", "s_barrier"])
    else:
        sl[-1] = reads(31) + ["s_waitcnt lgkmcnt(0)"] + [x for gq in pf[:2] for x in gq] + ["s_barrier"] + [x for gq in pf[2:n300] for x in gq]
        spread(pf[n300:n300 + n30], 0, len(m) - 1, sl)
    a.es(place(m, sl))
    pf = pf[n300 + n30:]
    CS = WF; MR = XF
    a.e(f"s_and_b32 s{sT}, s{sWAVE}, 1"); a.e(f"s_lshl_b32 s{sT}, s{sT}, 9"); a.e(f"s_add_u32 s{sT}, s{sT}, {L_ST}")
    a.e(f"v_lshlrev_b32 v{vT0}, 3, v{vI}"); a.e(f"v_add_u32 v{vT0}, s{sT}, v{vT0}")
    a.e(f"s_lshl_b32 s{sT}, s{sC0}, 6"); a.e(f"s_add_u32 s{sT}, s{sT}, {L_CS3}")
    a.e(f"v_lshlrev_b32 v{vT1}, 4, v{vG}"); a.e(f"v_add_u32 v{vXa}, s{sT}, v{vT1}")
    if cls:
        a.e(f"s_lshr_b32 s{sT}, s{sW4}, 1"); a.e(f"s_add_u32 s{sT}, s{sT}, 10"); a.e(f"s_lshl_b32 s{sT}, s{sT}, 6"); a.e(f"s_add_u32 s{sT}, s{sT}, {L_CS3}")
        a.e(f"v_add_u32 v{vWb}, s{sT}, v{vT1}")
    er = [f"ds_read_b64 {v(MR+2*rt,2)}, v{vT0} offset:{128*rt}" for rt in range(4)]
    for mat in range(2):
        for t in range(NP):
            third = cls and t == 2
            er.append(f"ds_read_b128 {v(CS+(mat*NP+t)*4,4)}, v{vWb if third else vXa} offset:{mat*896 + (0 if third else 64*t)}")
    m = mfmas(31); sl = {}
    spread([[x] for x in er], 0, len(m) // 2, sl)
    spread(pf[:n31], 0, len(m) - 2, sl)
    a.es(place(m, sl))
    pf = pf[n31:]
    if opt.get("g3tp", 1) and cls == 0: a.e("s_setprio 0")
    tsc(a, opt, PH, 7)
    ts(a, opt, PH, 2)
    a.e(f"s_and_b32 s{sT}, s{sWAVE}, 1"); a.e(f"s_lshl_b32 s{sT}, s{sT}, 12"); a.e(f"s_add_u32 s{sH}, s{sH}, s{sT}")
    a.e(f"s_lshr_b32 s{sT}, s{sW4}, 1")
    if cls == 0:
        a.e(f"s_lshl_b32 s{sT}, s{sT}, 14"); a.e(f"s_add_u32 s{sH}, s{sH}, s{sT}"); a.e(f"s_add_u32 s{sH2}, s{sH}, 8192")
    else:
        a.e(f"s_lshl_b32 s{sT2}, s{sT}, 3"); a.e(f"s_add_u32 s{sH2}, s{sH}, s{sT2}"); a.e(f"s_add_u32 s{sH2}, s{sH2}, {5 * 8192}")
        a.e(f"s_lshl_b32 s{sT}, s{sT}, 14"); a.e(f"s_add_u32 s{sH}, s{sH}, s{sT}"); a.e(f"s_add_u32 s{sH}, s{sH}, {4 * 8192}")
    vLo, vLo2 = vWa, vWa + 1
    assert res.aslot(3, 1) == 0 and res.aslot(3, 0) == 7 * AS
    a.e(f"s_and_b32 s{sT}, s{sWAVE}, 1"); a.e(f"s_lshl_b32 s{sT}, s{sT}, 12")
    a.e(f"s_lshr_b32 s{sT2}, s{sW4}, 1")
    if cls == 0:
        a.e(f"s_lshl_b32 s{sT2}, s{sT2}, 14"); a.e(f"s_add_u32 s{sT}, s{sT}, s{sT2}")
        a.e(f"v_add_u32 v{vLo2}, s{sT}, v{vL16}")
        a.e(f"v_add_u16 v{vLo}, 0xe000, v{vLo2}")
    else:
        a.e(f"s_lshl_b32 s{sT3}, s{sT2}, 3"); a.e(f"s_add_u32 s{sT3}, s{sT3}, s{sT}"); a.e(f"s_add_u32 s{sT3}, s{sT3}, {4 * AS}")
        a.e(f"v_add_u32 v{vLo2}, s{sT3}, v{vL16}")
        a.e(f"s_lshl_b32 s{sT2}, s{sT2}, 14"); a.e(f"s_add_u32 s{sT}, s{sT}, s{sT2}"); a.e(f"s_add_u32 s{sT}, s{sT}, {3 * AS}")
        a.e(f"v_add_u32 v{vLo}, s{sT}, v{vL16}")
    a.e("s_waitcnt lgkmcnt(0)")
    B1 = WF + WFS
    NM, RL, I2 = B1, B1 + 8, B1 + 16
    a.e(f"s_mov_b32 s{sT}, 0xbfb8aa3b")
    for rt in range(4):
        a.e(f"v_mul_f32 v{I2+2*rt}, v{MR+2*rt+1}, v{MR+2*rt+1}")
        for d in range(2):
            a.e(f"v_sub_f32 v{NM+2*rt+d}, 0, v{MR+2*rt}")
            a.e(f"v_mul_f32 v{RL+2*rt+d}, s{sT}, v{MR+2*rt+1}")
    for rt in range(4):
        a.e(f"v_rcp_f32 v{I2+2*rt+1}, v{I2+2*rt}")
        a.e(f"v_rcp_f32 v{I2+2*rt}, v{I2+2*rt}")
    E = XF + 8; O = XF + 24
    ep = []
    def pk(op, d, *srcs): ep.append(f"{op} {v(d,2)}, " + ", ".join(v(r, 2) for r in srcs))
    TR = [(t, r) for t in range(NP) for r in (0, 2)]
    for rt in range(4):
        cg = lambda t: acc(0, t, rt); cu = lambda t: acc(1, t, rt)
        for t, r in TR: pk("v_pk_fma_f32", cg(t) + r, NM + 2*rt, CS + t * 4 + r, cg(t) + r)
        for t, r in TR: pk("v_pk_mul_f32", E + 4*t + r, RL + 2*rt, cg(t) + r)
        for i in range(4 * NP): ep.append(f"v_exp_f32 v{E+i}, v{E+i}")
        for t, r in TR: pk("v_pk_fma_f32", cu(t) + r, NM + 2*rt, CS + (NP + t) * 4 + r, cu(t) + r)
        for t, r in TR: pk("v_pk_fma_f32", E + 4*t + r, E + 4*t + r, I2 + 2*rt, I2 + 2*rt)
        for i in range(4 * NP): ep.append(f"v_rcp_f32 v{E+i}, v{E+i}")
        for t, r in TR: pk("v_pk_mul_f32", cg(t) + r, cg(t) + r, cu(t) + r)
        for t, r in TR: pk("v_pk_mul_f32", cg(t) + r, cg(t) + r, E + 4*t + r)
        for t, r in TR: ep.append(f"v_cvt_pk_bf16_f32 v{O + 2*t + r//2}, v{cg(t)+r}, v{cg(t)+r+1}")
        hs = SC if opt.get("hsc1") else ""
        ep.append(f"buffer_store_dwordx4 {v(O,4)}, v{vL16}, s[{SW}:{SW+3}], s{sH} offen offset:{rt*1024}{hs}")
        ep.append(f"ds_write_b128 v{vLo}, {v(O,4)} offset:{rt*1024}")
        if cls == 0:
            ep.append(f"buffer_store_dwordx4 {v(O+4,4)}, v{vL16}, s[{SW}:{SW+3}], s{sH2} offen offset:{rt*1024}{hs}")
            ep.append(f"ds_write_b128 v{vLo2}, {v(O+4,4)} offset:{rt*1024}")
        else:
            ep.append(f"buffer_store_dwordx2 {v(O+4,2)}, v{vL16}, s[{SW}:{SW+3}], s{sH2} offen offset:{rt*1024}")
            ep.append(f"ds_write_b64 v{vLo2}, {v(O+4,2)} offset:{rt*1024}")
    sl = {}
    spread(pf, 0, int(len(ep) * opt.get("g3pff", 0.6)), sl)
    a.es(place(ep, sl))
    ts(a, opt, PH, 3)
    if cls: signal(a, PH, XF, XF + 1); ts(a, opt, PH, 4)
```

```python
from common import *

RA = 8; AS = 8192; LW = 65536
CFG = {1: dict(NS=32, WS=4224, RW=22, NT=2, WROT=12, AROT=0, SKIP=(14, 15)), 3: dict(NS=56, WS=8448, RW=10, NT=4, WROT=5, AROT=7, SKIP=(0, 2, 27))}
def wslot(ph, st):
    c = CFG[ph]; return LW + ((st + c['WROT']) % c['RW']) * c['WS']
def aslot(ph, st): return ((st + CFG[ph]['AROT']) % RA) * AS

sWR = 12
sWo, sWlo, sWhi, sWm = 48, 49, 50, 51
sAo, sAlo, sAhi, sAm = 52, 53, 54, 55
sD4 = 50
vWp = 244
vPL = 240
vPO = 246


def res_w_setup(a, ph):
    c = CFG[ph]
    if ph == 1:
        make_srd(a, sWR, pWO, 1024 * 2048)
        a.e(f"v_lshrrev_b32 v{vT0}, 3, v{vL}")
        a.e(f"v_lshlrev_b32 v{vT0}, 13, v{vT0}")
        a.e(f"v_and_b32 v{vT1}, 7, v{vL}")
        a.e(f"v_lshl_add_u32 v{vT0}, v{vT1}, 4, v{vT0}")
        a.e(f"s_lshl_b32 s{sT}, s{sW4}, 11")
        a.e(f"v_add_u32 v{vWp}, s{sT}, v{vT0}")
        a.e(f"s_mul_i32 s{sWm}, s{sW4}, 1056")
        a.e(f"s_lshl_b32 s{sWlo}, s{sCI}, 7")
    else:
        make_srd(a, sWR, pW2, 3584 * 2048)
        a.e(f"v_lshlrev_b32 v{vT0}, 14, v{vG}")
        a.e(f"v_and_b32 v{vT1}, 8, v{vI}")
        a.e(f"v_lshl_add_u32 v{vT0}, v{vT1}, 7, v{vT0}")
        a.e(f"v_and_b32 v{vT1}, 7, v{vI}")
        a.e(f"v_lshl_add_u32 v{vT0}, v{vT1}, 4, v{vT0}")
        a.e(f"s_lshl_b32 s{sT}, s{sW4}, 12")
        a.e(f"v_add_u32 v{vWp}, s{sT}, v{vT0}")
        a.e(f"v_add_u32 v{vWp+1}, 2048, v{vWp}")
        a.e(f"s_mul_i32 s{sWm}, s{sW4}, 2112")
        a.e(f"s_lshr_b32 s{sT}, s{sNT}, 3")
        a.e(f"s_mul_i32 s{sWlo}, s{sT}, {56 * 65536}")
        a.e(f"s_lshl_b32 s{sT2}, s{sN8}, 7")
        a.e(f"s_add_u32 s{sWlo}, s{sWlo}, s{sT2}")
        a.e(f"s_sub_u32 s{sD4}, s{sNT}, s{sK4}"); a.e(f"s_and_b32 s{sD4}, s{sD4}, 7")


def chunk_base(pos, dst, lo, mul):
    if pos == 0: o = [f"s_and_b32 s{dst}, s{sNT}, 7"]
    else: o = [f"s_cmp_le_u32 s{sD4}, {pos - 1}", f"s_addc_u32 s{dst}, s{sK4}, {pos - 1}", f"s_and_b32 s{dst}, s{dst}, 7"]
    return o + [f"s_mul_i32 s{dst}, s{dst}, {mul}", f"s_add_u32 s{dst}, s{dst}, s{lo}"]


def unit_base(i, dst, lo, sh):
    return [f"s_add_u32 s{dst}, s{sK4}, {i}", f"s_and_b32 s{dst}, s{dst}, 7", f"s_and_b32 s{sT3}, s{sNT}, 8"] + \
           ([f"s_xor_b32 s{sT3}, s{sT3}, 8"] if i >= 8 else []) + \
           [f"s_or_b32 s{dst}, s{dst}, s{sT3}", f"s_lshl_b32 s{dst}, s{dst}, {sh}", f"s_add_u32 s{dst}, s{dst}, s{lo}"]


def res_w_issue(ph, st):
    c = CFG[ph]; g = []
    for i in range(c['NT'] // 2):
        g.append([f"s_add_u32 m0, s{sWm}, {wslot(ph, st) + i * 1056}", "s_nop 0",
                  f"buffer_load_dwordx4 v{vWp+i}, s[{sWR}:{sWR+3}], s{sWo} offen lds"])
    g[-1] += [f"s_add_u32 s{sWo}, s{sWo}, 65536"]
    if ph == 1:
        if st % 2 == 0: g[0] = unit_base(st // 2, sWo, sWlo, 17) + g[0]
    elif st % 7 == 0: g[0] = chunk_base(st // 7, sWo, sWlo, 7 * 65536) + g[0]
    return g


def res_nxt(a, ph, vm, n):
    def mk(st):
        def f():
            for g in res_w_issue(ph, st):
                a.es(g); vm.op()
        return f
    return [(wslot(ph, st), wslot(ph, st) + CFG[ph]['WS'], mk(st)) for st in range(n)]


def h_base(a, dst):
    a.e(f"s_lshl_b32 s{dst}, s{sMT}, 1"); a.e(f"s_add_u32 s{dst}, s{dst}, s{sHF}"); a.e(f"s_mul_i32 s{dst}, s{dst}, {56 * 8192}")
    a.e(f"s_lshl_b32 s{sT3}, s{sLB}, 24"); a.e(f"s_add_u32 s{dst}, s{dst}, s{sT3}"); a.e(f"s_add_u32 s{dst}, s{dst}, {WS_H}")


def res_load(a, opt, ph, prefetched, nxt_setup, nxt_items, nxtcap):
    c = CFG[ph]; NS = c['NS']
    vm = VM(a)
    nxt_setup()
    if ph == 1:
        a.e(f"s_lshl_b32 s{sAlo}, s{sLAY}, 22")
        a.e(f"s_lshl_b32 s{sT}, s{sMT}, 18")
        a.e(f"s_add_u32 s{sAlo}, s{sAlo}, s{sT}")
        a.e(f"s_add_u32 s{sAlo}, s{sAlo}, {WS_O}")
    else:
        h_base(a, sAlo)
    a.e(f"s_lshl_b32 s{sAm}, s{sW4}, 11")
    a.e(f"s_add_u32 s{sAlo}, s{sAlo}, s{sAm}")
    sFo = 56
    flag_off(a, sFo, ph - 1)
    if ph == 1:
        a.e(f"v_lshlrev_b32 v{vPO}, 5, v{vL}")
        a.e(f"s_lshl_b32 s{sEXS}, 1, s{sCI}"); a.e(f"s_or_b32 s{sEXS}, s{sEXS}, 0x5555"); a.e(f"s_mov_b32 s{sEXS+1}, 0")
        a.e(f"s_xor_b32 s{sT}, s{sCI}, 1"); a.e(f"s_or_b32 s{sT}, s{sT}, s{sW4}"); a.e(f"s_cselect_b32 s{sEXS}, s{sEXS}, 0xffff")
        mask = f"s[{sEXS}:{sEXS+1}]"
        a.e(f"s_lshl_b32 s46, s{sLAY}, 12"); a.e(f"s_add_u32 s46, s46, {M_RF + 3 * 4096}")
        a.e(f"s_xor_b32 s47, s{sMT}, 2"); a.e("s_lshl_b32 s47, s47, 8"); a.e("s_add_u32 s47, s47, s46"); a.e("s_add_u32 s47, s47, 128")
    else:
        a.e(f"v_lshlrev_b32 v{vPO}, 4, v{vL}")
        a.e(f"s_lshl_b32 s{sT}, s{sHF}, 1"); a.e(f"s_lshl_b32 s{sEXS}, 0x33333333, s{sT}"); a.e(f"s_mov_b32 s{sEXS+1}, 0")
        mask = f"s[{sEXS}:{sEXS+1}]"
    def do_poll():
        ts(a, opt, ph, 0)
        poll(a, sFo, vPO, vPL, 4, mask); vm.drain()
        ts(a, opt, ph, 1)
    if ph == 1:
        do_poll()
        relay(a, "s46", vPL + 2, vPL + 3)

    def issW(st):
        for g in res_w_issue(ph, st):
            if opt.get("dbgW") and ph == 3: g = [x for x in g if "m0" in x or "buffer" in x or "nop" in x]
            a.es(g); vm.op(("W", st))
    def issA(st):
        if ph == 3 and st % 7 == 0: a.es(chunk_base(1 if opt.get("dbgA") else st // 7, sAo, sAlo, 7 * 8192))
        if ph == 1 and st == 16: rcheck()
        if ph == 1 and st % 2 == 0: a.es(unit_base(st // 2, sAo, sAlo, 14))
        a.e(f"s_add_u32 m0, s{sAm}, {aslot(ph, st)}")
        a.e("s_nop 0")
        for i in range(2):
            a.e(f"buffer_load_dwordx4 v{vL16}, s[{SW}:{SW+3}], s{sAo} offen offset:{i*1024} sc1 lds"); vm.op(("A", st))
        a.e(f"s_add_u32 s{sAo}, s{sAo}, 8192")
        if ph == 1 and st == opt.get("g2rq", 12): rreq()
    def rreq():
        a.e(f"v_mov_b32 v{vPO}, 0")
        a.e(f"buffer_load_dword v{vPL}, v{vPO}, s[{SW}:{SW+3}], s47 offen sc1"); vm.op("R")
    def rcheck():
        l = a.new("rc")
        vm.wait("R")
        a.e(f"v_cmp_ne_u32 vcc, 1, v{vPL}")
        a.e(f"s_or_b32 s{sT}, vcc_lo, s{sSLOW}")
        a.e(f"s_cbranch_scc1 {l}"); a.label(f"{l}_b")
        h = Asm(); h.uid = a.uid + 100
        h.label(l); poll(h, 47, vPO, vPL, 1, "1"); h.e(f"s_branch {l}_b"); h.flush_tail(); a.uid = h.uid
        a.ool([x.strip() for x in h.L])
    W = Stream("W", NS, c['RW'], issW, lambda u: (wslot(ph, u), wslot(ph, u) + c['WS']), issued=prefetched)
    A = Stream("A", NS, RA, issA, lambda u: (aslot(ph, u), aslot(ph, u) + AS), issued=0 if ph == 1 else 7)
    def touchX():
        a.e(f"s_lshr_b32 s{sT2}, s{sW4}, 1")
        x4_off(a, sT, sT2, 1)
        a.e(f"s_and_b32 s{sT2}, s{sW4}, 1"); a.e(f"s_lshl_b32 s{sT2}, s{sT2}, 13"); a.e(f"s_add_u32 s{sT}, s{sT}, s{sT2}")
        a.e(f"v_lshlrev_b32 v{vT0}, 7, v{vL}")
        a.e("s_mov_b64 exec, 0xffffffff")
        a.e(f"buffer_load_dword v{vPL+1}, v{vT0}, s[{SW}:{SW+3}], s{sT} offen sc1"); vm.op()
        a.e("s_mov_b64 exec, -1")
    ev0 = barrier_events(NS, deep=(ph == 1)); ev = []
    for e in ev0:
        if e[0] != "Bm1" and int(e[0][1:]) in c['SKIP']: ev[-1] = (ev[-1][0], e[1], ev[-1][2])
        else: ev.append(e)
    ev.append(("BE", NS - 1, NS - 1))
    hooks = {}; pre_hooks = {}; mid_hooks = {}
    if ph == 1:
        pre = ["A"] * 4
        laA = opt.get("g2la", 4)
        la = lambda n, idx: laA if n == "A" else 14
        cap = lambda idx: 3
    else:
        pre = []
        l4 = opt.get("g4la", 3)
        la = lambda n, idx: (0 if idx == 0 else (opt.get("g4l1", 2) if idx == 1 else l4))
        cap = lambda idx: opt.get("g4c1", 4) if idx == 1 else opt.get("g4cap", 4) + (1 if idx < 8 else 0)
        def b1():
            for _ in range(opt.get("g4w1", 3)): W.go()
            do_poll()
        pre_hooks["B1"] = b1
        ah = opt.get("g4as", 6)
        if ah:
            a.e("s_lshr_b32 s40, s2, 3"); a.e("s_lshl_b32 s40, s40, 2"); a.e(f"s_add_u32 s40, s40, s{sW4}")
            a.e("s_and_b32 s41, s40, 31"); a.e("s_lshl_b32 s41, s41, 11")
            a.e("s_lshr_b32 s46, s40, 5"); a.e("s_and_b32 s46, s46, 1")
            a.e("s_lshr_b32 s40, s40, 6"); a.e("s_lshl_b32 s40, s40, 10"); a.e("s_add_u32 s40, s40, s41")
            a.e(f"s_lshr_b32 s41, s{sNT}, 3"); a.e(f"s_mul_i32 s41, s41, {56 * 65536}"); a.e("s_add_u32 s40, s40, s41")
            a.e(f"s_add_u32 s40, s{pW2}, s40"); a.e(f"s_addc_u32 s41, s{pW2+1}, 0")
            a.e(f"s_mul_i32 s47, s{sK4}, 7"); a.e("s_add_u32 s46, s46, s47")
            def go(u):
                a.e(f"s_add_u32 s42, s46, {2 * u}"); a.e("s_cmp_ge_u32 s42, 56"); a.e("s_cselect_b32 s47, 56, 0"); a.e("s_sub_u32 s42, s42, s47")
                a.e("s_lshl_b32 s42, s42, 16")
                a.e("s_add_u32 s44, s40, s42"); a.e("s_addc_u32 s45, s41, 0")
                for o in (384, 448): a.e(f"s_load_dword s43, s[44:45], {o}")
            done = 5
            for e in ev[:-1]:
                p = -1 if e[0] == "Bm1" else int(e[0][1:])
                us = list(range(done, min(p + ah + 1, 28))); done = max(done, min(p + ah + 1, 28))
                if us:
                    if p <= 1:
                        h0 = pre_hooks.get(e[0])
                        pre_hooks[e[0]] = (lambda us=us, h0=h0: ([go(u) for u in us], h0() if h0 else None))
                    else: mid_hooks[e[0]] = (lambda us=us: [go(u) for u in us])
    log = []
    n = run_loader(a, vm, ev, [A, W], pre, la, cap, hooks, None, nxt_items(vm), nxtcap, log, tl=opt.get('tl') == f'g{ph+1}',
                   lgk={"Bm1"}, pre_hooks=pre_hooks, mid_hooks=mid_hooks, mid_at=opt.get('g4mid', 1))
    if opt.get("log"): print(ph, log)
    ts(a, opt, ph, 2)
    return n


def xbuf(a, dst, which):
    if which == 1: a.e(f"s_add_u32 s{dst}, s{dst}, {WS_X + 4 * MB}")
    else:
        a.e(f"s_lshl_b32 s{sT3}, s{sLAY}, 23"); a.e(f"s_add_u32 s{dst}, s{dst}, s{sT3}")
    assert WS_X == 0


def x4_off(a, dst, s_wc, which):
    a.e(f"s_lshl_b32 s{s_wc}, s{s_wc}, 3"); a.e(f"s_add_u32 s{s_wc}, s{s_wc}, s{sN8}")
    a.e(f"s_lshl_b32 s{dst}, s{sMT}, 4"); a.e(f"s_add_u32 s{dst}, s{dst}, s{s_wc}")
    a.e(f"s_lshl_b32 s{dst}, s{dst}, 2"); a.e(f"s_add_u32 s{dst}, s{dst}, s{sHF}"); a.e(f"s_lshl_b32 s{dst}, s{dst}, 12")
    if which is not None: xbuf(a, dst, which)


XO2 = 176
def g2_xold(a):
    vRM = 243
    l = a.new("xo")
    a.e(f"s_cmp_lg_u32 s{sLAY}, 0"); a.e(f"s_cbranch_scc1 {l}_f")
    make_srd(a, 8, pAX, 4 * MB)
    a.e(f"s_lshl_b32 s{sT}, s{sMT}, 1"); a.e(f"s_lshr_b32 s{sT2}, s{sWAVE}, 1"); a.e(f"s_add_u32 s{sT}, s{sT}, s{sT2}"); a.e(f"s_lshl_b32 s{sT}, s{sT}, 17")
    a.e(f"s_and_b32 s{sT2}, s{sWAVE}, 1"); a.e(f"s_lshl_b32 s{sT2}, s{sT2}, 6"); a.e(f"s_add_u32 s{sT}, s{sT}, s{sT2}")
    a.e(f"s_lshl_b32 s{sT2}, s{sCI}, 7"); a.e(f"s_add_u32 s{sT}, s{sT}, s{sT2}")
    a.e(f"v_lshlrev_b32 v{vRM}, 11, v{vI}"); a.e(f"v_lshl_add_u32 v{vRM}, v{vG}, 3, v{vRM}")
    for rt in range(4):
        a.e(f"buffer_load_dwordx2 {v(XO2+4*rt,2)}, v{vRM}, s[8:11], s{sT} offen")
        a.e(f"buffer_load_dwordx2 {v(XO2+4*rt+2,2)}, v{vRM}, s[8:11], s{sT} offen offset:32")
        a.e(f"s_add_u32 s{sT}, s{sT}, 32768")
    a.e(f"s_branch {l}_d")
    a.label(f"{l}_f")
    a.e(f"s_lshl_b32 s12, s{sMT}, 4"); a.e(f"s_add_u32 s12, s12, s{sCI}"); a.e("s_lshl_b32 s12, s12, 14")
    a.e(f"s_and_b32 s{sT}, s{sWAVE}, 1"); a.e(f"s_lshl_b32 s{sT}, s{sT}, 13"); a.e(f"s_add_u32 s12, s12, s{sT}")
    a.e(f"s_lshr_b32 s{sT}, s{sWAVE}, 1"); a.e(f"s_lshl_b32 s{sT}, s{sT}, 12"); a.e(f"s_add_u32 s12, s12, s{sT}")
    xbuf(a, 12, 1)
    for u in range(4): a.e(f"buffer_load_dwordx4 {v(XO2+4*u,4)}, v{vL16}, s[{SW}:{SW+3}], s12 offen offset:{u*1024} sc1")
    a.label(f"{l}_d")


def res_cons(a, opt, ph, prev_signal=None):
    nxo = 4
    c = CFG[ph]; NS = c['NS']; NT = c['NT']; RW = c['RW']; WS_ = c['WS']
    FB = 32 if ph == 1 else 64; FS = 16 + 4 * NT
    XO = 128 if ph == 3 else XO2
    XU = 144
    RC = 176
    E = 208
    vA, vW0, vWc, vRM, vSO = 240, 241, 242, 243, 239
    sSl, sCnt, sXo, sXn, sP, sF, sSt, sJ = 16, 17, 18, 20, 22, 23, 24, 25
    sIO = 8
    def acc(t, r): return (r * NT + t) * 4
    def xf(b, rt, sub=0): return FB + (b * (2 if ph == 1 else 1) + sub) * FS + rt * 4
    def wf(b, t, sub=0): return FB + (b * (2 if ph == 1 else 1) + sub) * FS + 16 + t * 4
    def uoff(u, s0): return (s0, u * 1024) if ph == 1 else (s0 + (u & 1), (u >> 1) * 1024)
    tag = f"r{ph}"
    a.e(f"s_lshr_b32 s{sT}, s{sWAVE}, 1"); a.e(f"s_lshl_b32 s{sT}, s{sT}, {12 if ph == 1 else 11}")
    a0 = aslot(ph, 0) - (0 if ph == 1 else AS); w0 = wslot(ph, 0) - LW - (0 if ph == 1 else WS_)
    assert a0 % (2 * AS) == 0 and w0 % (2 * WS_) == 0 and a0 >= 0 and w0 >= 0
    if a0: a.e(f"s_add_u32 s{sT}, s{sT}, {a0}")
    a.e(f"v_add_u32 v{vA}, s{sT}, v{vL16}")
    a.e(f"v_lshrrev_b32 v{vT0}, 2, v{vI}")
    if ph == 1:
        a.e(f"v_mul_u32_u24 v{vT0}, 1056, v{vT0}")
        a.e(f"v_lshl_add_u32 v{vT0}, v{vG}, 7, v{vT0}")
        aoff = [0, 1024, 2048, 3072]
    else:
        a.e(f"v_and_b32 v{vT1}, 1, v{vG}")
        a.e(f"v_lshl_add_u32 v{vT0}, v{vT1}, 2, v{vT0}")
        a.e(f"v_mul_u32_u24 v{vT0}, 1056, v{vT0}")
        a.e(f"v_lshrrev_b32 v{vT1}, 1, v{vG}")
        a.e(f"v_lshl_add_u32 v{vT0}, v{vT1}, 8, v{vT0}")
        aoff = [0, 1024, 4096, 5120]
    a.e(f"v_and_b32 v{vT1}, 3, v{vI}")
    a.e(f"v_lshl_add_u32 v{vT0}, v{vT1}, 3, v{vT0}")
    a.e(f"s_and_b32 s{sT}, s{sWAVE}, 1"); a.e(f"s_lshl_b32 s{sT}, s{sT}, {6 if ph == 1 else 7}"); a.e(f"s_add_u32 s{sT}, s{sT}, {LW}")
    a.e(f"v_add_u32 v{vW0}, s{sT}, v{vT0}")
    a.e(f"s_mov_b32 s{sSl}, {w0}")
    a.e(f"v_add_u32 v{vWc}, s{sSl}, v{vW0}")
    if ph == 1:
        a.e(f"s_mov_b32 s{sJ}, s{sCI}")
        a.e(f"s_lshl_b32 s{sXo}, s{sMT}, 4"); a.e(f"s_add_u32 s{sXo}, s{sXo}, s{sCI}"); a.e(f"s_lshl_b32 s{sXo}, s{sXo}, 14")
        a.e(f"s_and_b32 s{sT}, s{sWAVE}, 1"); a.e(f"s_lshl_b32 s{sT}, s{sT}, 13"); a.e(f"s_add_u32 s{sXo}, s{sXo}, s{sT}")
        a.e(f"s_lshr_b32 s{sT}, s{sWAVE}, 1"); a.e(f"s_lshl_b32 s{sT}, s{sT}, 12"); a.e(f"s_add_u32 s{sXo}, s{sXo}, s{sT}")
        a.e(f"s_mov_b32 s{sXn}, s{sXo}"); xbuf(a, sXn, 'lay')
    else:
        a.e(f"s_and_b32 s{sJ}, s{sWAVE}, 1")
        x4_off(a, sXo, sJ, None)
        a.e(f"s_lshr_b32 s{sT}, s{sWAVE}, 1"); a.e(f"s_lshl_b32 s{sT}, s{sT}, 11"); a.e(f"s_add_u32 s{sXo}, s{sXo}, s{sT}")
        a.e(f"s_mov_b32 s{sXn}, s{sXo}"); xbuf(a, sXn, 1); xbuf(a, sXo, 'lay')
        a.e(f"s_add_u32 s{sXo+1}, s{sXo}, 8192"); a.e(f"s_add_u32 s{sXn+1}, s{sXn}, 8192")
    def rowmajor():
        if ph == 1:
            a.e(f"s_lshl_b32 s{sT}, s{sMT}, 1"); a.e(f"s_lshr_b32 s{sT2}, s{sWAVE}, 1"); a.e(f"s_add_u32 s{sT}, s{sT}, s{sT2}"); a.e(f"s_lshl_b32 s{sT}, s{sT}, 17")
            a.e(f"s_and_b32 s{sT2}, s{sWAVE}, 1"); a.e(f"s_lshl_b32 s{sT2}, s{sT2}, 6"); a.e(f"s_add_u32 s{sT}, s{sT}, s{sT2}")
        else:
            a.e(f"s_lshl_b32 s{sT}, s{sMT}, 1"); a.e(f"s_add_u32 s{sT}, s{sT}, s{sHF}"); a.e(f"s_lshl_b32 s{sT}, s{sT}, 1")
            a.e(f"s_lshr_b32 s{sT2}, s{sWAVE}, 1"); a.e(f"s_add_u32 s{sT}, s{sT}, s{sT2}"); a.e(f"s_lshl_b32 s{sT}, s{sT}, 16")
        a.e(f"s_lshl_b32 s{sT2}, s{sJ}, 7"); a.e(f"s_add_u32 s{sT}, s{sT}, s{sT2}")
        a.e(f"v_lshlrev_b32 v{vRM}, 11, v{vI}")
        a.e(f"v_add_u32 v{vRM}, s{sT}, v{vRM}")
    if ph == 3:
        for u in range(4):
            so, im = uoff(u, sXo)
            a.e(f"buffer_load_dwordx4 {v(XO+4*u,4)}, v{vL16}, s[{SW}:{SW+3}], s{so} offen offset:{im} sc1")
    a.e(f"s_lshl_b32 s{sSt}, s{sMT}, 4"); a.e(f"s_add_u32 s{sSt}, s{sSt}, s{sJ}"); a.e(f"s_lshl_b32 s{sSt}, s{sSt}, 11")
    if ph == 1:
        a.e(f"s_lshl_b32 s{sT2}, s{sLAY}, 20"); a.e(f"s_add_u32 s{sSt}, s{sSt}, s{sT2}"); a.e(f"s_add_u32 s{sSt}, s{sSt}, {M_ST}")
        a.e(f"s_lshr_b32 s{sT2}, s{sWAVE}, 1"); a.e(f"s_lshl_b32 s{sT2}, s{sT2}, 9"); a.e(f"s_add_u32 s{sSt}, s{sSt}, s{sT2}")
        a.e(f"s_and_b32 s{sT2}, s{sWAVE}, 1"); a.e(f"s_lshl_b32 s{sT2}, s{sT2}, 10"); a.e(f"s_add_u32 s{sSt}, s{sSt}, s{sT2}")
        a.e(f"v_lshlrev_b32 v{vSO}, 3, v{vL}")
    else:
        a.e(f"s_add_u32 s{sSt}, s{sSt}, {M_ST + 524288}")
        a.e(f"s_lshl_b32 s{sT2}, s{sHF}, 9"); a.e(f"s_add_u32 s{sSt}, s{sSt}, s{sT2}")
        a.e(f"s_lshr_b32 s{sT2}, s{sWAVE}, 1"); a.e(f"s_lshl_b32 s{sT2}, s{sT2}, 8"); a.e(f"s_add_u32 s{sSt}, s{sSt}, s{sT2}")
        a.e(f"v_lshrrev_b32 v{vT0}, 1, v{vG}"); a.e(f"v_lshl_add_u32 v{vT0}, v{vT0}, 4, v{vI}"); a.e(f"v_lshlrev_b32 v{vT0}, 3, v{vT0}")
        a.e(f"v_and_b32 v{vT1}, 1, v{vG}"); a.e(f"v_lshl_add_u32 v{vSO}, v{vT1}, 10, v{vT0}")
        a.e(f"s_lshl_b32 s{sF}, s{sLAY}, 8"); a.e(f"s_add_u32 s{sF}, s{sF}, s2"); a.e(f"s_lshl_b32 s{sF}, s{sF}, 2"); a.e(f"s_add_u32 s{sF}, s{sF}, s{sWAVE}")
        a.e(f"s_lshl_b32 s{sP}, s{sF}, 13"); a.e(f"s_add_u32 s{sP}, s{sP}, {WS_P}")
        a.e(f"s_lshl_b32 s{sF}, s{sF}, 7"); a.e(f"s_add_u32 s{sF}, s{sF}, {M_XF}")

    def rd_list(b, sub, ao, wo):
        g = []
        for i in range(4):
            k = i if ph == 1 else (i + 2) % 4
            g.append(f"ds_read_b128 {v(xf(b,k,sub),4)}, v{vA} offset:{ao + aoff[k]}")
            if i < NT:
                g.append(f"ds_read_b64_tr_b16 {v(wf(b,i,sub),2)}, v{vWc} offset:{wo + 32*i}")
                g.append(f"ds_read_b64_tr_b16 {v(wf(b,i,sub)+2,2)}, v{vWc} offset:{wo + 32*i + 512}")
        return g
    adv = [[f"v_add_u16 v{vA}, 0x4000, v{vA}"], [f"s_add_u32 s{sSl}, s{sSl}, {2*WS_}", f"s_cmp_eq_u32 s{sSl}, {RW * WS_}"],
           [f"s_cselect_b32 s{sSl}, 0, s{sSl}"], [f"v_add_u32 v{vWc}, s{sSl}, v{vW0}"]]
    if ph == 1: order = [(t, r if t == 0 else 3 - r) for t in range(2) for r in range(4)]
    else: order = [(t if i % 2 == 0 else 3 - t, r) for i, r in enumerate((2, 3, 0, 1)) for t in range(4)]
    def mf(b, sub): return [mfma(acc(t, r), wf(b, t, sub), xf(b, r, sub)) for t, r in order]
    rdend = opt.get(f"g{ph+1}rd", 9 if ph == 3 else 10)
    def seg(m, rd, post):
        sl = {}
        spread(rd, 0, rdend, sl)
        spread(post, rdend + 1, 14, sl)
        sl.setdefault(15, []).append("s_waitcnt lgkmcnt(0)")
        a.es(place(m, sl))
    for i in range(4): a.e(f"v_mov_b32 v{E+i}, 0")
    a.e("s_nop 1")
    for i in range(0, 16 * NT, 16): a.e(f"v_mfma_f32_32x32x16_bf16 {v(i,16)}, {v(E,4)}, {v(E,4)}, 0")
    a.e(f"s_mov_b32 s{sCnt}, {NS // 4}")
    def unpack_x():
        a.e("s_waitcnt vmcnt(1)" if ph == 1 else f"s_waitcnt vmcnt({4 if opt.get('xb16', 1) else 8})")
        for i in range(16):
            a.e(f"v_lshlrev_b32 v{XU+2*i}, 16, v{XO+i}")
            a.e(f"v_and_b32 v{XU+2*i+1}, 0xffff0000, v{XO+i}")
    if prev_signal: prev_signal(nxo)
    if ph == 1: unpack_x()
    ts(a, opt, ph, 0)
    a.e("s_waitcnt lgkmcnt(0)")
    a.e("s_barrier")
    ts(a, opt, ph, 1)
    if ph == 1: a.es(rd_list(0, 0, 0, 0) + rd_list(0, 1, AS, WS_))
    else: a.es(rd_list(0, 0, AS, WS_))
    for g in adv: a.es(g)
    a.e("s_waitcnt lgkmcnt(0)")
    tsc(a, opt, ph, 6)
    a.label(f"{tag}_loop")
    for per in range(2):
        mk = sum(1 << (NS // 4 - p // 2) for p in c['SKIP'] if p % 2 == per)
        if mk:
            a.e(f"s_bitcmp1_b32 {mk}, s{sCnt}"); a.e(f"s_cbranch_scc1 {tag}_nb{per}")
        a.e("s_barrier")
        a.label(f"{tag}_nb{per}")
        cnt = [[f"s_sub_u32 s{sCnt}, s{sCnt}, 1", f"s_cmp_lg_u32 s{sCnt}, 0"]] if per == 1 else []
        if ph == 1:
            seg(mf(per, 0) + mf(per, 1), rd_list(1 - per, 0, 0, 0) + rd_list(1 - per, 1, AS, WS_), adv + cnt)
        else:
            seg(mf(0, 0), rd_list(1, 0, 0, 0), [])
            seg(mf(1, 0), rd_list(0, 0, AS, WS_), adv + cnt)
    a.e(f"s_cbranch_scc1 {tag}_loop")
    tsc(a, opt, ph, 7)
    ts(a, opt, ph, 2)
    if ph == 3:
        NX = 4 if opt.get("xb16", 1) else 8
        a.e(f"s_add_u32 s{sT2}, s{sP}, 4096")
        for i in range(NX):
            so = sP if i < 4 else sT2
            if NX == 4:
                for k in range(4): a.e(f"v_cvt_pk_bf16_f32 v{32+8*i+k}, v{32+8*i+2*k}, v{32+8*i+2*k+1}")
            a.e(f"buffer_store_dwordx4 {v(32+(32//NX)*i,4)}, v{vL16}, s[{SW}:{SW+3}], s{so} offen offset:{(i%4)*1024}{SC}")
        bepos = opt.get("g4be", 1)
        if bepos == 0: a.e("s_barrier")
        unpack_x()
        store_flag_remote(a, sF, E, E + 1)
        if bepos == 1: a.e("s_barrier")
        ts(a, opt, ph, 3)
        a.e(f"s_xor_b32 s{sF}, s{sF}, 512")
        a.e(f"s_xor_b32 s{sP}, s{sP}, {4 * 8192}")
        poll(a, sF, E, E + 2, 1, "1", acquire=False)
        a.e(f"s_add_u32 s{sT2}, s{sP}, 4096")
        for i in range(NX):
            so = sP if i < 4 else sT2
            a.e(f"buffer_load_dwordx4 {v(RC+4*i if NX == 8 else 32+4*i,4)}, v{vL16}, s[{SW}:{SW+3}], s{so} offen offset:{(i%4)*1024} sc1")
        if bepos == 2: a.e("s_barrier")
        ts(a, opt, ph, 4)
    else:
        a.e("s_barrier")
        a.e("s_nop 5")
    O = 64
    S = 80
    vOne = 88
    Y = E
    a.e(f"v_mov_b32 v{vOne}, 0x{ONES:08x}")
    def fin2(u0):
        U = 96; cc = 8 * u0
        if ph == 3:
            if NX == 8:
                a.e(f"s_waitcnt vmcnt({4 if u0 == 0 else 2})")
            else:
                a.e("s_waitcnt vmcnt(2)")
                for k in range(8): a.e(f"v_lshlrev_b32 v{RC+cc+2*k}, 16, v{32+4*u0+k}")
                for k in range(8): a.e(f"v_and_b32 v{RC+cc+2*k+1}, 0xffff0000, v{32+4*u0+k}")
            for r in range(0, 16, 2): a.e(f"v_pk_add_f32 {v(cc+r,2)}, {v(cc+r,2)}, {v(RC+cc+r,2)}")
        for i in range(8): a.e(f"v_cvt_pk_bf16_f32 v{Y+i}, v{cc+2*i}, v{cc+2*i+1}")
        for i in range(8): a.e(f"v_lshlrev_b32 v{U+2*i}, 16, v{Y+i}")
        for i in range(8): a.e(f"v_and_b32 v{U+2*i+1}, 0xffff0000, v{Y+i}")
        for i in range(8): a.e(f"v_pk_add_f32 {v(U+2*i,2)}, {v(U+2*i,2)}, {v(XU+cc+2*i,2)}")
        for i in range(8): a.e(f"v_cvt_pk_bf16_f32 v{O+4*u0+i}, v{U+2*i}, v{U+2*i+1}")
    def fin(u):
        if u % 2 == 0: fin2(u)
    lo = a.new("fo")
    if ph == 3:
        a.e(f"s_cmp_lg_u32 s{sLAY}, 0"); a.e(f"s_cbranch_scc1 {lo}_out")
    for u in range(4):
        fin(u)
        so, im = uoff(u, sXn)
        a.e(f"buffer_store_dwordx4 {v(O+4*u,4)}, v{vL16}, s[{SW}:{SW+3}], s{so} offen offset:{im}{SC}")
    for i in range(4):
        for u in range(4):
            a.e(f"v_dot2_f32_bf16 v{S+u}, v{O+4*u+i}, v{vOne}, " + ("0" if i == 0 else f"v{S+u}"))
            a.e(f"v_dot2_f32_bf16 v{S+4+u}, v{O+4*u+i}, v{O+4*u+i}, " + ("0" if i == 0 else f"v{S+4+u}"))
    a.e("s_nop 2")
    for b in (S, S + 4):
        a.e(f"v_permlane16_swap_b32 v{b}, v{b+1}")
        a.e(f"v_permlane16_swap_b32 v{b+2}, v{b+3}")
    for b in (S, S + 4):
        a.e(f"v_add_f32 v{b}, v{b}, v{b+1}")
        a.e(f"v_add_f32 v{b+2}, v{b+2}, v{b+3}")
    a.e("s_nop 1")
    for b in (S, S + 4): a.e(f"v_permlane32_swap_b32 v{b}, v{b+2}")
    a.e(f"v_add_f32 v{S}, v{S}, v{S+2}")
    a.e(f"v_add_f32 v{S+1}, v{S+4}, v{S+6}")
    a.e(f"buffer_store_dwordx2 {v(S,2)}, v{vSO}, s[{SW}:{SW+3}], s{sSt} offen{SC}")
    signal(a, ph, E, E + 1)
    ts(a, opt, ph, 5)
    if ph == 1: return
    a.e(f"s_branch {lo}_end")
    a.label(f"{lo}_out")
    if opt.get("dbgdelta"):
        for i in range(32): a.e(f"v_mul_f32 v{i}, 0x{fbits(1.0 + opt['dbgdelta']):08x}, v{i}")
    make_srd(a, sIO, pOUT, 4 * MB)
    rowmajor()
    a.e(f"v_and_b32 v{vT0}, 1, v{vG}"); a.e(f"v_lshl_add_u32 v{vRM}, v{vT0}, 5, v{vRM}")
    a.e(f"v_lshrrev_b32 v{vT0}, 1, v{vG}"); a.e(f"v_lshl_add_u32 v{vRM}, v{vT0}, 4, v{vRM}")
    for u in range(4):
        fin(u)
        a.e(f"s_mov_b32 s{sT}, {(u >> 1) * 32768}")
        a.e("s_nop 0")
        a.e(f"v_permlane16_swap_b32 v{O+4*u}, v{O+4*u+2}")
        a.e(f"v_permlane16_swap_b32 v{O+4*u+1}, v{O+4*u+3}")
        a.e(f"buffer_store_dwordx4 {v(O+4*u,4)}, v{vRM}, s[{sIO}:{sIO+3}], s{sT} offen offset:{(u & 1) * 64}" + str(opt.get("ofl", "")).replace("-", " "))
    ts(a, opt, ph, 5)
    a.label(f"{lo}_end")
```

```python
from common import *
import res, g1, g3

def gen(name, opt):
    t = gen_(name, opt)
    if opt.get("onlysc1"): t = t.replace(" sc0 sc1", " sc1")
    al = opt.get("al", 0)
    if al:
        import re
        pad = "    s_nop 0\n" * opt.get("alo", 0)
        t = re.sub(r"^(\w+_loop\d?:)$", lambda m_: f".p2alignl {al}, 0xBF800000\n" + pad + m_.group(1), t, flags=re.M)
    return t

def gen_(name, opt):
    a = Asm(); kernel_header(a, name)
    nph = opt.get("nph", 8)
    if opt.get("ts"): a.e("s_memrealtime s[100:101]")
    a.e("s_cmp_ge_u32 s2, 256"); a.e("s_cbranch_scc1 L_end")
    a.e(f"s_load_dwordx4 s[{pAX}:{pAX+3}], s[0:1], 0")
    a.e(f"s_load_dwordx2 s[{sWS}:{sWS+1}], s[0:1], 72")
    a.e(f"s_load_dwordx2 s[{pWO}:{pWO+1}], s[0:1], 16")
    a.e(f"s_load_dwordx4 s[{pW1}:{pW1+3}], s[0:1], 32")
    a.e(f"s_load_dwordx4 s[{pW2}:{pW2+3}], s[0:1], 48")
    a.e(f"s_load_dwordx2 s[{pDBG}:{pDBG+1}], s[0:1], 64")
    a.e("v_lshrrev_b32 v1, 6, v0")
    a.e(f"v_and_b32 v{vL}, 63, v0")
    a.e(f"v_readfirstlane_b32 s{sWAVE}, v1")
    a.e(f"v_lshrrev_b32 v{vG}, 4, v{vL}"); a.e(f"v_and_b32 v{vI}, 15, v{vL}"); a.e(f"v_lshlrev_b32 v{vL16}, 4, v{vL}")
    if opt.get("ts"): a.e("v_mov_b32 v255, 0")
    a.e(f"s_and_b32 s{sX}, s2, 7"); a.e(f"s_lshr_b32 s{sCI}, s2, 4"); a.e(f"s_lshr_b32 s{sQ}, s2, 3"); a.e(f"s_and_b32 s{sQ}, s{sQ}, 1")
    a.e(f"s_lshl_b32 s{sMT}, s{sX}, 1")
    a.e(f"s_add_u32 s{sMT}, s{sMT}, s{sQ}")
    a.e(f"s_and_b32 s{sHF}, s{sCI}, 1")
    a.e(f"s_lshl_b32 s{sMB}, s{sHF}, 1"); a.e(f"s_xor_b32 s{sMB}, s{sMB}, s{sMT}")
    a.e(f"s_and_b32 s{sT}, s{sX}, 1"); a.e(f"s_lshl_b32 s{sT}, s{sT}, 3"); a.e(f"s_lshr_b32 s{sNT}, s{sCI}, 1"); a.e(f"s_add_u32 s{sNT}, s{sNT}, s{sT}")
    a.e(f"s_and_b32 s{sK4}, s{sX}, 6"); a.e(f"s_lshl_b32 s{sK3}, s{sK4}, 1")
    a.e(f"s_sub_u32 s{sN8}, s{sNT}, s{sK4}"); a.e(f"s_add_u32 s{sN8}, s{sN8}, 3"); a.e(f"s_and_b32 s{sN8}, s{sN8}, 7")
    a.e(f"s_mov_b32 s{sLB}, 0"); a.e(f"s_mov_b32 s{sXM}, 1")
    a.e(f"s_and_b32 s{sW4}, s{sWAVE}, 3")
    a.e(f"s_mov_b32 s{sLAY}, 0"); a.e(f"s_mov_b32 s{sSLOW}, 1"); a.e(f"s_mov_b32 s{sSPIN}, {opt.get('spin', SPIN)}")
    a.e("s_waitcnt lgkmcnt(0)")
    if opt.get("ts"):
        a.e("v_writelane_b32 v255, s100, 53")
        a.e(f"s_memrealtime s[{sTS}:{sTS+1}]"); a.e("s_waitcnt lgkmcnt(0)"); a.e(f"v_writelane_b32 v255, s{sTS}, 13")
    make_srd(a, SW, sWS, WS_SIZE)
    a.e(f"s_cmp_ge_u32 s{sWAVE}, 4"); a.e("s_cbranch_scc1 L_load")
    xs = g1.x0_stats(a, opt); next(xs)
    if opt.get("cpf", 1):
        a.e(f"s_cmp_lg_u32 s{sWAVE}, 1"); a.e("s_cbranch_scc1 L_cons")
        a.e("s_getpc_b64 s[20:21]")
        a.e("s_lshl_b32 s22, s2, 8"); a.e("s_add_u32 s20, s20, s22"); a.e("s_addc_u32 s21, s21, 0")
        a.e("s_cmp_ge_u32 s22, L_end-L_load-256"); a.e("s_cbranch_scc1 L_cons")
        for i in range(4): a.e(f"s_load_dword s22, s[20:21], {64*i}")
    a.e("s_branch L_cons")
    a.label("L_load")
    def stop_check(p):
        if nph < 8 and (nph - 1) % 4 == p:
            a.e(f"s_cmp_eq_u32 s{sLAY}, {(nph - 1) // 4}"); a.e("s_cbranch_scc1 L_fin")
    if opt.get("lprio", 3): a.e(f"s_setprio {opt.get('lprio', 3)}")
    n2 = g1.g1_load0(a, opt)
    a.label("L_g2")
    stop_check(0)
    G3 = g3.G3(a, opt, 1)
    n3 = res.res_load(a, opt, 1, n2, G3.w_setup, lambda vm: G3.nxt(vm, opt.get("g3pre", 2)),
                      lambda idx, n: 0 if n else (opt.get("g3pc", 3) if idx < 14 else opt.get("g3pd", 11))); stop_check(1)
    if opt.get("lprio", 3): a.e(f"s_setprio {opt.get('g3prio', 1)}")
    G3.run(n3); stop_check(2)
    if opt.get("lprio", 3): a.e(f"s_setprio {opt.get('lprio', 3)}")
    n1 = res.res_load(a, opt, 3, res.CFG[3]['RW'], lambda: g1.g1_w_setup(a, opt, 1), lambda vm: g1.g1_nxt(a, vm, opt.get("g1pre", 6)), lambda idx, n: 0 if n else opt.get("g1pc", 2)); stop_check(3)
    a.e(f"s_cmp_eq_u32 s{sLAY}, 1"); a.e("s_cbranch_scc1 L_fin")
    a.e(f"s_mov_b32 s{sLAY}, 1"); set_mode(a, opt)
    n2b = g1.g1_load1(a, opt, n1)
    assert n2b == n2
    a.e("s_branch L_g2")
    a.flush_tail()
    a.label("L_cons")
    a.e(f"s_mul_i32 s{sT}, s{sWAVE}, {g1.AS}"); a.e(f"v_add_u32 v8, s{sT}, v{vL16}")
    for i in range(4): a.e(f"v_mov_b32 v{4+i}, 0x{ONES:08x}")
    a.e("s_mov_b64 exec, 0xff")
    a.e("ds_write_b128 v8, v[4:7]")
    a.e("s_mov_b64 exec, -1")
    a.e("v_mov_b32 v0, 0")
    for _ in xs: pass
    a.e(f"s_cmp_lg_u32 s{sWAVE}, 3"); a.e("s_cbranch_scc1 L_noinit")
    for i in range(4): a.e(f"v_mov_b32 v{i}, 0")
    a.e(f"s_lshl_b32 s{sT}, s2, 10"); a.e(f"s_add_u32 s{sT}, s{sT}, {M_XF}")
    a.e(f"buffer_store_dwordx4 v[0:3], v{vL16}, s[{SW}:{SW+3}], s{sT} offen{SC}")
    a.e(f"s_mul_i32 s{sT}, s2, 384"); a.e(f"s_add_u32 s{sT}, s{sT}, {M_FL}")
    a.e("s_mov_b64 exec, 0xffffff")
    a.e(f"buffer_store_dwordx4 v[0:3], v{vL16}, s[{SW}:{SW+3}], s{sT} offen{SC}")
    a.e("s_mov_b64 exec, -1")
    a.label("L_noinit")
    a.e("s_waitcnt lgkmcnt(0)")
    a.label("C_layer")
    g1.g1_cons(a, opt); stop_check(0)
    res.res_cons(a, opt, 1); stop_check(1)
    G0 = g3.G3(a, opt, 0); G0.w_setup(); G0.run(0); stop_check(2)
    res.res_cons(a, opt, 3, lambda p: signal(a, 2, 236, 237, p)); stop_check(3)
    a.e(f"s_add_u32 s{sLAY}, s{sLAY}, 1"); set_mode(a, opt)
    a.e(f"s_cmp_lt_u32 s{sLAY}, 2"); a.e("s_cbranch_scc1 C_layer")
    a.e("s_branch L_fin")
    a.flush_tail()
    a.label("L_fin")
    if opt.get("ts"):
        a.e(f"s_lshl_b32 s{sT}, s2, 3"); a.e(f"s_add_u32 s{sT}, s{sT}, s{sWAVE}"); a.e(f"s_lshl_b32 s{sT}, s{sT}, 8"); a.e(f"s_add_u32 s{sT}, s{sT}, {M_TS}")
        a.e(f"v_lshlrev_b32 v{vT0}, 2, v{vL}")
        a.e("s_waitcnt vmcnt(0)")
        a.e(f"s_memrealtime s[{sTS}:{sTS+1}]"); a.e("s_waitcnt lgkmcnt(0)"); a.e(f"v_writelane_b32 v255, s{sTS}, 21")
        a.e(f"buffer_store_dword v255, v{vT0}, s[{SW}:{SW+3}], s{sT} offen")
    a.label("L_abort")
    a.label("L_end")
    a.e("s_endpgm")
    return a.text()

if __name__ == "__main__":
    opt = parse_opts(sys.argv[2:])
    if opt.get("list"):
        t = build([("mega_kernel", 256, 512, 163840)], [gen("mega_kernel", opt)])
    else:
        KN = NAME + "_kernel"
        t = build([(KN, 256, 512, 163840)], [gen(KN, opt)], single=True)
    open(sys.argv[1], "w").write(t)
```

```python
from mblib import *
def mk(name, kidx, lw=4, cw=4, nrd=8, ntr=0, nmf=16, iters_c=2000, dsteps=512, pitch=2048, kbytes=2048, depth=5, lfirst=False, prio=0, lwr=0):
    a = Asm()
    prologue(a, name)
    rows = 128; seg = 128; RPI = 8; NI = 16; stepb = 16384
    if lfirst:
        a.e(f"s_cmp_ge_u32 s3, {lw}")
        a.e(f"s_cbranch_scc1 {name}_cons")
        a.e("s_mov_b32 s30, s3")
    else:
        a.e(f"s_cmp_lt_u32 s3, {cw}")
        a.e(f"s_cbranch_scc1 {name}_cons")
        a.e(f"s_sub_u32 s30, s3, {cw}")
    if lw == 0:
        tstart(a); a.e(f"s_branch {name}_fin")
    else:
        pw = NI // lw
        a.e(f"s_cmp_ge_u32 s30, {lw}")
        a.e(f"s_cbranch_scc1 {name}_idle")
        a.e(f"v_lshrrev_b32 v2, 3, v1")
        a.e(f"s_mov_b32 s20, {pitch}")
        a.e("v_mul_lo_u32 v2, v2, s20")
        a.e(f"v_and_b32 v3, 7, v1")
        a.e("v_lshl_add_u32 v2, v3, 4, v2")
        a.e("s_lshr_b32 s21, s2, 3")
        a.e(f"s_and_b32 s21, s21, 3")
        a.e(f"s_mul_i32 s21, s21, {rows * pitch}")
        a.e(f"s_mul_i32 s22, s30, {pw * RPI * pitch}")
        a.e("s_add_u32 s21, s21, s22")
        a.e(f"s_mul_i32 s23, s30, {pw * 1024}")
        a.e("s_lshl_b32 s24, s30, 10"); a.e("s_add_u32 s24, s24, 0x20000"); a.e("v_lshl_add_u32 v4, v1, 4, s24")
        if prio: a.e(f"s_setprio {prio}")
        R = depth + 1
        tot = dsteps // R
        tstart(a)
        a.e(f"s_mov_b32 s25, 0")
        a.e(f"s_mov_b32 s26, {tot}")
        a.label(f"{name}_loop")
        for s in range(R):
            a.e(f"s_add_u32 s27, s21, s25")
            a.e(f"s_add_u32 m0, s23, {s * stepb}")
            for j in range(pw):
                if j:
                    a.e(f"s_add_u32 s27, s27, {RPI * pitch}")
                    a.e(f"s_add_u32 m0, m0, 1024")
                a.e("s_nop 0")
                a.e(f"buffer_load_dwordx4 v2, s[8:11], s27 offen lds")
            if lwr and s % lwr == 0:
                a.e("s_waitcnt lgkmcnt(1)")
                a.e("ds_write_b128 v4, v[8:11]")
            a.e(f"s_add_u32 s25, s25, {seg}")
            a.e(f"s_cmp_ge_u32 s25, {kbytes}")
            a.e(f"s_cselect_b32 s25, 0, s25")
            a.e(f"s_waitcnt vmcnt({min(63, depth * pw)})")
        a.e("s_sub_u32 s26, s26, 1")
        a.e("s_cmp_lg_u32 s26, 0")
        a.e(f"s_cbranch_scc1 {name}_loop")
        a.e(f"s_branch {name}_fin")
        a.label(f"{name}_idle")
        tstart(a)
        a.e(f"s_branch {name}_fin")
    a.label(f"{name}_cons")
    a.e("v_lshlrev_b32 v2, 4, v1")
    a.e("s_lshl_b32 s20, s3, 10")
    a.e("v_add_u32 v2, s20, v2")
    a.e("v_lshlrev_b32 v3, 3, v1")
    a.e("v_add_u32 v3, s20, v3")
    for i in range(16, 256): a.e(f"v_mov_b32 v{i}, 0x3c003c00")
    tstart(a)
    if cw > 0 and iters_c > 0:
        a.e(f"s_mov_b32 s26, {iters_c}")
        a.label(f"{name}_cl")
        for half in range(2):
            fb = 128 + half * 64
            rd = [[f"ds_read_b128 v[{128 + (1-half)*64 + (i%16)*4}:{128 + (1-half)*64 + (i%16)*4+3}], v2 offset:{(i*4096)%65536}"] for i in range(nrd)]
            rd += [[f"ds_read_b64_tr_b16 v[{128 + (1-half)*64 + 32 + (i%16)*2}:{128 + (1-half)*64 + 32 + (i%16)*2+1}], v3 offset:{(i*2048)%65536}"] for i in range(ntr)]
            mf = [f"v_mfma_f32_16x16x32_bf16 v[{16+(i%28)*4}:{16+(i%28)*4+3}], v[{fb+(i%8)*4}:{fb+(i%8)*4+3}], v[{fb+32+(i//8%8)*4}:{fb+32+(i//8%8)*4+3}], v[{16+(i%28)*4}:{16+(i%28)*4+3}]" for i in range(nmf)]
            if not mf:
                for g in rd: a.e(g[0])
            else:
                for x in interleave(mf, rd, 0, int(len(mf)*0.8)): a.e(x)
            a.e("s_waitcnt lgkmcnt(0)")
        a.e("s_sub_u32 s26, s26, 1")
        a.e("s_cmp_lg_u32 s26, 0")
        a.e(f"s_cbranch_scc1 {name}_cl")
    a.label(f"{name}_fin")
    tend(a, name, kidx, barrier=False)
    kernels.append((name, 256, 102))
    return a.text(), (dsteps // (depth + 1)) * (depth + 1) * stepb

cfgs = []
def add(**kw): cfgs.append(kw)
for lwr in (0, 6, 3, 2, 1):
    add(lw=4, cw=4, nrd=4, ntr=8, nmf=16, iters_c=250, lwr=lwr)
if __name__ == "__main__":
    L = []; B = []; meta = []
    for i, c in enumerate(cfgs):
        nm = f"k{i}_kernel"
        t, nb = mk(nm, i, **c)
        B.append(t); L.append((nm, 256, 512, 163840)); meta.append((c, nb))
    open(sys.argv[1], "w").write(build(L, B))
    import json
    json.dump(meta, open(sys.argv[1] + ".json", "w"))
```
